```python
import torch

def _softmax(x, axis=-1):
    return torch.softmax(x, dim=axis)
def _gelu(x):
    return torch.nn.functional.gelu(x, approximate="tanh")
def _silu(x):
    return torch.nn.functional.silu(x)
def _sigmoid(x):
    return torch.sigmoid(x)
def _layernorm(x, axis=-1, eps=1e-5):
    m = x.mean(dim=axis, keepdim=True)
    v = x.var(dim=axis, keepdim=True, unbiased=False)
    return (x - m) / torch.sqrt(v + eps)
def _scatter_add(tgt, idx, src, axis=0):
    return tgt.clone().index_add_(axis, idx, src)
def _segment_sum(src, seg, n):
    out = torch.zeros((n,) + src.shape[1:], dtype=src.dtype)
    return out.index_add_(0, seg, src)
def _pad(x, pw):
    flat = tuple(v for pair in reversed(pw) for v in pair)
    return torch.nn.functional.pad(x, flat)

kernel_name = 'interleave_layers__gqa_block_cached__compressed_kv_cla__decode'

def setup_inputs():

    _w = (lambda a: (lambda t: t.to(torch.bfloat16) if t.is_floating_point() else t)(torch.as_tensor(a)))
    def _A_setup():
        B, Sq, D = 1, 1, 640
        Hq, Hkv, Sk, Dh = 32, 32, 4096, 192
        assert Hq % Hkv == 0, (Hq, Hkv)
        return {
            "x": _w((lambda *s: torch.randn(*s, dtype=torch.bfloat16) * 0.05)(B, Sq, D)),
            "k_cache": _w((lambda *s: torch.randn(*s, dtype=torch.bfloat16) * 0.8)(B, Hkv, Sk, Dh)),
            "v_cache": _w((lambda *s: torch.randn(*s, dtype=torch.bfloat16) * 0.8)(B, Hkv, Sk, Dh)),
            "wq": _w((lambda *s: torch.randn(*s, dtype=torch.bfloat16) * 0.8)(D, Hq * Dh) * (D ** -0.5)),
            "wo": _w((lambda *s: torch.randn(*s, dtype=torch.bfloat16) * 0.8)(Hq * Dh, D) * ((Hq * Dh) ** -0.5)),
        }
    _A_in = _A_setup()

    def _B_setup():
        B, H, Sq, Sk, D, M = 1, 32, 1, 4096, 192, 640
        Dc = 4 * D
        return {
            "x": _w((lambda *s: torch.randn(*s, dtype=torch.bfloat16) * 0.05)(B, Sq, M)),
            "c_kv": _w((lambda *s: torch.randn(*s, dtype=torch.bfloat16) * 0.4)(B, Sk, Dc)),
            "w_q": _w((lambda *s: torch.randn(*s, dtype=torch.bfloat16) * 3.2)(M, H, D) * (M ** -0.5)),
            "w_uk": _w((lambda *s: torch.randn(*s, dtype=torch.bfloat16) * 3.2)(Dc, H, D) * (Dc ** -0.5)),
            "w_uv": _w((lambda *s: torch.randn(*s, dtype=torch.bfloat16) * 0.4)(Dc, H, D) * (Dc ** -0.5)),
            "w_o": _w((lambda *s: torch.randn(*s, dtype=torch.bfloat16) * 0.4)(H, D, M) * ((H * D) ** -0.5)),
        }
    _B_in = _B_setup()

    return {
        "A_x": _A_in["x"],
        "A_k_cache": _A_in["k_cache"],
        "A_v_cache": _A_in["v_cache"],
        "A_wq": _A_in["wq"],
        "A_wo": _A_in["wo"],
        "B_x": _B_in["x"],
        "B_c_kv": _B_in["c_kv"],
        "B_w_q": _B_in["w_q"],
        "B_w_uk": _B_in["w_uk"],
        "B_w_uv": _B_in["w_uv"],
        "B_w_o": _B_in["w_o"],
    }

def reference(A_x, A_k_cache, A_v_cache, A_wq, A_wo, B_x, B_c_kv, B_w_q, B_w_uk, B_w_uv, B_w_o):
    def _A_ref(x, k_cache, v_cache, wq, wo):
        B, Sq, D = x.shape
        Hq, Dh = 32, 192
        Hkv = k_cache.shape[1]
        rep = Hq // Hkv
        q = (lambda x, *d: x.permute(*d))((x @ wq).reshape(B, Sq, Hq, Dh), 0, 2, 1, 3)
        k = (lambda x, n, axis: torch.repeat_interleave(x, n, dim=axis))(k_cache, rep, axis=1)
        v = (lambda x, n, axis: torch.repeat_interleave(x, n, dim=axis))(v_cache, rep, axis=1)
        scores = torch.einsum("bhqd,bhkd->bhqk", q, k) * (Dh ** -0.5)
        p = _softmax(scores, axis=-1)
        o = torch.einsum("bhqk,bhkd->bhqd", p, v)
        return (lambda x, *d: x.permute(*d))(o, 0, 2, 1, 3).reshape(B, Sq, Hq * Dh) @ wo

    def _B_ref(x, c_kv, w_q, w_uk, w_uv, w_o):
        B, Sq, M = x.shape[0], x.shape[1], x.shape[2]
        Sk = c_kv.shape[1]
        H, D = w_q.shape[1], w_q.shape[2]
        q = torch.einsum("bqm,mhd->bhqd", x, w_q)
        k = torch.einsum("bkc,chd->bhkd", c_kv, w_uk)
        v = torch.einsum("bkc,chd->bhkd", c_kv, w_uv)
        scores = torch.einsum("bhqd,bhkd->bhqk", q, k) * (D ** -0.5)
        off = Sk - Sq
        qi = torch.arange(Sq)[:, None]
        kj = torch.arange(Sk)[None, :]
        cmask = kj <= (qi + off)
        scores = torch.where(cmask[None, None], scores, -1e9)
        p = _softmax(scores, axis=-1)
        ctx = torch.einsum("bhqk,bhkd->bhqd", p, v)
        return torch.einsum("bhqd,hdm->bqm", ctx, w_o)

    x = A_x
    x = x + _A_ref(_layernorm(x, axis=-1), A_k_cache, A_v_cache, A_wq, A_wo)
    x = x + _B_ref(_layernorm(x, axis=-1), B_c_kv, B_w_q, B_w_uk, B_w_uv, B_w_o)
    x = x + _A_ref(_layernorm(x, axis=-1), A_k_cache, A_v_cache, A_wq, A_wo)
    x = x + _B_ref(_layernorm(x, axis=-1), B_c_kv, B_w_q, B_w_uk, B_w_uv, B_w_o)
    return x
```

```python
import re

NAME = 'interleave_layers__gqa_block_cached__compressed_kv_cla__decode'

_REG = re.compile(r'^(-|abs\()?([vas])(\d+)\)?$')
_RNG = re.compile(r'^(-)?([vas])\[(\d+):(\d+)\]$')

def regs_of(op):
    op = op.strip()
    m = _REG.match(op)
    if m:
        return {(m.group(2), int(m.group(3)))}
    m = _RNG.match(op)
    if m:
        return {(m.group(2), i) for i in range(int(m.group(3)), int(m.group(4)) + 1)}
    if op in ('vcc', 'vcc_lo', 'vcc_hi'):
        return {('s', 'vcc')}
    if op in ('exec', 'exec_lo', 'exec_hi'):
        return {('s', 'exec')}
    if op == 'm0':
        return {('s', 'm0')}
    return set()

TRANS = ('v_exp_f32', 'v_log_f32', 'v_rcp_f32', 'v_rsq_f32', 'v_sqrt_f32', 'v_sin_f32', 'v_cos_f32')

class Ins:
    __slots__ = ('text', 'mn', 'ops', 'kind', 'dst', 'src', 'dpp', 'srcC', 'states', 'wide_store', 'lds_dma')
    def __init__(self, text):
        self.text = text
        t = text.split(';')[0].strip()
        parts = t.split(None, 1)
        self.mn = parts[0]
        rest = parts[1] if len(parts) > 1 else ''
        ops = []; cur = ''; depth = 0
        for ch in rest:
            if ch == '[': depth += 1
            if ch == ']': depth -= 1
            if ch == ',' and depth == 0:
                ops.append(cur.strip()); cur = ''
            else:
                cur += ch
        if cur.strip(): ops.append(cur.strip())
        mods = ''
        if ops:
            last = ops[-1].split(None, 1)
            ops[-1] = last[0]
            mods = last[1] if len(last) > 1 else ''
        self.ops = ops
        mn = self.mn
        self.dpp = mn.endswith('_dpp') or 'quad_perm' in mods or 'row_' in mods
        self.dst = set(); self.src = set(); self.srcC = set()
        self.states = 1
        self.wide_store = False; self.lds_dma = False
        R = [regs_of(o) for o in ops]
        if mn == 's_nop':
            self.kind = 'nop'; self.states = int(ops[0], 0) + 1
        elif mn.startswith('v_mfma') or mn.startswith('v_smfmac'):
            self.kind = 'mfma'; self.dst = R[0]; self.src = R[1] | R[2]; self.srcC = R[3] if len(R) > 3 else set()
        elif mn.startswith('v_cmp'):
            self.kind = 'valu'; self.dst = R[0]; self.src = set().union(*R[1:])
        elif mn.startswith('v_readlane') or mn.startswith('v_readfirstlane'):
            self.kind = 'rdlane'; self.dst = R[0]; self.src = set().union(*R[1:])
        elif mn.startswith('v_permlane') or mn.startswith('v_swap'):
            self.kind = 'perml' if mn.startswith('v_permlane') else 'valu'
            self.dst = R[0] | R[1]; self.src = R[0] | R[1]
        elif mn.startswith('v_'):
            self.kind = 'trans' if mn.replace('_e32', '').replace('_e64', '') in TRANS else 'valu'
            self.dst = R[0]; self.src = set().union(*R[1:]) if len(R) > 1 else set()
            if mn.startswith(('v_fmac', 'v_dot2c', 'v_writelane')) or self.dpp:
                self.src |= R[0]
            if mn.startswith('v_cndmask') and len(ops) == 3:
                self.src |= {('s', 'vcc')}
        elif mn.startswith('ds_read') or mn.startswith('ds_bpermute') or mn.startswith('ds_swizzle'):
            self.kind = 'mem'; self.dst = R[0]; self.src = set().union(*R[1:])
        elif mn.startswith('ds_'):
            self.kind = 'mem'; self.src = set().union(*R)
        elif mn.startswith(('buffer_load', 'global_load')):
            self.kind = 'vmem'
            if ' lds' in (' ' + mods) or 'load_lds' in mn:
                self.lds_dma = True; self.src = set().union(*R)
            else:
                self.dst = R[0]; self.src = set().union(*R[1:])
        elif mn.startswith(('buffer_store', 'global_store', 'buffer_atomic', 'global_atomic')):
            self.kind = 'vmem'; self.src = set().union(*R)
            if 'x4' in mn or 'x3' in mn:
                self.wide_store = True
                self.srcC = R[0] if mn.startswith('buffer') else R[1]
        elif mn.startswith('s_'):
            self.kind = 'salu'
            if mn.startswith(('s_cmp', 's_cbranch', 's_branch', 's_waitcnt', 's_barrier', 's_sleep', 's_setprio', 's_endpgm', 's_bitcmp')):
                self.src = set().union(*R) if R else set()
            else:
                self.dst = R[0] if R else set(); self.src = set().union(*R[1:]) if len(R) > 1 else set()
                if 'saveexec' in mn: self.dst |= {('s', 'exec')}
        else:
            raise ValueError('unknown instr ' + text)

def isv(regs): return {r for r in regs if r[0] in 'va'}
def iss(regs): return {r for r in regs if r[0] == 's'}

def need(p, c):
    n = 0
    pv = p.kind in ('valu', 'trans', 'perml', 'rdlane')
    cv = c.kind in ('valu', 'trans', 'perml', 'rdlane')
    if pv:
        vd = isv(p.dst); sd = iss(p.dst)
        if c.kind == 'mfma' and vd & (c.src | c.srcC): n = max(n, 2)
        if cv and c.dpp and vd & c.src: n = max(n, 2)
        if c.kind == 'perml' and vd & c.src: n = max(n, 2)
        if c.kind == 'rdlane' and vd & c.src: n = max(n, 1)
        if p.kind == 'trans' and cv and vd & c.src: n = max(n, 1)
        if p.kind == 'trans' and c.kind in ('mem', 'vmem') and vd & c.src: n = max(n, 1)
        if sd:
            if cv and sd & c.src:
                n = max(n, 4 if c.mn.startswith(('v_readlane', 'v_writelane')) else 2)
            if c.kind == 'vmem' and sd & c.src: n = max(n, 5)
            if c.kind == 'salu' and sd & c.src: n = max(n, 1)
    if p.kind == 'mfma':
        if c.kind == 'mfma':
            if p.dst & c.src: n = max(n, 8)
            if p.dst & c.srcC:
                if not (p.dst == c.srcC and p.mn == c.mn): n = max(n, 6)
            if p.dst & c.dst and not (p.dst == c.srcC and p.mn == c.mn): n = max(n, 8)
        elif c.kind != 'salu' and c.kind != 'nop':
            if p.dst & (c.src | c.dst): n = max(n, 8)
        if cv and p.srcC & c.dst: n = max(n, 3)
    if p.kind == 'salu' and ('s', 'm0') in p.dst and c.lds_dma: n = max(n, 1)
    if p.kind == 'vmem' and p.wide_store and p.srcC & c.dst: n = max(n, 2)
    return n

class Asm:
    def __init__(self):
        self.items = []
        self.nl = 0
    def __call__(self, s):
        for l in s.strip('\n').split('\n'):
            l = l.strip()
            if not l: continue
            if l.startswith(';'):
                self.items.append(('comment', l)); continue
            if l.endswith(':'):
                self.items.append(('label', l[:-1])); continue
            self.items.append(Ins(l))
    def label(self, name): self.items.append(('label', name))
    def newlabel(self, p='L'):
        self.nl += 1
        return f'{p}_{self.nl}'
    def raw(self, text): self.items.append(('raw', text))
    def finalize(self):
        out = []
        hist = []
        WIN = 9
        def pad(n):
            while n > 0:
                k = min(n, 16)
                i = Ins(f's_nop {k-1}')
                out.append(i); advance(i); n -= k
        def advance(ins):
            nonlocal hist
            hist = [(p, d + ins.states) for (p, d) in hist if d + ins.states < WIN]
            if ins.kind != 'nop': hist.append((ins, 0))
        def worst(p):
            if p.kind == 'mfma': return 8
            if p.kind in ('valu', 'trans', 'perml', 'rdlane'):
                return 5 if (iss(p.dst) - {('s', 'vcc')}) else 2
            if p.kind == 'vmem' and p.wide_store: return 2
            if p.kind == 'salu' and ('s', 'm0') in p.dst: return 1
            return 0
        for it in self.items:
            if isinstance(it, tuple):
                out.append(it); continue
            if it.mn.startswith(('s_cbranch', 's_branch')):
                n = max([worst(p) - d - 1 for (p, d) in hist] + [0])
                n = max(n, max([need(p, it) - d for (p, d) in hist] + [0]))
                pad(n)
            else:
                n = max([need(p, it) - d for (p, d) in hist] + [0])
                pad(n)
            out.append(it); advance(it)
        txt = []
        for it in out:
            if isinstance(it, tuple):
                txt.append(f'{it[1]}:' if it[0] == 'label' else ('    ' + it[1]))
            else:
                txt.append('    ' + it.text)
        return '\n'.join(txt) + '\n'

HEADER = open('cdna_kernels/' + NAME + '.s.ref').read().split('; Override launch')[0] if __import__('os').path.exists('cdna_kernels/' + NAME + '.s.ref') else ''

def wrap(body, grid, block, lds, nvgpr=512, accum=256, nsgpr=102):
    return f"""{HEADER}; @launch grid=({grid},1,1) block=({block},1,1) lds={lds}
.amdgcn_target "amdgcn-amd-amdhsa--gfx950"
.text
.globl {NAME}_kernel
.p2align 8
.type {NAME}_kernel,@function
{NAME}_kernel:
{body}    s_endpgm
.section .rodata,"a"
.p2align 6
.amdhsa_kernel {NAME}_kernel
  .amdhsa_next_free_vgpr {nvgpr}
  .amdhsa_next_free_sgpr {nsgpr}
  .amdhsa_accum_offset {accum}
  .amdhsa_group_segment_fixed_size 0
  .amdhsa_kernarg_size 112
  .amdhsa_user_sgpr_count 2
  .amdhsa_user_sgpr_kernarg_segment_ptr 1
  .amdhsa_system_sgpr_workgroup_id_x 1
.end_amdhsa_kernel
"""
```

```python
import sys, math, struct
sys.path.insert(0, 'dev')
from gasm import *

def f2u(x): return struct.unpack('<I', struct.pack('<f', x))[0]

class Cfg:
    stamps = False
    force_slow = False
    dly = dict(a=1, b=1, c=9, e=10, p=1, f=20, g=1)
    sp = dict(b=['wqb', 'wuk', 'ckv', 'wuv', 'wob'])
    warm_code = True
    cap = 12
    lim = 0x100000

sFAST = 's3'
sCU, sH, sS, sKB, sCB, sW, sIT = 's4', 's5', 's6', 's7', 's8', 's9', 's10'
sKV = 's11'
SRDK, SRDV, SRDW, SRDT = 's[12:15]', 's[16:19]', 's[20:23]', 's[24:27]'
t0, t1, t2, t3, t4, t5 = 's28', 's29', 's30', 's31', 's32', 's33'
sMU, sE2 = 's34', 's35'
MJ0, MJ01, ML0, M60 = 's[36:37]', 's[38:39]', 's[40:41]', 's[42:43]'
sC, sPLO, sPHI, sLIM, sCNT = 's44', 's45', 's46', 's47', 's48'
sSTI = 's49'
MG0 = 's[50:51]'
sL = 's52'
P = {n: 64 + 2 * i for i, n in enumerate(['x', 'k', 'v', 'wq', 'wo', 'bx', 'ckv', 'wqb', 'wuk', 'wuv', 'wob', 'out', 'dbg', 'ws'])}
SZ = dict(x=1280, k=50331648, v=50331648, wq=7864320, wo=7864320, ckv=6291456, wqb=7864320, wuk=9437184, wuv=9437184, wob=7864320, out=1280, dbg=256)

L_WO, L_WQB, L_WOB, L_WUV, L_CKV, L_SCR = 0, 30720, 61440, 92160, 129024, 153600
L_SX = L_SCR; L_OW = L_SCR; L_ML = L_SCR + 4096
L_XB = L_SCR + 8192; L_ONES = L_XB + 192; L_QB = L_ONES + 192; L_UB = L_QB + 384; L_JUNK = L_UB + 192
LDS_BYTES = 163840

MiB = 1 << 20
W_Q, W_O, W_G, W_Y, W_E, W_P, W_F = 0, 2 * MiB, 5 * MiB // 2, 3 * MiB, 7 * MiB // 2, 4 * MiB, 8 * MiB
WS_BYTES = 16 * MiB
OOB = 64 * MiB

SCALE = 192 ** -0.5 * math.log2(math.e)

class Gen:
    def __init__(self, cfg):
        self.cfg = cfg
        self.a = Asm()
        self.vm = []
        self.nstamp = 0

    def vissue(self, tag): self.vm.append(tag)
    def vwait(self, tag):
        idx = max(i for i, t in enumerate(self.vm) if t == tag)
        n = len(self.vm) - 1 - idx
        assert n <= 63
        self.a(f's_waitcnt vmcnt({n})')
        self.vm = self.vm[idx + 1:]
    def vdrain(self): self.vm = []
    def vcap(self, n):
        if len(self.vm) > n:
            self.a(f's_waitcnt vmcnt({n})')
            self.vm = self.vm[len(self.vm) - n:]

    def stamp(self, name=''):
        if not self.cfg.stamps: return
        a = self.a
        a(f"""
        s_memrealtime s[96:97]
        s_add_u32 m0, {sSTI}, {self.nstamp}
        s_waitcnt lgkmcnt(0)
        v_writelane_b32 v63, s96, m0
        """)
        self.names.append(name)
        self.nstamp += 1

    def srd(self, name, dst=24, nbytes=None):
        p = P[name]
        self.a(f"""
        s_mov_b32 s{dst}, s{p}
        s_mov_b32 s{dst+1}, s{p+1}
        s_mov_b32 s{dst+2}, {nbytes if nbytes is not None else SZ[name]}
        s_mov_b32 s{dst+3}, 0x00020000
        """)

    def it0(self):
        g = self
        class C:
            def __enter__(s):
                s.l = g.a.newlabel('Lskip')
                g.a(f's_cmp_lg_u32 {sIT}, 0\ns_cbranch_scc1 {s.l}')
            def __exit__(s, *e):
                g.a.label(s.l)
        return C()

    def store_intra(self, lines):
        a = self.a
        ls, le = a.newlabel('Lslow'), a.newlabel('Lsd')
        a(f's_cmp_eq_u32 {sFAST}, 0\ns_cbranch_scc1 {ls}')
        for l in lines: a(l.format(sc=''))
        a(f's_branch {le}')
        a.label(ls)
        for l in lines: a(l.format(sc=' sc1'))
        a.label(le)
        for l in lines:
            if l.startswith('buffer'): self.vissue('st')

    def poll(self, loads, regs, delay, tmp, mid=None):
        a = self.a
        lp, ld = a.newlabel('Lpoll'), a.newlabel('Lgot')
        if delay: a(f's_sleep {delay}')
        a(f's_mov_b32 {sCNT}, 0')
        if mid is not None:
            lw = a.newlabel('Lchk')
            for l in loads: a(l)
            mid(lw)
            a(f's_branch {lp}w')
        a.label(lp)
        for l in loads: a(l)
        a.label(lp + 'w')
        a('s_waitcnt vmcnt(0)')
        if mid is not None: a.label(lw)
        r = list(regs)
        a(f'v_max3_u32 v{tmp}, v{r[0]}, v{r[1]}, v{r[2]}' if len(r) >= 3 else f'v_max_u32 v{tmp}, v{r[0]}, v{r[1]}')
        r = r[3:]
        while r:
            if len(r) >= 2:
                a(f'v_max3_u32 v{tmp}, v{tmp}, v{r[0]}, v{r[1]}'); r = r[2:]
            else:
                a(f'v_max_u32 v{tmp}, v{tmp}, v{r[0]}'); r = r[1:]
        a(f"""
        v_cmp_eq_u32 vcc, -1, v{tmp}
        s_cbranch_vccz {ld}
        s_add_u32 {sCNT}, {sCNT}, 1
        s_cmp_lt_u32 {sCNT}, {sLIM}
        s_cbranch_scc1 {lp}
        s_mov_b32 {sLIM}, 0
        """)
        a.label(ld)
        if mid is None: self.vdrain()

    def red4(self, r):
        self.a(f"""
        v_permlane16_swap_b32 v{r}, v{r+1}
        v_permlane16_swap_b32 v{r+2}, v{r+3}
        v_add_f32 v{r}, v{r}, v{r+1}
        v_add_f32 v{r+2}, v{r+2}, v{r+3}
        v_permlane32_swap_b32 v{r}, v{r+2}
        v_add_f32 v{r}, v{r}, v{r+2}
        """)

    def allrows(self, op, r, t):
        self.a(f"""
        v_mov_b32 v{t}, v{r}
        v_permlane16_swap_b32 v{r}, v{t}
        {op} v{r}, v{r}, v{t}
        v_mov_b32 v{t}, v{r}
        v_permlane32_swap_b32 v{r}, v{t}
        {op} v{r}, v{r}, v{t}
        """)

    def dma192(self, name, lds_base, nblk, row0_expr, rstride, col_expr):
        a = self.a
        self.srd(name)
        a(row0_expr)
        a(f"""
        v_lshrrev_b32 v1, 3, v0
        v_and_b32 v2, 6, v1
        v_xor_b32 v2, v2, v0
        v_and_b32 v2, 7, v2
        v_mul_u32_u24 v1, {rstride}, v1
        v_lshl_add_u32 v1, v2, 4, v1
        """)
        n = (nblk + 3) // 4
        for i in range(n):
            if 4 * i + 3 < nblk:
                a(f's_add_u32 {t1}, {sW}, {4*i}')
            else:
                assert nblk - 4 * i == 2
                a(f's_and_b32 {t1}, {sW}, 1\ns_add_u32 {t1}, {t1}, {4*i}')
            a(f"""
            s_lshl_b32 {t2}, {t1}, 10
            s_add_u32 m0, {t2}, {lds_base}
            s_mul_i32 {t2}, {t1}, 43
            s_lshr_b32 {t2}, {t2}, 7
            s_mul_i32 {t3}, {t2}, {8*rstride - 3*128}
            s_lshl_b32 {t1}, {t1}, 7
            s_add_u32 {t3}, {t3}, {t1}
            s_add_u32 {t3}, {t3}, {t0}
            buffer_load_dwordx4 v1, {SRDT}, {t3} offen nt lds
            """)
            self.vissue(name)

    def dma_wo(self, name, lds_base):
        a = self.a
        self.srd(name)
        a(f"""
        v_mul_u32_u24 v1, 205, v0
        v_lshrrev_b32 v1, 11, v1
        v_mul_u32_u24 v2, 1120, v1
        v_lshl_add_u32 v1, v0, 4, v2
        s_mul_i32 {t0}, {sH}, {192*1280}
        s_mul_i32 {t1}, {sS}, 160
        s_add_u32 {t0}, {t0}, {t1}
        s_mul_i32 {t1}, {sW}, {48*1280}
        s_add_u32 {t0}, {t0}, {t1}
        s_mul_i32 {t1}, {sW}, {48*160}
        s_add_u32 {t1}, {t1}, {lds_base}
        s_mov_b64 exec, {M60}
        """)
        for i in range(8):
            a(f"""
            s_add_u32 m0, {t1}, {i*960}
            s_add_u32 {t2}, {t0}, {i*6*1280}
            buffer_load_dwordx4 v1, {SRDT}, {t2} offen nt lds
            """)
            self.vissue(name)
        a('s_mov_b64 exec, -1')

    UKA = [192 + 4 * u for u in range(6)]
    def ukb(self, u): return f'a[{216+4*u}:{219+4*u}]' if u < 5 else 'v[56:59]'

    def load_group(self, name):
        a = self.a
        if name == 'wqb':
            self.dma192('wqb', L_WQB, 30, f's_mul_i32 {t0}, {sS}, {80*12288}\ns_mul_i32 {t1}, {sH}, 384\ns_add_u32 {t0}, {t0}, {t1}', 12288, None)
        elif name == 'wuv':
            self.dma192('wuv', L_WUV, 36, f's_mul_i32 {t0}, {sS}, {96*12288}\ns_mul_i32 {t1}, {sH}, 384\ns_add_u32 {t0}, {t0}, {t1}', 12288, None)
        elif name == 'ckv':
            self.dma192('ckv', L_CKV, 24, f's_mul_i32 {t0}, {sKB}, {64*1536}\ns_mul_i32 {t1}, {sCB}, 384\ns_add_u32 {t0}, {t0}, {t1}', 1536, None)
        elif name == 'wo': self.dma_wo('wo', L_WO)
        elif name == 'wob': self.dma_wo('wob', L_WOB)
        elif name == 'wuk':
            self.srd('wuk')
            a(f"""
            v_and_b32 v1, 15, v0
            v_lshrrev_b32 v2, 4, v0
            v_mul_u32_u24 v1, 12288, v1
            v_lshl_add_u32 v1, v2, 4, v1
            s_lshl_b32 {t1}, {sW}, 1
            s_min_u32 {t1}, {t1}, 5
            s_mul_i32 {t0}, {sS}, 6
            s_add_u32 {t0}, {t0}, {t1}
            s_mul_i32 {t0}, {t0}, {16*12288}
            s_mul_i32 {t1}, {sH}, 384
            s_add_u32 {t0}, {t0}, {t1}
            """)
            for u in range(6):
                a(f'buffer_load_dwordx4 a[{self.UKA[u]}:{self.UKA[u]+3}], v1, {SRDT}, {t0} offen offset:{64*u} nt')
                self.vissue('wuk')
            l = a.newlabel('Luk')
            a(f's_cmp_ge_u32 {sW}, 2\ns_cbranch_scc1 {l}\ns_add_u32 {t0}, {t0}, {16*12288}')
            for u in range(6):
                a(f'buffer_load_dwordx4 {self.ukb(u)}, v1, {SRDT}, {t0} offen offset:{64*u} nt')
            a.label(l)
        elif name in ('clrP', 'clrF'):
            self.clear_big(name)
        else:
            raise ValueError(name)

    def stream_point(self, key):
        names = self.cfg.sp.get(key, [])
        if not names: return
        with self.it0():
            for n in names: self.load_group(n)

    def clear_big(self, name, both=True):
        a = self.a
        a(f"""
        v_lshlrev_b32 v1, 4, v0
        v_mov_b32 v4, -1
        v_mov_b32 v5, -1
        v_mov_b32 v6, -1
        v_mov_b32 v7, -1
        """)
        for it in range(2):
            if name == 'clrP':
                a(f's_lshl_b32 {t0}, {sCU}, 13\ns_lshl_b32 {t1}, {sW}, 11\ns_add_u32 {t0}, {t0}, {t1}\ns_add_u32 {t0}, {t0}, {W_P + it*2*MiB}')
                for i in range(2):
                    a(f'buffer_store_dwordx4 v[4:7], v1, {SRDW}, {t0} offen offset:{i*1024} sc1'); self.vissue('clr')
            else:
                a(f's_lshl_b32 {t0}, {sCU}, 14\ns_lshl_b32 {t1}, {sW}, 12\ns_add_u32 {t0}, {t0}, {t1}\ns_add_u32 {t0}, {t0}, {W_F + it*4*MiB}')
                for i in range(4):
                    a(f'buffer_store_dwordx4 v[4:7], v1, {SRDW}, {t0} offen offset:{i*1024} sc1'); self.vissue('clr')

    def kload(self, i):
        n, t = divmod(i, 6)
        off = n * 6144 + t * 64
        self.a(f's_add_u32 {t5}, {sKV}, {off - off % 4096}\nbuffer_load_dwordx4 a[{4*i}:{4*i+3}], v52, {SRDK}, {t5} offen offset:{off % 4096} nt')
        self.vissue('K')
    def vbase(self, kg, st): return 64 + 48 * kg + (0 if st == 'A' else 32)
    def vload(self, kg, st, e):
        off = kg * 12288 + (e >> 2) * 6144 + (e & 3) * 384
        b = self.vbase(kg, st)
        if st == 'A':
            self.a(f's_add_u32 {t5}, {sKV}, {off - off % 4096}\nbuffer_load_dwordx4 v[{b+4*e}:{b+4*e+3}], v53, {SRDV}, {t5} offen offset:{off % 4096} nt')
        else:
            self.a(f's_add_u32 {t5}, {sKV}, {off - off % 4096}\nbuffer_load_dwordx2 v[{b+2*e}:{b+2*e+1}], v54, {SRDV}, {t5} offen offset:{off % 4096} nt')
        self.vissue(f'V{kg}{st}')
    def kv_addr(self):
        self.a(f"""
        v_and_b32 v1, 15, v0
        v_lshrrev_b32 v2, 4, v0
        v_mul_u32_u24 v52, 384, v1
        v_lshl_add_u32 v52, v2, 4, v52
        v_mul_u32_u24 v2, 1536, v2
        v_lshl_add_u32 v53, v1, 4, v2
        v_lshl_add_u32 v54, v1, 3, v2
        v_add_u32 v54, 256, v54
        """)
    def vperm(self, kg, st, T0=60, T1=61):
        a = self.a
        b = self.vbase(kg, st)
        if st == 'A':
            X = lambda kp, c: b + 8 * kp + c
            Y = lambda kp, c: b + 8 * kp + 4 + c
            for c in range(4):
                a(f"""
                v_perm_b32 v{T0}, v{Y(c,c)}, v{X(c,c)}, {sPLO}
                v_perm_b32 v{Y(c,c)}, v{Y(c,c)}, v{X(c,c)}, {sPHI}
                v_mov_b32 v{X(c,c)}, v{T0}
                """)
            for p in range(4):
                for q in range(p + 1, 4):
                    a(f"""
                    v_perm_b32 v{T0}, v{Y(p,q)}, v{X(p,q)}, {sPLO}
                    v_perm_b32 v{T1}, v{Y(p,q)}, v{X(p,q)}, {sPHI}
                    v_perm_b32 v{X(p,q)}, v{Y(q,p)}, v{X(q,p)}, {sPLO}
                    v_perm_b32 v{Y(p,q)}, v{Y(q,p)}, v{X(q,p)}, {sPHI}
                    v_mov_b32 v{X(q,p)}, v{T0}
                    v_mov_b32 v{Y(q,p)}, v{T1}
                    """)
        else:
            for kp in range(4):
                for c in range(2):
                    x = b + 4 * kp + c; y = x + 2
                    a(f"""
                    v_perm_b32 v{T0}, v{y}, v{x}, {sPLO}
                    v_perm_b32 v{y}, v{y}, v{x}, {sPHI}
                    v_mov_b32 v{x}, v{T0}
                    """)
            for p in range(4):
                for q in range(p + 1, 4):
                    a(f'v_swap_b32 v{b+4*p+q}, v{b+4*q+p}')

    def tr192_addr(self, dst, tmp, pairmode=False):
        a = self.a
        if not pairmode:
            a(f"""
            v_bfe_u32 v{dst}, v0, 2, 3
            v_and_b32 v{tmp}, 6, v{dst}
            v_lshlrev_b32 v{dst}, 7, v{dst}
            v_lshl_add_u32 v{dst}, v{tmp}, 4, v{dst}
            v_and_b32 v{tmp}, 3, v0
            v_lshl_add_u32 v{dst}, v{tmp}, 3, v{dst}
            v_lshrrev_b32 v{tmp}, 5, v0
            v_mul_u32_u24 v{tmp}, 3072, v{tmp}
            v_add_u32 v{dst}, v{dst}, v{tmp}
            """)
        else:
            a(f"""
            v_bfe_u32 v{dst}, v0, 2, 3
            v_and_b32 v{tmp}, 6, v{dst}
            v_lshlrev_b32 v{dst}, 7, v{dst}
            v_lshl_add_u32 v{dst}, v{tmp}, 4, v{dst}
            v_and_b32 v{tmp}, 3, v0
            v_lshlrev_b32 v{tmp}, 4, v{tmp}
            v_xor_b32 v{dst}, v{dst}, v{tmp}
            v_lshrrev_b32 v{tmp}, 5, v0
            v_mul_u32_u24 v{tmp}, 3072, v{tmp}
            v_add_u32 v{dst}, v{dst}, v{tmp}
            """)

    def tile_addr(self, dst, base, stile, lds_base):
        self.a(f"""
        s_and_b32 {t2}, {stile}, 3
        s_lshl_b32 {t2}, {t2}, 5
        s_lshr_b32 {t3}, {stile}, 2
        s_lshl_b32 {t3}, {t3}, 10
        s_add_u32 {t3}, {t3}, {lds_base}
        v_xor_b32 v{dst}, {t2}, v{base}
        v_add_u32 v{dst}, {t3}, v{dst}
        """)

    WQS = [246, 236, 226, 216]

    def xop_addr(self, dst, tmp, buf):
        self.a(f"""
        v_and_b32 v{tmp}, 15, v0
        v_cmp_eq_u32 vcc, 1, v{tmp}
        v_mov_b32 v{dst}, {buf}
        v_mov_b32 v{tmp}, {L_ONES}
        v_cndmask_b32 v{dst}, v{dst}, v{tmp}, vcc
        v_lshrrev_b32 v{tmp}, 4, v0
        v_lshl_add_u32 v{dst}, v{tmp}, 3, v{dst}
        """)

    def pub192_addr(self, dst, tmp):
        self.a(f"""
        v_and_b32 v{tmp}, 15, v0
        v_lshlrev_b32 v{tmp}, 10, v{tmp}
        v_lshrrev_b32 v{dst}, 4, v0
        v_lshl_add_u32 v{dst}, v{dst}, 4, v{tmp}
        """)

    def stage_q_pre(self, which):
        a = self.a
        self.xop_addr(1, 3, L_XB)
        self.pub192_addr(2, 3)
        a('v_mov_b32 v10, 0\nv_mov_b32 v11, 0')
        if which == 'wqb':
            self.tr192_addr(42, 3)
            for k in range(3):
                a(f's_mul_i32 {t1}, {sW}, 3\ns_add_u32 {t1}, {t1}, {k}')
                self.tile_addr(43, 42, t1, L_WQB)
                b = 12 + 10 * k
                a(f"""
                ds_read_b64_tr_b16 v[{b+2}:{b+3}], v43
                ds_read_b64_tr_b16 v[{b+4}:{b+5}], v43 offset:{2*3072}
                ds_read_b64_tr_b16 v[{b+6}:{b+7}], v43 offset:{4*3072}
                ds_read_b64_tr_b16 v[{b+8}:{b+9}], v43 offset:{6*3072}
                ds_read_b64_tr_b16 v[{b}:{b+1}], v43 offset:{8*3072}
                """)

    def stage_q(self, which):
        a = self.a
        a(f"""
        ds_read2_b64 v[44:47], v1 offset0:0 offset1:4
        ds_read2_b64 v[4:7], v1 offset0:8 offset1:12
        ds_read_b64 v[8:9], v1 offset:128
        s_lshl_b32 {t0}, {sL}, 19
        s_lshl_b32 {t1}, {sCU}, 11
        s_add_u32 {t0}, {t0}, {t1}
        """)
        X = ['v[44:47]', 'v[4:7]', 'v[8:11]']
        if which == 'wq':
            nt = 4
            W = lambda k, u: (f'a[{self.WQS[k]+2}:{self.WQS[k]+5}]', f'a[{self.WQS[k]+6}:{self.WQS[k]+9}]', f'a[{self.WQS[k]}:{self.WQS[k]+3}]')[u]
            D = [12, 16, 20, 24]; DS = 28
            a(f"""
            s_lshl_b32 {t1}, {sW}, 7
            s_lshl_b32 {t2}, {sW}, 8
            s_sub_u32 {t2}, {t2}, 256
            s_cmp_lt_u32 {sW}, 2
            s_cselect_b32 {t1}, {t1}, {t2}
            s_add_u32 {t1}, {t1}, {t0}
            """)
            a(f"""
            s_cmp_lt_u32 {sW}, 2
            s_cselect_b32 {t2}, {OOB}, {t1}
            """)
            soff = [t1, t1, t2, t2]
        else:
            nt = 3
            W = lambda k, u: (f'v[{12+10*k+2}:{12+10*k+5}]', f'v[{12+10*k+6}:{12+10*k+9}]', f'v[{12+10*k}:{12+10*k+3}]')[u]
            D = [48, 52, 60]; DS = None
            a(f's_mul_i32 {t1}, {sW}, 192\ns_add_u32 {t1}, {t1}, {t0}')
            soff = [t1, t1, t1]
        if which == 'wqb' and self.cfg.stamps:
            D = [48, 52, 12]
        a('s_waitcnt lgkmcnt(0)')
        if which == 'wq':
            for u in range(3):
                for k in range(nt):
                    a(f'v_mfma_f32_16x16x32_bf16 v[{D[k]}:{D[k]+3}], {W(k,u)}, {X[u]}, ' + ('0' if u == 0 else f'v[{D[k]}:{D[k]+3}]'))
                a(f'v_mfma_f32_16x16x32_bf16 v[{DS}:{DS+3}], {X[u]}, {X[u]}, ' + ('0' if u == 0 else f'v[{DS}:{DS+3}]'))
        else:
            D = [48, 52, 12]; DS = 16
            for k in range(nt):
                for u in range(3):
                    a(f'v_mfma_f32_16x16x32_bf16 v[{D[k]}:{D[k]+3}], {W(k,u)}, {X[u]}, ' + ('0' if u == 0 else f'v[{D[k]}:{D[k]+3}]'))
            for u in range(3):
                a(f'v_mfma_f32_16x16x32_bf16 v[{DS}:{DS+3}], {X[u]}, {X[u]}, ' + ('0' if u == 0 else f'v[{DS}:{DS+3}]'))
        a(f"""
        s_getreg_b32 {t3}, hwreg(HW_REG_XCC_ID, 0, 4)
        s_mul_i32 {t4}, {t3}, {t3}
        v_cvt_f32_u32 v{DS+2}, {t3}
        v_cvt_f32_u32 v{DS+3}, {t4}
        s_cmp_eq_u32 {sW}, 0
        s_cselect_b32 {t0}, {t0}, {OOB}
        """)
        lines = [f's_mov_b64 exec, {MJ01}']
        for k in range(nt):
            lines.append(f'buffer_store_dwordx4 v[{D[k]}:{D[k]+3}], v2, {SRDW}, {soff[k]} offen offset:{64*k}{{sc}}')
        lines.append(f's_mov_b64 exec, {ML0}')
        lines.append(f'buffer_store_dwordx4 v[{DS}:{DS+3}], v2, {SRDW}, {t0} offen offset:768{{sc}}')
        lines.append('s_mov_b64 exec, -1')
        self.store_intra(lines)

    def g8_addr(self, dst, tmp, tmp2, stride_log2):
        self.a(f"""
        v_and_b32 v{tmp}, 15, v0
        v_lshrrev_b32 v{tmp2}, 4, v0
        s_mul_i32 {t2}, {sW}, 192
        v_lshl_add_u32 v{dst}, v{tmp}, 4, {t2}
        v_cmp_gt_u32 vcc, 12, v{tmp}
        v_lshrrev_b32 v{dst+1}, 1, v{dst}
        v_lshl_add_u32 v{dst+1}, v{tmp2}, 1, v{dst+1}
        v_add_u32 v{dst+1}, {L_QB}, v{dst+1}
        v_mov_b32 v{tmp}, 768
        v_cndmask_b32 v{dst}, v{tmp}, v{dst}, vcc
        v_mov_b32 v{tmp}, {L_JUNK}
        v_cndmask_b32 v{dst+1}, v{tmp}, v{dst+1}, vcc
        v_lshl_add_u32 v{dst}, v{tmp2}, {stride_log2}, v{dst}
        """)

    def gather_a(self, first_layer_mid=None):
        a = self.a
        self.g8_addr(1, 3, 4, 11)
        a(f"""
        s_lshl_b32 {t0}, {sL}, 19
        s_lshl_b32 {t1}, {sH}, 14
        s_add_u32 {t0}, {t0}, {t1}
        s_add_u32 {t2}, {t0}, 8192
        s_and_b32 {t3}, {sL}, 1
        s_lshl_b32 {t3}, {t3}, 19
        s_add_u32 {t3}, {t3}, {t1}
        s_add_u32 {t4}, {t3}, 8192
        v_and_b32 v3, 0x7ff, v1
        v_cmp_eq_u32 vcc, 768, v3
        v_subrev_u32 v20, 16, v1
        v_cndmask_b32 v20, v1, v20, vcc
        """)
        loads = [f'buffer_load_dwordx4 v[4:7], v1, {SRDW}, {t0} offen sc1',
                 f'buffer_load_dwordx4 v[8:11], v1, {SRDW}, {t2} offen sc1',
                 f'buffer_load_dwordx4 v[12:15], v20, {SRDW}, {t3} offen offset:1024 sc1',
                 f'buffer_load_dwordx4 v[16:19], v20, {SRDW}, {t4} offen offset:1024 sc1']
        self.poll(loads, range(4, 20), self.cfg.dly['a'], 3, mid=first_layer_mid)
        for i in range(4): a(f'v_add_f32 v{4+i}, v{4+i}, v{8+i}')
        for i in range(4): a(f'v_add_f32 v{12+i}, v{12+i}, v{16+i}')
        a(f"""
        v_permlane16_swap_b32 v4, v5
        v_permlane16_swap_b32 v6, v7
        v_permlane16_swap_b32 v12, v13
        v_permlane16_swap_b32 v14, v15
        v_add_f32 v4, v4, v5
        v_add_f32 v6, v6, v7
        v_add_f32 v12, v12, v13
        v_add_f32 v14, v14, v15
        v_permlane32_swap_b32 v4, v6
        v_permlane32_swap_b32 v12, v14
        v_add_f32 v4, v4, v6
        v_add_f32 v12, v12, v14
        v_mul_f32 v5, {f2u(1.0/640.0)}, v4
        v_readlane_b32 {sE2}, v5, 12
        v_readlane_b32 {sMU}, v5, 28
        v_mov_b32 v6, {sE2}
        v_fma_f32 v6, -{sMU}, {sMU}, v6
        v_fma_f32 v7, -{sMU}, v12, v4
        v_max_f32 v6, 0, v6
        v_add_f32 v6, {f2u(1e-5)}, v6
        v_rsq_f32 v6, v6
        v_mul_f32 v7, v7, v6
        v_cvt_pk_bf16_f32 v7, v7, v7
        ds_write_b16 v2, v7
        """)

    def decide_fast(self):
        a = self.a
        a(f"""
        v_cvt_u32_f32 v5, v4
        s_getreg_b32 {t3}, hwreg(HW_REG_XCC_ID, 0, 4)
        v_readlane_b32 {t0}, v5, 44
        v_readlane_b32 {t1}, v5, 60
        s_mul_i32 {t4}, {t3}, {t3}
        s_lshl_b32 {t3}, {t3}, 3
        s_lshl_b32 {t4}, {t4}, 3
        s_xor_b32 {t0}, {t0}, {t3}
        s_xor_b32 {t1}, {t1}, {t4}
        s_or_b32 {t0}, {t0}, {t1}
        s_cmp_eq_u32 {t0}, 0
        s_cselect_b32 {sFAST}, {0 if self.cfg.force_slow else 1}, 0
        """)

    def att_qk(self):
        a = self.a
        a(f"""
        v_lshrrev_b32 v3, 4, v0
        v_lshlrev_b32 v3, 4, v3
        v_add_u32 v3, {L_QB}, v3
        s_waitcnt lgkmcnt(0)
        s_barrier
        ds_read_b128 v[40:43], v3
        ds_read_b128 v[44:47], v3 offset:64
        """)
        for t in range(6):
            q = 40 + 4 * (t & 1)
            a(f's_waitcnt lgkmcnt({1 if t < 5 else 0})')
            for n in range(8):
                i = n * 6 + t
                a(f'v_mfma_f32_16x16x32_bf16 v[{8+4*n}:{11+4*n}], a[{4*i}:{4*i+3}], v[{q}:{q+3}], ' + ('0' if t == 0 else f'v[{8+4*n}:{11+4*n}]'))
            if t + 2 < 6:
                a(f'ds_read_b128 v[{q}:{q+3}], v3 offset:{64*(t+2)}')
        a('v_max3_f32 v1, v8, v9, v10')
        for k in range(11, 39, 2):
            a(f'v_max3_f32 v1, v1, v{k}, v{k+1}')
        a('v_max_f32 v1, v1, v39')
        self.allrows('v_max_f32', 1, 3)
        a(f'v_mul_f32 v1, {sC}, v1')

    def att_exp(self, kg):
        a = self.a
        b = 8 + 8 * kg
        for k in range(8): a(f'v_fma_f32 v{b+k}, v{b+k}, {sC}, -v1')
        for k in range(8): a(f'v_exp_f32 v{b+k}, v{b+k}')
        if kg == 0: a(f'v_add_f32 v2, v{b}, v{b+1}')
        else: a(f'v_add_f32 v2, v2, v{b}\nv_add_f32 v2, v2, v{b+1}')
        for k in range(2, 8): a(f'v_add_f32 v2, v2, v{b+k}')
        for k in range(4): a(f'v_cvt_pk_bf16_f32 v{b+k}, v{b+2*k}, v{b+2*k+1}')

    def att_pv(self):
        a = self.a
        a(f"""
        s_mul_i32 {t0}, {sW}, 960
        s_add_u32 {t0}, {t0}, {L_OW}
        v_lshrrev_b32 v3, 4, v0
        v_lshl_add_u32 v3, v3, 4, {t0}
        """)
        accs = [[40, 44, 48, 52], [12, 20, 28, 36], [40, 44, 48, 52]]
        for grp in range(3):
            for kg in range(4):
                for c in range(4):
                    if grp < 2: A_ = self.vbase(kg, 'A') + 4 * (4 * grp + c)
                    else: A_ = self.vbase(kg, 'B') + 4 * c
                    d = accs[grp][c]
                    a(f'v_mfma_f32_16x16x32_bf16 v[{d}:{d+3}], v[{A_}:{A_+3}], v[{8+8*kg}:{11+8*kg}], ' + ('0' if kg == 0 else f'v[{d}:{d+3}]'))
                if grp >= 1 and kg == 2:
                    if grp == 1:
                        a(f's_mov_b64 exec, {MJ0}')
                        for c in range(4): a(f'ds_write_b128 v3, v[{accs[0][c]}:{accs[0][c]+3}] offset:{80*c}')
                        a('s_mov_b64 exec, -1')
                    else:
                        a(f's_mov_b64 exec, {MJ0}')
                        for c in range(4): a(f'ds_write_b128 v3, v[{accs[1][c]}:{accs[1][c]+3}] offset:{80*(4+c)}')
                        a('s_mov_b64 exec, -1')
            if grp == 0:
                self.allrows('v_add_f32', 2, 4)
                a(f"""
                s_lshl_b32 {t0}, {sW}, 2
                s_add_u32 {t0}, {t0}, {L_ML}
                v_mov_b32 v4, {t0}
                s_mov_b64 exec, {ML0}
                ds_write_b32 v4, v1
                ds_write_b32 v4, v2 offset:16
                s_mov_b64 exec, -1
                """)
            if grp == 1:
                a('s_waitcnt lgkmcnt(0)')
        a(f"""
        s_lshl_b32 {t0}, {sW}, 6
        v_add_u32 v4, {t0}, v0
        v_and_b32 v5, 7, v4
        v_mul_u32_u24 v5, 80, v5
        v_lshrrev_b32 v6, 3, v4
        v_lshl_add_u32 v5, v6, 2, v5
        v_and_b32 v6, 1, v0
        v_bfe_u32 v7, v0, 1, 1
        v_lshl_add_u32 v6, v6, 1, v7
        v_mul_u32_u24 v6, 80, v6
        v_and_b32 v7, 60, v0
        v_add3_u32 v6, v6, v7, 64
        v_add_u32 v6, 576, v6
        v_cmp_gt_u32 vcc, 128, v4
        v_cndmask_b32 v5, v6, v5, vcc
        v_add_u32 v5, {L_OW}, v5
        v_lshlrev_b32 v4, 2, v4
        v_mov_b32 v6, {L_ML}
        s_mov_b64 exec, {MJ0}
        """)
        for c in range(4): a(f'ds_write_b128 v3, v[{accs[2][c]}:{accs[2][c]+3}] offset:{80*(8+c)}')
        a(f"""
        s_mov_b64 exec, -1
        s_lshl_b32 {t0}, {sIT}, 18
        s_lshl_b32 {t1}, {sCU}, 10
        s_add_u32 {t0}, {t0}, {t1}
        s_add_u32 {t0}, {t0}, {W_O}
        s_cmp_lt_u32 {sW}, 3
        s_cselect_b32 {t1}, {t0}, {OOB}
        s_cselect_b32 {t2}, {OOB}, {t0}
        s_waitcnt lgkmcnt(0)
        s_barrier
        ds_read_b128 v[8:11], v6
        ds_read_b128 v[12:15], v6 offset:16
        ds_read_b32 v16, v5
        ds_read_b32 v17, v5 offset:960
        ds_read_b32 v18, v5 offset:1920
        ds_read_b32 v19, v5 offset:2880
        s_waitcnt lgkmcnt(5)
        v_max3_f32 v20, v8, v9, v10
        v_max_f32 v20, v20, v11
        v_sub_f32 v8, v8, v20
        v_sub_f32 v9, v9, v20
        v_sub_f32 v10, v10, v20
        v_sub_f32 v11, v11, v20
        v_exp_f32 v8, v8
        v_exp_f32 v9, v9
        v_exp_f32 v10, v10
        v_exp_f32 v11, v11
        s_waitcnt lgkmcnt(0)
        v_mul_f32 v16, v16, v8
        v_mul_f32 v21, v12, v8
        v_fmac_f32 v16, v17, v9
        v_fmac_f32 v21, v13, v9
        v_fmac_f32 v16, v18, v10
        v_fmac_f32 v21, v14, v10
        v_fmac_f32 v16, v19, v11
        v_fmac_f32 v21, v15, v11
        v_mov_b32 v7, 0
        """)
        self.store_intra([
            f'buffer_store_dword v16, v4, {SRDW}, {t1} offen{{sc}}',
            f's_mov_b64 exec, {ML0}',
            f'buffer_store_dwordx2 v[20:21], v7, {SRDW}, {t2} offen offset:768{{sc}}',
            's_mov_b64 exec, -1'])

    def o_pre(self, lds_base):
        a = self.a
        a(f"""
        v_lshrrev_b32 v22, 2, v0
        v_mul_u32_u24 v22, 160, v22
        v_and_b32 v23, 3, v0
        v_lshl_add_u32 v22, v23, 3, v22
        s_lshl_b32 {t0}, {sW}, 5
        s_add_u32 {t0}, {t0}, {lds_base}
        v_add_u32 v22, {t0}, v22
        v_lshrrev_b32 v23, 4, v0
        v_lshlrev_b32 v21, 3, v23
        v_add_u32 v21, {L_QB}, v21
        v_lshlrev_b32 v23, 4, v23
        """)
        for u in range(6):
            for hf in range(2):
                r = 24 + 4 * u + 2 * hf
                a(f'ds_read_b64_tr_b16 v[{r}:{r+1}], v22 offset:{(32*u+16*hf)*160}')

    def gather_b(self):
        a = self.a
        self.g8_addr(1, 3, 4, 10)
        a(f"""
        v_and_b32 v3, 0x3ff, v1
        v_cmp_eq_u32 vcc, 768, v3
        v_subrev_u32 v3, 16, v1
        v_cndmask_b32 v1, v1, v3, vcc
        v_lshrrev_b32 v3, 4, v0
        v_add_u32 v3, v3, v0
        v_and_b32 v3, 7, v3
        v_lshlrev_b32 v20, 10, v3
        s_lshl_b32 {t0}, {sIT}, 18
        s_lshl_b32 {t1}, {sH}, 13
        s_add_u32 {t0}, {t0}, {t1}
        s_add_u32 {t0}, {t0}, {W_O}
        s_add_u32 {t2}, {t0}, 4096
        """)
        loads = [f'buffer_load_dwordx2 v[12:13], v20, {SRDW}, {t0} offen offset:768 sc1',
                 f'buffer_load_dwordx4 v[4:7], v1, {SRDW}, {t0} offen sc1',
                 f'buffer_load_dwordx4 v[8:11], v1, {SRDW}, {t2} offen sc1']
        self.poll(loads, range(4, 14), self.cfg.dly['b'], 3)
        D = 'row_mask:0xf bank_mask:0xf'
        a(f"""
        v_max_f32_dpp v14, v12, v12 quad_perm:[1,0,3,2] {D}
        v_max_f32_dpp v14, v14, v14 quad_perm:[2,3,0,1] {D}
        v_max_f32_dpp v14, v14, v14 row_half_mirror {D}
        v_sub_f32 v12, v12, v14
        v_exp_f32 v12, v12
        v_mul_f32 v13, v13, v12
        v_mov_b32_dpp v15, v12 row_newbcast:0 {D}
        v_mov_b32_dpp v16, v12 row_newbcast:4 {D}
        v_add_f32_dpp v13, v13, v13 quad_perm:[1,0,3,2] {D}
        v_mul_f32 v4, v4, v15
        v_mul_f32 v5, v5, v15
        v_add_f32_dpp v13, v13, v13 quad_perm:[2,3,0,1] {D}
        v_mul_f32 v6, v6, v15
        v_mul_f32 v7, v7, v15
        v_add_f32_dpp v13, v13, v13 row_half_mirror {D}
        v_fmac_f32 v4, v8, v16
        v_fmac_f32 v5, v9, v16
        v_rcp_f32 v13, v13
        v_fmac_f32 v6, v10, v16
        v_fmac_f32 v7, v11, v16
        """)
        self.red4(4)
        a(f"""
        v_mul_f32 v4, v4, v13
        v_cvt_pk_bf16_f32 v4, v4, v4
        ds_write_b16 v2, v4
        """)

    def gather_g(self):
        a = self.a
        self.g8_addr(1, 3, 4, 10)
        a(f"""
        v_and_b32 v3, 0x3ff, v1
        v_cmp_eq_u32 vcc, 768, v3
        v_subrev_u32 v3, 16, v1
        v_cndmask_b32 v1, v1, v3, vcc
        s_lshl_b32 {t0}, {sIT}, 18
        s_lshl_b32 {t1}, {sH}, 13
        s_add_u32 {t0}, {t0}, {t1}
        s_add_u32 {t0}, {t0}, {W_G}
        s_add_u32 {t2}, {t0}, 4096
        """)
        loads = [f'buffer_load_dwordx4 v[4:7], v1, {SRDW}, {t0} offen sc1',
                 f'buffer_load_dwordx4 v[8:11], v1, {SRDW}, {t2} offen sc1']
        self.poll(loads, range(4, 12), self.cfg.dly['g'], 3)
        for i in range(4): a(f'v_add_f32 v{4+i}, v{4+i}, v{8+i}')
        self.red4(4)
        a(f"""
        v_cvt_pk_bf16_f32 v4, v4, v4
        ds_write_b16 v2, v4
        """)

    def stage_o(self):
        a = self.a
        a(f"""
        s_mul_i32 {t0}, {sL}, 81920
        s_mul_i32 {t1}, {sS}, 10240
        s_add_u32 {t0}, {t0}, {t1}
        s_mul_i32 {t1}, {sH}, 320
        s_add_u32 {t0}, {t0}, {t1}
        s_add_u32 {t0}, {t0}, {W_Y}
        s_lshl_b32 {t1}, {sW}, 6
        s_add_u32 {t1}, {t1}, {t0}
        s_waitcnt lgkmcnt(0)
        s_barrier
        """)
        X = [2, 6, 10, 14, 48, 52]
        for u in range(6):
            a(f'ds_read2_b64 v[{X[u]}:{X[u]+3}], v21 offset0:{8*u} offset1:{8*u+4}')
        lskip = a.newlabel('Lo4')
        for u in range(6):
            a(f's_waitcnt lgkmcnt({5-u + 2*u})')
            a(f'v_mfma_f32_16x16x32_bf16 v[18:21], v[{24+4*u}:{27+4*u}], v[{X[u]}:{X[u]+3}], ' + ('0' if u == 0 else 'v[18:21]'))
            for hf in range(2):
                r = 24 + 4 * u + 2 * hf
                a(f'ds_read_b64_tr_b16 v[{r}:{r+1}], v22 offset:{(32*u+16*hf)*160 + 128}')
        a(f"""
        s_mov_b64 exec, {MJ0}
        buffer_store_dwordx4 v[18:21], v23, {SRDW}, {t1} offen sc1
        s_mov_b64 exec, -1
        s_cmp_lg_u32 {sW}, 0
        s_cbranch_scc1 {lskip}
        """)
        self.vissue('st')
        for u in range(6):
            a(f's_waitcnt lgkmcnt({2*(5-u)})')
            a(f'v_mfma_f32_16x16x32_bf16 v[60:63], v[{24+4*u}:{27+4*u}], v[{X[u]}:{X[u]+3}], ' + ('0' if u == 0 else 'v[60:63]')) if not self.cfg.stamps else \
            a(f'v_mfma_f32_16x16x32_bf16 v[18:21], v[{24+4*u}:{27+4*u}], v[{X[u]}:{X[u]+3}], ' + ('0' if u == 0 else 'v[18:21]'))
        dd = 'v[18:21]' if self.cfg.stamps else 'v[60:63]'
        a(f"""
        s_mov_b64 exec, {MJ0}
        buffer_store_dwordx4 {dd}, v23, {SRDW}, {t0} offen offset:256 sc1
        s_mov_b64 exec, -1
        """)
        a.label(lskip)
        a('s_waitcnt lgkmcnt(0)')

    def gather_c(self, final_ok=False):
        a = self.a
        a(f"""
        v_and_b32 v60, 7, v0
        v_min_u32 v60, 4, v60
        v_lshrrev_b32 v61, 3, v0
        v_mul_u32_u24 v61, 320, v61
        v_lshl_add_u32 v61, v60, 4, v61
        v_lshrrev_b32 v62, 4, v0
        v_lshl_add_u32 v60, v60, 2, v62
        s_mul_i32 {t2}, {sW}, 20
        v_add_u32 v60, {t2}, v60
        v_lshlrev_b32 v60, 1, v60
        v_add_u32 v62, {L_XB}, v60
        ds_read_u16 v3, v62
        s_mul_i32 {t0}, {sL}, 81920
        s_mul_i32 {t1}, {sS}, 10240
        s_add_u32 {t0}, {t0}, {t1}
        s_mul_i32 {t1}, {sW}, 80
        s_add_u32 {t0}, {t0}, {t1}
        s_add_u32 {t0}, {t0}, {W_Y}
        s_add_u32 {t1}, {t0}, 5120
        """)
        R = [44, 48, 52, 4]
        loads = [f'buffer_load_dwordx4 v[44:47], v61, {SRDW}, {t0} offen sc1',
                 f'buffer_load_dwordx4 v[48:51], v61, {SRDW}, {t0} offen offset:2560 sc1',
                 f'buffer_load_dwordx4 v[52:55], v61, {SRDW}, {t1} offen sc1',
                 f'buffer_load_dwordx4 v[4:7], v61, {SRDW}, {t1} offen offset:2560 sc1']
        self.poll(loads, list(range(44, 56)) + [4, 5, 6, 7], self.cfg.dly['c'], 8)
        for i in range(4): a(f'v_add_f32 v{44+i}, v{44+i}, v{48+i}')
        for i in range(4): a(f'v_add_f32 v{52+i}, v{52+i}, v{4+i}')
        for i in range(4): a(f'v_add_f32 v{44+i}, v{44+i}, v{52+i}')
        self.red4(44)
        a(f"""
        v_add_f32_dpp v44, v44, v44 row_ror:8 row_mask:0xf bank_mask:0xf
        s_waitcnt lgkmcnt(0)
        v_lshlrev_b32 v3, 16, v3
        v_cvt_pk_bf16_f32 v44, v44, v44
        v_lshlrev_b32 v44, 16, v44
        v_add_f32 v44, v44, v3
        v_cvt_pk_bf16_f32 v44, v44, v44
        """)

    def stage_abs(self):
        a = self.a
        a(f"""
        v_lshrrev_b32 v3, 4, v0
        v_lshlrev_b32 v1, 3, v3
        v_lshlrev_b32 v3, 4, v3
        v_add_u32 v3, {L_QB}, v3
        s_lshl_b32 {t0}, {sIT}, 16
        s_mul_i32 {t1}, {sCU}, 192
        s_add_u32 {t0}, {t0}, {t1}
        s_add_u32 {t0}, {t0}, {W_E}
        s_lshl_b32 {t1}, {sW}, 1
        s_min_u32 {t1}, {t1}, 5
        s_lshl_b32 {t1}, {t1}, 5
        s_add_u32 {t0}, {t0}, {t1}
        s_cmp_lt_u32 {sW}, 2
        s_cselect_b32 {t1}, {t0}, {OOB}
        s_waitcnt lgkmcnt(0)
        s_barrier
        """)
        for u in range(6): a(f'ds_read_b128 v[{12+4*u}:{15+4*u}], v3 offset:{64*u}')
        for u in range(6):
            a(f's_waitcnt lgkmcnt({5-u})')
            a(f'v_mfma_f32_16x16x32_bf16 v[4:7], a[{self.UKA[u]}:{self.UKA[u]+3}], v[{12+4*u}:{15+4*u}], ' + ('0' if u == 0 else 'v[4:7]'))
            a(f'v_mfma_f32_16x16x32_bf16 v[8:11], {self.ukb(u)}, v[{12+4*u}:{15+4*u}], ' + ('0' if u == 0 else 'v[8:11]'))
        a(f"""
        v_cvt_pk_bf16_f32 v4, v4, v5
        v_cvt_pk_bf16_f32 v5, v6, v7
        v_cvt_pk_bf16_f32 v8, v8, v9
        v_cvt_pk_bf16_f32 v9, v10, v11
        v_min_u32 v4, -2, v4
        v_min_u32 v5, -2, v5
        v_min_u32 v8, -2, v8
        v_min_u32 v9, -2, v9
        s_mov_b64 exec, {MJ0}
        buffer_store_dwordx2 v[4:5], v1, {SRDW}, {t0} offen sc1
        buffer_store_dwordx2 v[8:9], v1, {SRDW}, {t1} offen offset:32 sc1
        s_mov_b64 exec, -1
        """)
        self.vissue('st'); self.vissue('st')

    def stage_sc(self):
        a = self.a
        acc1 = 28 if self.cfg.stamps else 60
        a(f"""
        v_and_b32 v1, 7, v0
        v_and_b32 v3, 6, v0
        v_lshrrev_b32 v2, 4, v0
        v_xor_b32 v3, v3, v2
        v_lshlrev_b32 v1, 7, v1
        v_lshl_add_u32 v1, v3, 4, v1
        v_bfe_u32 v3, v0, 3, 1
        v_mul_u32_u24 v3, 3072, v3
        s_lshr_b32 {t0}, {sW}, 1
        s_mul_i32 {t0}, {t0}, {4*3072}
        s_add_u32 {t0}, {t0}, {L_CKV}
        v_add3_u32 v1, v1, v3, {t0}
        v_xor_b32 v3, 64, v1
        """)
        def aread(n, u, r):
            a(f'ds_read_b128 v[{r}:{r+3}], v{1 if u % 2 == 0 else 3} offset:{n*2*3072 + (u//2)*1024}')
        for u in range(6): aread(0, u, 28 + 4 * u)
        a(f"""
        v_and_b32 v52, 15, v0
        v_mul_u32_u24 v52, 1536, v52
        v_lshl_add_u32 v2, v2, 4, v52
        s_lshl_b32 {t0}, {sIT}, 16
        s_and_b32 {t1}, {sW}, 1
        s_mul_i32 {t1}, {t1}, {16*1536}
        s_add_u32 {t0}, {t0}, {t1}
        s_mul_i32 {t1}, {sCB}, 384
        s_add_u32 {t0}, {t0}, {t1}
        s_add_u32 {t0}, {t0}, {W_E}
        """)
        loads = [f'buffer_load_dwordx4 v[{4+4*u}:{7+4*u}], v2, {SRDW}, {t0} offen offset:{64*u} sc1' for u in range(6)]
        self.poll(loads, range(4, 28), self.cfg.dly['e'], 52)
        self.stamp('e got')
        self.stream_point('e')
        a(f"""
        s_lshl_b32 {t0}, {sIT}, 21
        s_lshl_b32 {t1}, {sCU}, 13
        s_add_u32 {t0}, {t0}, {t1}
        s_lshl_b32 {t1}, {sW}, 11
        s_add_u32 {t0}, {t0}, {t1}
        s_add_u32 {t0}, {t0}, {W_P}
        s_waitcnt lgkmcnt(0)
        """)
        if not self.cfg.stamps:
            for u in range(6):
                a(f'v_mfma_f32_16x16x32_bf16 v[52:55], v[{28+4*u}:{31+4*u}], v[{4+4*u}:{7+4*u}], ' + ('0' if u == 0 else 'v[52:55]'))
                aread(1, u, 28 + 4 * u)
            for u in range(6):
                a(f's_waitcnt lgkmcnt({5-u})')
                a(f'v_mfma_f32_16x16x32_bf16 v[60:63], v[{28+4*u}:{31+4*u}], v[{4+4*u}:{7+4*u}], ' + ('0' if u == 0 else 'v[60:63]'))
            a('v_lshlrev_b32 v2, 4, v0')
            a('v_mov_b64 v[48:49], v[60:61]\nv_mov_b64 v[50:51], v[62:63]')
        else:
            for u in range(6):
                a(f'v_mfma_f32_16x16x32_bf16 v[52:55], v[{28+4*u}:{31+4*u}], v[{4+4*u}:{7+4*u}], ' + ('0' if u == 0 else 'v[52:55]'))
                if u < 5: aread(1, u, 28 + 4 * u)
            for u in range(6):
                if u == 1: aread(1, 5, 28)
                a(f's_waitcnt lgkmcnt({4 if u < 2 else 5-u})')
                r = 28 + 4 * u if u < 5 else 28
                a(f'v_mfma_f32_16x16x32_bf16 v[48:51], v[{r}:{r+3}], v[{4+4*u}:{7+4*u}], ' + ('0' if u == 0 else 'v[48:51]'))
            a('v_lshlrev_b32 v2, 4, v0')
        self.store_intra([f'buffer_store_dwordx4 v[52:55], v2, {SRDW}, {t0} offen{{sc}}',
                          f'buffer_store_dwordx4 v[48:51], v2, {SRDW}, {t0} offen offset:1024{{sc}}'])

    def stage_ctx(self):
        a = self.a
        a(f"""
        s_xor_b32 {t1}, {t0}, {1<<13}
        s_xor_b32 {t2}, {t0}, {2<<13}
        s_xor_b32 {t3}, {t0}, {3<<13}
        """)
        loads = []
        for k, s_ in enumerate([t1, t2, t3]):
            loads.append(f'buffer_load_dwordx4 v[{4+8*k}:{7+8*k}], v2, {SRDW}, {s_} offen sc1')
            loads.append(f'buffer_load_dwordx4 v[{8+8*k}:{11+8*k}], v2, {SRDW}, {s_} offen offset:1024 sc1')
        self.tr192_addr(1, 3, pairmode=True)
        a(f"""
        s_lshr_b32 {t4}, {sW}, 1
        s_mul_i32 {t5}, {t4}, {4*3072}
        s_add_u32 {t5}, {t5}, {L_CKV}
        v_add_u32 v1, {t5}, v1
        """)
        for k in range(3):
            a(f"""
            s_mul_i32 {t5}, {t4}, 3
            s_add_u32 {t5}, {t5}, {k}
            s_and_b32 {sMU}, {t5}, 1
            s_lshl_b32 {sMU}, {sMU}, 6
            s_lshr_b32 {t5}, {t5}, 1
            s_lshl_b32 {t5}, {t5}, 10
            v_xor_b32 v{60+k}, {sMU}, v1
            v_add_u32 v{60+k}, {t5}, v{60+k}
            """)
        a(f"""
        s_mov_b32 {sE2}, {4*3072}
        s_cmp_eq_u32 {t4}, 0
        s_cselect_b32 {sE2}, {sE2}, {(-4*3072) & 0xffffffff}
        s_lshl_b32 {t5}, {sW}, 11
        s_add_u32 {t5}, {t5}, {L_SX}
        v_lshl_add_u32 v1, v0, 4, {t5}
        s_xor_b32 {t5}, {sW}, 2
        s_lshl_b32 {t5}, {t5}, 11
        s_add_u32 {t5}, {t5}, {L_SX}
        """)
        def cread(tile, r, base):
            k, hf = divmod(tile, 2)
            a(f'ds_read_b64_tr_b16 v[{r}:{r+1}], v{base+k} offset:{8*hf}')
            a(f'ds_read_b64_tr_b16 v[{r+2}:{r+3}], v{base+k} offset:{8*hf + 2*3072}')
        for tl in range(5): cread(tl, 28 + 4 * tl, 60)
        self.poll(loads, range(4, 28), self.cfg.dly['p'], 3)
        self.stamp('p got')
        self.stream_point('p')
        for i in range(4):
            a(f'v_add_f32 v{52+i}, v{52+i}, v{4+i}\nv_add_f32 v{48+i}, v{48+i}, v{8+i}')
            a(f'v_add_f32 v{12+i}, v{12+i}, v{20+i}\nv_add_f32 v{16+i}, v{16+i}, v{24+i}')
        for i in range(4):
            a(f'v_add_f32 v{4+i}, v{52+i}, v{12+i}\nv_add_f32 v{8+i}, v{48+i}, v{16+i}')
        a(f"""
        ds_write_b128 v1, v[4:7]
        ds_write_b128 v1, v[8:11] offset:1024
        """)
        cread(5, 48, 60)
        a(f"""
        v_max3_f32 v2, v4, v5, v6
        v_max3_f32 v2, v2, v7, v8
        v_max3_f32 v2, v2, v9, v10
        v_max_f32 v2, v2, v11
        v_add_u32 v60, {sE2}, v60
        v_add_u32 v61, {sE2}, v61
        v_add_u32 v62, {sE2}, v62
        v_lshl_add_u32 v3, v0, 4, {t5}
        s_waitcnt lgkmcnt(0)
        s_barrier
        ds_read_b128 v[12:15], v3
        ds_read_b128 v[16:19], v3 offset:1024
        s_waitcnt lgkmcnt(0)
        v_max3_f32 v2, v2, v12, v13
        v_max3_f32 v2, v2, v14, v15
        v_max3_f32 v2, v2, v16, v17
        v_max3_f32 v2, v2, v18, v19
        """)
        self.allrows('v_max_f32', 2, 1)
        a(f'v_mul_f32 v2, {sC}, v2')
        for k in range(4, 12): a(f'v_fma_f32 v{k}, v{k}, {sC}, -v2')
        for k in range(4, 12): a(f'v_exp_f32 v{k}, v{k}')
        for k in range(4): a(f'v_cvt_pk_bf16_f32 v{20+k}, v{4+2*k}, v{5+2*k}')
        A_own = [28, 32, 36, 40, 44, 48]
        acc = [52, 28, 32, 36, 40, 44]
        valu = []
        for k in range(12, 20): valu.append(f'v_fma_f32 v{k}, v{k}, {sC}, -v2')
        for k in range(12, 20): valu.append(f'v_exp_f32 v{k}, v{k}')
        valu.append('v_add_f32 v3, v4, v5')
        for k in range(6, 12): valu.append(f'v_add_f32 v3, v3, v{k}')
        for tl in range(6):
            a(f'v_mfma_f32_16x16x32_bf16 v[{acc[tl]}:{acc[tl]+3}], v[{A_own[tl]}:{A_own[tl]+3}], v[20:23], 0')
            for _ in range(4):
                if valu: a(valu.pop(0))
        while valu: a(valu.pop(0))
        cread(0, 4, 60); cread(1, 8, 60); cread(2, 48, 60)
        for k in range(4): a(f'v_cvt_pk_bf16_f32 v{24+k}, v{12+2*k}, v{13+2*k}')
        for k in range(12, 20): a(f'v_add_f32 v3, v3, v{k}')
        cread(3, 12, 60); cread(4, 16, 60); cread(5, 20, 60)
        A_oth = [4, 8, 48, 12, 16, 20]
        self.allrows('v_add_f32', 3, 1)
        a(f"""
        v_and_b32 v1, 15, v0
        v_lshlrev_b32 v1, 17, v1
        v_lshrrev_b32 v60, 4, v0
        v_lshl_add_u32 v1, v60, 4, v1
        s_and_b32 {t0}, {sW}, 1
        s_lshl_b32 {t0}, {t0}, 7
        s_lshl_b32 {t1}, {sCB}, 1
        s_add_u32 {t0}, {t0}, {t1}
        s_add_u32 {t0}, {t0}, {t4}
        s_lshl_b32 {t0}, {t0}, 14
        s_lshl_b32 {t1}, {sKB}, 8
        s_add_u32 {t0}, {t0}, {t1}
        s_lshl_b32 {t1}, {sIT}, 22
        s_add_u32 {t0}, {t0}, {t1}
        s_add_u32 {t0}, {t0}, {W_F}
        """)
        for tl in range(6):
            a(f's_waitcnt lgkmcnt({2*(5-tl)})')
            a(f'v_mfma_f32_16x16x32_bf16 v[{acc[tl]}:{acc[tl]+3}], v[{A_oth[tl]}:{A_oth[tl]+3}], v[24:27], v[{acc[tl]}:{acc[tl]+3}]')
        a(f"""
        s_mov_b64 exec, {MG0}
        buffer_store_dwordx2 v[2:3], v1, {SRDW}, {t0} offen offset:192 sc1
        s_mov_b64 exec, -1
        """)
        self.vissue('st')
        for k in range(3):
            x, y = acc[2 * k], acc[2 * k + 1]
            o = 4 + 4 * k
            a(f"""
            v_cvt_pk_bf16_f32 v{o}, v{x}, v{x+1}
            v_cvt_pk_bf16_f32 v{o+1}, v{x+2}, v{x+3}
            v_cvt_pk_bf16_f32 v{o+2}, v{y}, v{y+1}
            v_cvt_pk_bf16_f32 v{o+3}, v{y+2}, v{y+3}
            v_min_u32 v{o}, -2, v{o}
            v_min_u32 v{o+1}, -2, v{o+1}
            v_min_u32 v{o+2}, -2, v{o+2}
            v_min_u32 v{o+3}, -2, v{o+3}
            buffer_store_dwordx4 v[{o}:{o+3}], v1, {SRDW}, {t0} offen offset:{64*k} sc1
            """)
            self.vissue('st')

    def stage_uv(self):
        a = self.a
        a(f"""
        v_and_b32 v3, 3, v0
        v_min_u32 v3, 2, v3
        v_lshrrev_b32 v2, 2, v0
        v_lshlrev_b32 v2, 8, v2
        v_lshl_add_u32 v1, v3, 4, v2
        s_mul_i32 {t2}, {sW}, 48
        v_add_u32 v1, {t2}, v1
        s_lshl_b32 {t0}, {sIT}, 22
        s_lshl_b32 {t1}, {sCU}, 14
        s_add_u32 {t0}, {t0}, {t1}
        s_add_u32 {t0}, {t0}, {W_F}
        s_add_u32 {t1}, {t0}, 4096
        s_add_u32 {t4}, {t0}, 8192
        s_add_u32 {t5}, {t0}, 12288
        """)
        so = [t0, t1, t4, t5]
        loads = []
        for i in range(4):
            loads.append(f'buffer_load_dwordx2 v[{20+2*i}:{21+2*i}], v2, {SRDW}, {so[i]} offen offset:192 sc1')
        for i in range(4):
            loads.append(f'buffer_load_dwordx4 v[{4+4*i}:{7+4*i}], v1, {SRDW}, {so[i]} offen sc1')
        self.tr192_addr(55, 3)
        def wread(k, r, areg):
            for u in range(3):
                a(f'ds_read_b64_tr_b16 v[{r+4*u}:{r+4*u+1}], v{areg} offset:{(4*u)*3072}')
                a(f'ds_read_b64_tr_b16 v[{r+4*u+2}:{r+4*u+3}], v{areg} offset:{(4*u+2)*3072}')
        for k in range(3):
            a(f's_mul_i32 {sMU}, {sW}, 3\ns_add_u32 {sMU}, {sMU}, {k}')
            self.tile_addr(60 + k, 55, sMU, L_WUV)
        wread(0, 28, 60); wread(1, 40, 61)
        self.poll(loads, range(4, 28), self.cfg.dly['f'], 3)
        self.stamp('f got')
        self.stream_point('f')
        D = 'row_mask:0xf bank_mask:0xf'
        a(f"""
        v_max3_f32 v3, v20, v22, v24
        v_max_f32 v3, v3, v26
        v_max_f32_dpp v3, v3, v3 row_ror:4 {D}
        v_max_f32_dpp v3, v3, v3 row_ror:8 {D}
        """)
        self.allrows('v_max_f32', 3, 2)
        for i in range(4): a(f'v_sub_f32 v{20+2*i}, v{20+2*i}, v3')
        for i in range(4): a(f'v_exp_f32 v{20+2*i}, v{20+2*i}')
        a('v_mul_f32 v3, v20, v21')
        for i in range(1, 4): a(f'v_fmac_f32 v3, v{20+2*i}, v{21+2*i}')
        lo = [52, 53, 54, 55]; hi = [21, 23, 25, 27]
        for i in range(4):
            w = 20 + 2 * i
            for c in range(4):
                r = 4 + 4 * i + c
                a(f'v_lshlrev_b32 v2, 16, v{r}')
                a(f'v_and_b32 v{r}, 0xffff0000, v{r}')
                if i == 0:
                    a(f'v_mul_f32 v{lo[c]}, v2, v{w}\nv_mul_f32 v{hi[c]}, v{r}, v{w}')
                else:
                    a(f'v_fmac_f32 v{lo[c]}, v2, v{w}\nv_fmac_f32 v{hi[c]}, v{r}, v{w}')
            if i == 0:
                a(f'v_add_f32_dpp v3, v3, v3 row_ror:4 {D}')
            if i == 1:
                a(f'v_add_f32_dpp v3, v3, v3 row_ror:8 {D}')
            if i == 2:
                self.allrows('v_add_f32', 3, 1)
                wread(2, 4, 62)
        a(f"""
        v_rcp_f32 v3, v3
        v_permlane16_swap_b32 v52, v53
        v_permlane16_swap_b32 v54, v55
        v_permlane16_swap_b32 v21, v23
        v_permlane16_swap_b32 v25, v27
        v_add_f32 v52, v52, v53
        v_add_f32 v54, v54, v55
        v_add_f32 v21, v21, v23
        v_add_f32 v25, v25, v27
        v_permlane32_swap_b32 v52, v54
        v_permlane32_swap_b32 v21, v25
        v_add_f32 v52, v52, v54
        v_add_f32 v21, v21, v25
        v_and_b32 v1, 3, v0
        v_min_u32 v1, 2, v1
        v_add_f32_dpp v52, v52, v52 row_ror:4 {D}
        v_add_f32_dpp v21, v21, v21 row_ror:4 {D}
        v_lshrrev_b32 v2, 4, v0
        v_lshlrev_b32 v2, 2, v2
        v_add_f32_dpp v52, v52, v52 row_ror:8 {D}
        v_add_f32_dpp v21, v21, v21 row_ror:8 {D}
        v_lshl_add_u32 v1, v1, 4, v2
        s_mul_i32 {t2}, {sW}, 48
        s_add_u32 {t2}, {t2}, {L_UB}
        v_add_u32 v1, {t2}, v1
        v_mul_f32 v52, v52, v3
        v_mul_f32 v21, v21, v3
        v_cvt_pk_bf16_f32 v52, v52, v21
        ds_write_b32 v1, v52
        v_lshrrev_b32 v2, 4, v0
        v_lshlrev_b32 v1, 3, v2
        v_add_u32 v1, {L_UB}, v1
        v_lshlrev_b32 v2, 4, v2
        s_lshl_b32 {t0}, {sIT}, 18
        s_lshl_b32 {t1}, {sCU}, 10
        s_add_u32 {t0}, {t0}, {t1}
        s_mul_i32 {t1}, {sW}, 192
        s_add_u32 {t0}, {t0}, {t1}
        s_add_u32 {t0}, {t0}, {W_G}
        s_waitcnt lgkmcnt(0)
        s_barrier
        ds_read2_b64 v[16:19], v1 offset0:0 offset1:4
        ds_read2_b64 v[20:23], v1 offset0:8 offset1:12
        ds_read2_b64 v[24:27], v1 offset0:16 offset1:20
        s_waitcnt lgkmcnt(0)
        """)
        Wb = [28, 40, 4]; Dr = [52, 28, 32]
        for k in range(3):
            for u in range(3):
                a(f'v_mfma_f32_16x16x32_bf16 v[{Dr[k]}:{Dr[k]+3}], v[{Wb[k]+4*u}:{Wb[k]+4*u+3}], v[{16+4*u}:{19+4*u}], ' + ('0' if u == 0 else f'v[{Dr[k]}:{Dr[k]+3}]'))
        lines = [f's_mov_b64 exec, {MJ0}']
        for k in range(3):
            lines.append(f'buffer_store_dwordx4 v[{Dr[k]}:{Dr[k]+3}], v2, {SRDW}, {t0} offen offset:{64*k}{{sc}}')
        lines.append('s_mov_b64 exec, -1')
        self.store_intra(lines)

    def build(self):
        a = self.a; cfg = self.cfg
        self.names = []
        a(f"""
        s_cmp_ge_u32 s2, 256
        s_cbranch_scc1 L_end
        s_load_dwordx16 s[64:79], s[0:1], 0
        s_load_dwordx8 s[80:87], s[0:1], 64
        s_load_dwordx4 s[88:91], s[0:1], 96
        v_lshrrev_b32 v1, 6, v0
        v_mov_b32 v55, v0
        v_and_b32 v0, 63, v0
        v_readfirstlane_b32 {sW}, v1
        s_and_b32 {t0}, s2, 7
        s_lshl_b32 {t0}, {t0}, 5
        s_lshr_b32 {t1}, s2, 3
        s_add_u32 {sCU}, {t0}, {t1}
        s_lshr_b32 {sH}, {sCU}, 3
        s_and_b32 {sS}, {sCU}, 7
        s_lshr_b32 {sKB}, {sCU}, 2
        s_and_b32 {sCB}, {sCU}, 3
        s_mov_b32 {sIT}, 0
        s_mov_b32 {sL}, 0
        s_mov_b32 {sFAST}, 0
        s_mov_b32 {sSTI}, 0
        s_mul_i32 {sKV}, {sCU}, 196608
        s_mul_i32 {t0}, {sW}, 49152
        s_add_u32 {sKV}, {sKV}, {t0}
        s_mov_b32 s36, 0x00010001
        s_mov_b32 s37, 0x00010001
        s_mov_b32 s38, 0x00030003
        s_mov_b32 s39, 0x00030003
        s_mov_b64 {ML0}, 1
        s_mov_b32 s42, -1
        s_mov_b32 s43, 0x0fffffff
        s_mov_b32 s50, 0xffff
        s_mov_b32 s51, 0
        s_mov_b32 {sC}, {f2u(SCALE)}
        s_mov_b32 {sPLO}, 0x05040100
        s_mov_b32 {sPHI}, 0x07060302
        s_mov_b32 {sLIM}, {cfg.lim}
        """)
        if cfg.stamps: a('v_mov_b32 v63, 0')
        self.kv_addr()
        a('s_waitcnt lgkmcnt(0)')
        self.stamp('start')
        self.srd('k', 12); self.srd('v', 16); self.srd('ws', 20, WS_BYTES)
        self.dma192('wq', L_WOB, 30, f's_mul_i32 {t0}, {sS}, {80*12288}\ns_mul_i32 {t1}, {sH}, 384\ns_add_u32 {t0}, {t0}, {t1}', 12288, None)
        self.srd('x')
        a(f"""
        v_lshlrev_b32 v3, 1, v55
        s_mul_i32 {t0}, {sS}, 160
        v_min_u32 v3, 158, v3
        buffer_load_ushort v8, v3, {SRDT}, {t0} offen
        """)
        self.vissue('x')
        seq = []
        kl = list(range(48))
        for kg in range(3):
            vs = [(kg, 'B', e) for e in range(8)] + [(kg, 'A', e) for e in range(8)]
            for i in range(16):
                seq.append(('K', kl.pop(0))); seq.append(('V',) + vs[i])
        def do(item):
            if item[0] == 'K': self.kload(item[1])
            else: self.vload(*item[1:])
        N1 = 10
        for itx in seq[:N1]: do(itx)
        a(f"""
        v_mov_b32 v4, -1
        v_mov_b32 v5, -1
        v_mov_b32 v6, -1
        v_mov_b32 v7, -1
        v_lshlrev_b32 v1, 4, v0
        s_lshl_b32 {t0}, {sW}, 19
        s_lshl_b32 {t1}, {sCU}, 11
        s_add_u32 {t0}, {t0}, {t1}
        s_cmp_eq_u32 {sW}, 0
        s_cselect_b32 {t0}, {OOB}, {t0}
        buffer_store_dwordx4 v[4:7], v1, {SRDW}, {t0} offen sc1
        buffer_store_dwordx4 v[4:7], v1, {SRDW}, {t0} offen offset:1024 sc1
        s_lshl_b32 {t0}, {sW}, 18
        s_lshl_b32 {t1}, {sCU}, 10
        s_add_u32 {t0}, {t0}, {t1}
        s_add_u32 {t0}, {t0}, {W_O}
        buffer_store_dwordx4 v[4:7], v1, {SRDW}, {t0} offen sc1
        s_mul_i32 {t0}, {sW}, 81920
        s_mul_i32 {t1}, {sS}, 10240
        s_add_u32 {t0}, {t0}, {t1}
        s_mul_i32 {t1}, {sH}, 320
        s_add_u32 {t0}, {t0}, {t1}
        s_add_u32 {t0}, {t0}, {W_Y}
        s_mov_b64 exec, 0xfffff
        buffer_store_dwordx4 v[4:7], v1, {SRDW}, {t0} offen sc1
        s_and_b32 {t0}, {sW}, 1
        s_lshl_b32 {t0}, {t0}, 16
        s_mul_i32 {t1}, {sCU}, 192
        s_add_u32 {t0}, {t0}, {t1}
        s_add_u32 {t0}, {t0}, {W_E}
        s_mov_b64 exec, 0xfff
        buffer_store_dwordx4 v[4:7], v1, {SRDW}, {t0} offen sc1
        s_mov_b64 exec, -1
        """)
        for _ in range(5): self.vissue('clr')
        assert W_G == W_O + 2 * (1 << 18)
        if 'clrP' not in sum(cfg.sp.values(), []):
            self.clear_big('clrP'); self.clear_big('clrF')
        a(f"""
        v_lshlrev_b32 v1, 2, v0
        v_min_u32 v1, 188, v1
        v_mov_b32 v2, 0x3f803f80
        ds_write_b32 v1, v2 offset:0
        """.replace('ds_write_b32 v1, v2 offset:0', f'v_add_u32 v1, {L_ONES}, v1\nds_write_b32 v1, v2'))
        self.vwait('x')
        a(f"""
        v_add_u32 v3, {L_XB}, v3
        ds_write_b16 v3, v8
        s_waitcnt lgkmcnt(0)
        s_barrier
        """)
        self.tr192_addr(42, 3)
        for k in range(4):
            a(f"""
            s_lshl_b32 {t1}, {sW}, 1
            s_lshl_b32 {t4}, {sW}, 2
            s_sub_u32 {t4}, {t4}, 4
            s_cmp_lt_u32 {sW}, 2
            s_cselect_b32 {t1}, {t1}, {t4}
            s_add_u32 {t1}, {t1}, {k}
            """)
            self.tile_addr(43, 42, t1, L_WOB)
            b = self.WQS[k]
            a(f"""
            ds_read_b64_tr_b16 a[{b+2}:{b+3}], v43
            ds_read_b64_tr_b16 a[{b+4}:{b+5}], v43 offset:{2*3072}
            ds_read_b64_tr_b16 a[{b+6}:{b+7}], v43 offset:{4*3072}
            ds_read_b64_tr_b16 a[{b+8}:{b+9}], v43 offset:{6*3072}
            ds_read_b64_tr_b16 a[{b}:{b+1}], v43 offset:{8*3072}
            """)
        self.stage_q_pre('wq')
        a('s_waitcnt lgkmcnt(0)')

        a.label('L_top')
        self.stamp('top')
        self.stage_q('wq')
        self.stamp('q pub')
        with self.it0():
            N2 = N1 + 8
            for itx in seq[N1:N2]: do(itx)
            self.vwait('st')
            self.srd('dbg')
            a(f"""
            s_barrier
            v_mov_b32 v1, 1
            v_mov_b32 v2, 0
            s_cmp_lg_u32 {sW}, 0
            s_cbranch_scc1 L_noat
            s_mov_b64 exec, {ML0}
            buffer_atomic_add v1, v2, {SRDT}, 0 offen sc1
            s_mov_b64 exec, -1
            L_noat:
            """)
            if cfg.warm_code:
                a(f"""
                s_getpc_b64 s[92:93]
                L_pc:
                v_lshlrev_b32 v1, 7, v55
                v_min_u32 v1, L_end-L_pc, v1
                global_load_dword v62, v1, s[92:93]
                """)
                self.vissue('warm')
            permq = [(0, 'B'), (0, 'A'), (1, 'B'), (1, 'A'), (2, 'B')]
            for n, itx in enumerate(seq[N2:]):
                self.vcap(cfg.cap)
                while permq and all(t != f'V{permq[0][0]}{permq[0][1]}' for t in self.vm) and \
                        all(not (x[0] == 'V' and x[1:3] == permq[0]) for x in seq[N2 + n:]):
                    self.vperm(*permq.pop(0))
                do(itx)
                if N2 + n == len(seq) - 12:
                    a(f'v_mov_b32 v2, 0\nbuffer_load_dword v62, v2, {SRDT}, 0 offen sc1')
                    self.vissue('cnt')
            self.vwait('cnt')
            lp, ld = a.newlabel('Lcnt'), a.newlabel('Lcntok')
            a(f's_mov_b32 {sCNT}, 0')
            a.label(lp)
            a(f"""
            v_readfirstlane_b32 {t0}, v62
            s_cmp_ge_u32 {t0}, 256
            s_cbranch_scc1 {ld}
            s_sleep 8
            buffer_load_dword v62, v2, {SRDT}, 0 offen sc1
            s_add_u32 {sCNT}, {sCNT}, 1
            s_waitcnt vmcnt(0)
            s_cmp_lt_u32 {sCNT}, {sLIM}
            s_cbranch_scc1 {lp}
            s_mov_b32 {sLIM}, 0
            """)
            a.label(ld)
            self.permq = permq + [(2, 'A'), (3, 'B'), (3, 'A')]
        def mid(lw):
            for _ in range(4): self.vissue('ga')
            l = a.newlabel('Lmid')
            a(f's_cmp_lg_u32 {sIT}, 0\ns_cbranch_scc1 {l}')
            for st in 'BA':
                for e in range(8): self.vload(3, st, e)
            self.vwait('ga')
            a(f's_branch {lw}')
            a.label(l)
        self.gather_a(first_layer_mid=mid)
        with self.it0():
            self.decide_fast()
            self.load_group('wo')
        self.stamp("a' done")
        self.att_qk()
        for kg in range(4): self.att_exp(kg)
        self.stamp('qk done')
        with self.it0():
            for pq in self.permq:
                tag = f'V{pq[0]}{pq[1]}'
                if tag in self.vm: self.vwait(tag)
                self.vperm(*pq)
            self.vwait('wo')
        self.stamp('v ready')
        self.att_pv()
        self.stamp('b pub')
        self.stream_point('b')
        self.o_pre(L_WO)
        self.gather_b()
        self.stamp('b done')
        self.stage_o()
        self.stamp('c pub')
        self.stream_point('c')
        self.stage_q_pre('wqb')
        self.gather_c()
        a(f"""
        ds_write_b16 v62, v44
        s_add_u32 {sL}, {sL}, 1
        s_waitcnt lgkmcnt(0)
        s_barrier
        """)
        self.stamp('c done')
        self.stage_q('wqb')
        self.stamp('qb pub')
        self.stream_point('a2')
        self.gather_a()
        self.stamp("a'b done")
        self.stage_abs()
        self.stamp('e pub')
        self.stage_sc()
        self.stamp('p pub')
        self.stage_ctx()
        self.stamp('f pub')
        self.stage_uv()
        self.stamp('g pub')
        self.o_pre(L_WOB)
        self.gather_g()
        self.stamp('g done')
        self.stage_o()
        self.stamp('c2 pub')
        lfin = a.newlabel('Lcont')
        a(f"""
        s_cmp_eq_u32 {sIT}, 0
        s_cbranch_scc1 {lfin}
        s_cmp_lg_u32 {sH}, 0
        s_cbranch_scc1 L_exit
        """)
        a.label(lfin)
        self.stage_q_pre('wq')
        self.gather_c()
        a(f"""
        s_cmp_lg_u32 {sIT}, 0
        s_cbranch_scc1 L_out
        ds_write_b16 v62, v44
        s_add_u32 {sL}, {sL}, 1
        s_mov_b32 {sIT}, 1
        s_mov_b32 {sSTI}, {{NST}}
        s_waitcnt lgkmcnt(0)
        s_barrier
        s_branch L_top
        """)
        a.label('L_out')
        self.srd('out')
        a(f"""
        s_mul_i32 {t0}, {sS}, 160
        buffer_store_short v44, v60, {SRDT}, {t0} offen
        """)
        a.label('L_exit')
        if cfg.stamps:
            self.stamp('end')
            a(f"""
            s_cmp_lg_u32 {sW}, 0
            s_cbranch_scc1 L_end
            s_lshl_b32 {t0}, s2, 8
            s_add_u32 {t0}, {t0}, 0x8000000
            v_lshl_add_u32 v1, v0, 2, {t0}
            global_store_dword v1, v63, s[90:91]
            s_cmp_lg_u32 s2, 0
            s_cbranch_scc1 L_end
            v_add_u32 v1, 1, v0
            v_mul_u32_u24 v2, 43, v1
            v_lshrrev_b32 v2, 7, v2
            v_mul_u32_u24 v3, 3, v2
            v_cmp_eq_u32 vcc, v3, v1
            v_lshlrev_b32 v2, 2, v2
            v_readlane_b32 {t0}, v63, 0
            s_or_b32 vcc_lo, vcc_lo, 1
            s_and_b32 vcc_hi, vcc_hi, 0xfff
            v_subrev_u32 v63, {t0}, v63
            s_mov_b64 exec, vcc
            global_store_dword v2, v63, s[88:89] offset:4
            """)
        a.label('L_end')
        txt = a.finalize().replace('{NST}', str(self.nstamp - 2))
        return wrap(txt, 256, 256, LDS_BYTES)

if __name__ == '__main__':
    import argparse, json
    ap = argparse.ArgumentParser()
    ap.add_argument('-o', default='cdna_kernels/' + NAME + '.s')
    ap.add_argument('--stamps', action='store_true')
    ap.add_argument('--slow', action='store_true')
    ap.add_argument('--set', action='append', default=[])
    args = ap.parse_args()
    cfg = Cfg()
    cfg.stamps = args.stamps; cfg.force_slow = args.slow
    for kv in args.set:
        k, v = kv.split('=', 1)
        setattr(cfg, k, eval(v))
    g = Gen(cfg)
    txt = g.build()
    open(args.o, 'w').write(txt)
    if cfg.stamps:
        json.dump(g.names, open(args.o + '.names.json', 'w'))
    print('wrote', args.o, len(txt), 'bytes')
```

```python
import re

NAME = 'interleave_layers__gqa_block_cached__compressed_kv_cla__decode'

_REG = re.compile(r'^(-|abs\()?([vas])(\d+)\)?$')
_RNG = re.compile(r'^(-)?([vas])\[(\d+):(\d+)\]$')

def regs_of(op):
    op = op.strip()
    m = _REG.match(op)
    if m:
        return {(m.group(2), int(m.group(3)))}
    m = _RNG.match(op)
    if m:
        return {(m.group(2), i) for i in range(int(m.group(3)), int(m.group(4)) + 1)}
    if op in ('vcc', 'vcc_lo', 'vcc_hi'):
        return {('s', 'vcc')}
    if op in ('exec', 'exec_lo', 'exec_hi'):
        return {('s', 'exec')}
    if op == 'm0':
        return {('s', 'm0')}
    return set()

TRANS = ('v_exp_f32', 'v_log_f32', 'v_rcp_f32', 'v_rsq_f32', 'v_sqrt_f32', 'v_sin_f32', 'v_cos_f32')

class Ins:
    __slots__ = ('text', 'mn', 'ops', 'kind', 'dst', 'src', 'dpp', 'srcC', 'states', 'wide_store', 'lds_dma')
    def __init__(self, text):
        self.text = text
        t = text.split(';')[0].strip()
        parts = t.split(None, 1)
        self.mn = parts[0]
        rest = parts[1] if len(parts) > 1 else ''
        ops = []; cur = ''; depth = 0
        for ch in rest:
            if ch == '[': depth += 1
            if ch == ']': depth -= 1
            if ch == ',' and depth == 0:
                ops.append(cur.strip()); cur = ''
            else:
                cur += ch
        if cur.strip(): ops.append(cur.strip())
        mods = ''
        if ops:
            last = ops[-1].split(None, 1)
            ops[-1] = last[0]
            mods = last[1] if len(last) > 1 else ''
        self.ops = ops
        mn = self.mn
        self.dpp = mn.endswith('_dpp') or 'quad_perm' in mods or 'row_' in mods
        self.dst = set(); self.src = set(); self.srcC = set()
        self.states = 1
        self.wide_store = False; self.lds_dma = False
        R = [regs_of(o) for o in ops]
        if mn == 's_nop':
            self.kind = 'nop'; self.states = int(ops[0], 0) + 1
        elif mn.startswith('v_smfmac'):
            self.kind = 'mfma'; self.dst = R[0]; self.src = R[1] | R[2] | R[3]; self.srcC = R[0]
        elif mn.startswith('v_mfma'):
            self.kind = 'mfma'; self.dst = R[0]; self.src = R[1] | R[2]; self.srcC = R[3] if len(R) > 3 else set()
        elif mn.startswith('v_cmp'):
            self.kind = 'valu'; self.dst = R[0]; self.src = set().union(*R[1:])
        elif mn.startswith('v_readlane') or mn.startswith('v_readfirstlane'):
            self.kind = 'rdlane'; self.dst = R[0]; self.src = set().union(*R[1:])
        elif mn.startswith('v_permlane') or mn.startswith('v_swap'):
            self.kind = 'perml' if mn.startswith('v_permlane') else 'valu'
            self.dst = R[0] | R[1]; self.src = R[0] | R[1]
        elif mn.startswith('v_'):
            self.kind = 'trans' if mn.replace('_e32', '').replace('_e64', '') in TRANS else 'valu'
            self.dst = R[0]; self.src = set().union(*R[1:]) if len(R) > 1 else set()
            if mn.startswith(('v_fmac', 'v_dot2c', 'v_writelane')) or self.dpp:
                self.src |= R[0]
            if mn.startswith('v_cndmask') and len(ops) == 3:
                self.src |= {('s', 'vcc')}
        elif mn.startswith('ds_read') or mn.startswith('ds_bpermute') or mn.startswith('ds_swizzle'):
            self.kind = 'mem'; self.dst = R[0]; self.src = set().union(*R[1:])
        elif mn.startswith('ds_'):
            self.kind = 'mem'; self.src = set().union(*R)
        elif mn.startswith(('buffer_load', 'global_load')):
            self.kind = 'vmem'
            if ' lds' in (' ' + mods) or 'load_lds' in mn:
                self.lds_dma = True; self.src = set().union(*R)
            else:
                self.dst = R[0]; self.src = set().union(*R[1:])
        elif mn.startswith(('buffer_store', 'global_store', 'buffer_atomic', 'global_atomic')):
            self.kind = 'vmem'; self.src = set().union(*R)
            if 'x4' in mn or 'x3' in mn:
                self.wide_store = True
                self.srcC = R[0] if mn.startswith('buffer') else R[1]
        elif mn.startswith('s_'):
            self.kind = 'salu'
            if mn.startswith(('s_setpc', 's_cmp', 's_cbranch', 's_branch', 's_waitcnt', 's_barrier', 's_sleep', 's_setprio', 's_endpgm', 's_bitcmp')):
                self.src = set().union(*R) if R else set()
            else:
                self.dst = R[0] if R else set(); self.src = set().union(*R[1:]) if len(R) > 1 else set()
                if 'saveexec' in mn: self.dst |= {('s', 'exec')}
        else:
            raise ValueError('unknown instr ' + text)

def isv(regs): return {r for r in regs if r[0] in 'va'}
def iss(regs): return {r for r in regs if r[0] == 's'}

def need(p, c):
    n = 0
    pv = p.kind in ('valu', 'trans', 'perml', 'rdlane')
    cv = c.kind in ('valu', 'trans', 'perml', 'rdlane')
    if pv:
        vd = isv(p.dst); sd = iss(p.dst)
        if c.kind == 'mfma' and vd & (c.src | c.srcC): n = max(n, 2)
        if cv and c.dpp and vd & c.src: n = max(n, 2)
        if c.kind == 'perml' and vd & c.src: n = max(n, 2)
        if c.kind == 'rdlane' and vd & c.src: n = max(n, 1)
        if p.kind == 'trans' and cv and vd & c.src: n = max(n, 1)
        if p.kind == 'trans' and c.kind in ('mem', 'vmem') and vd & c.src: n = max(n, 1)
        if sd:
            if cv and sd & c.src:
                n = max(n, 4 if c.mn.startswith(('v_readlane', 'v_writelane')) else 2)
            if c.kind == 'vmem' and sd & c.src: n = max(n, 5)
            if c.kind == 'salu' and sd & c.src: n = max(n, 1)
    if p.mn.startswith('v_dot'):
        if c.mn == p.mn:
            if p.dst & (c.src - c.dst): n = max(n, 3)
        elif c.kind not in ('salu', 'nop') and p.dst & (c.src | c.dst | c.srcC): n = max(n, 3)
    if p.kind == 'mfma':
        if c.kind == 'mfma':
            if p.dst & c.src: n = max(n, 8)
            if p.dst & c.srcC:
                if not (p.dst == c.srcC and p.mn == c.mn): n = max(n, 6)
            if p.dst & c.dst and not (p.dst == c.srcC and p.mn == c.mn): n = max(n, 8)
        elif c.kind != 'salu' and c.kind != 'nop':
            if p.dst & (c.src | c.dst): n = max(n, 8)
        if cv and p.srcC & c.dst: n = max(n, 3)
    if p.kind == 'salu' and ('s', 'm0') in p.dst and c.lds_dma: n = max(n, 1)
    if p.kind == 'vmem' and p.wide_store and p.srcC & c.dst: n = max(n, 2)
    return n

class Asm:
    def __init__(self):
        self.items = []
        self.nl = 0
    def __call__(self, s):
        for l in s.strip('\n').split('\n'):
            l = l.strip()
            if not l: continue
            if l.startswith(';'):
                self.items.append(('comment', l)); continue
            if l.endswith(':'):
                self.items.append(('label', l[:-1])); continue
            self.items.append(Ins(l))
    def label(self, name): self.items.append(('label', name))
    def newlabel(self, p='L'):
        self.nl += 1
        return f'{p}_{self.nl}'
    def raw(self, text): self.items.append(('raw', text))
    def finalize(self):
        out = []
        hist = []
        WIN = 9
        def pad(n):
            while n > 0:
                k = min(n, 16)
                i = Ins(f's_nop {k-1}')
                out.append(i); advance(i); n -= k
        def advance(ins):
            nonlocal hist
            hist = [(p, d + ins.states) for (p, d) in hist if d + ins.states < WIN]
            if ins.kind != 'nop': hist.append((ins, 0))
        def worst(p):
            if p.kind == 'mfma': return 8
            if p.mn.startswith('v_dot'): return 3
            if p.kind in ('valu', 'trans', 'perml', 'rdlane'):
                return 5 if (iss(p.dst) - {('s', 'vcc')}) else 2
            if p.kind == 'vmem' and p.wide_store: return 2
            if p.kind == 'salu' and ('s', 'm0') in p.dst: return 1
            return 0
        labpos = {it[1]: i for i, it in enumerate(self.items) if isinstance(it, tuple) and it[0] == 'label'}
        def target_need(label):
            n = 0; dist = 1
            for t in self.items[labpos[label] + 1:]:
                if isinstance(t, tuple): continue
                if dist >= WIN: break
                if t.mn.startswith(('s_cbranch', 's_branch')):
                    n = max([n] + [worst(p) - d - dist - 1 for (p, d) in hist])
                    if t.mn.startswith('s_branch'): break
                n = max([n] + [need(p, t) - d - dist for (p, d) in hist])
                dist += t.states
            return n
        for it in self.items:
            if isinstance(it, tuple):
                out.append(it); continue
            n = max([need(p, it) - d for (p, d) in hist] + [0])
            if it.mn.startswith(('s_cbranch', 's_branch')):
                n = max(n, target_need(it.ops[0]))
            pad(n)
            out.append(it); advance(it)
            if it.mn in ('s_branch', 's_setpc_b64'): hist = []
        txt = []
        for it in out:
            if isinstance(it, tuple):
                txt.append(f'{it[1]}:' if it[0] == 'label' else ('    ' + it[1]))
            else:
                txt.append('    ' + it.text)
        return '\n'.join(txt) + '\n'

HEADER = open('cdna_kernels/' + NAME + '.s.ref').read().split('; Override launch')[0] if __import__('os').path.exists('cdna_kernels/' + NAME + '.s.ref') else ''

def wrap(body, grid, block, lds, nvgpr=512, accum=256, nsgpr=102):
    return f"""{HEADER}; @launch grid=({grid},1,1) block=({block},1,1) lds={lds}
.amdgcn_target "amdgcn-amd-amdhsa--gfx950"
.text
.globl {NAME}_kernel
.p2align 8
.type {NAME}_kernel,@function
{NAME}_kernel:
{body}    s_endpgm
.section .rodata,"a"
.p2align 6
.amdhsa_kernel {NAME}_kernel
  .amdhsa_next_free_vgpr {nvgpr}
  .amdhsa_next_free_sgpr {nsgpr}
  .amdhsa_accum_offset {accum}
  .amdhsa_group_segment_fixed_size 0
  .amdhsa_kernarg_size 112
  .amdhsa_user_sgpr_count 2
  .amdhsa_user_sgpr_kernarg_segment_ptr 1
  .amdhsa_system_sgpr_workgroup_id_x 1
.end_amdhsa_kernel
"""
```

```python
import sys, math, struct
sys.path.insert(0, 'dev')
from gasm import *

def f2u(x): return struct.unpack('<I', struct.pack('<f', x))[0]

class Cfg:
    stamps = False
    force_slow = False
    dly = dict(a=1, b=1, c=9, e=10, p=1, f=20, g=1)
    warm_code = True
    cap = 0
    capfrom = 5
    clrF = 'c'
    capw = {}
    cap3 = 32
    lim = 0x100000
    n0 = 2
    depth = 3
    c1 = 6
    c2 = 9
    c3 = 12
    fine = False
    noperm = False
    noatom = False
    vorder = 'BA'
    win = dict(b=[('wqb', 0, 30)], c=[('wuk', 0, 36), ('ckv', 0, 24)], a=[('wob', 0, 32)],
               e=[('wuv', 0, 18)], p=[('wuv', 18, 18)])

sFAST = 's3'
sCU, sH, sS, sKB, sCB, sW, sIT, sKV = 's4', 's5', 's6', 's7', 's8', 's9', 's10', 's11'
SRDK, SRDV, SRDW, SRDT = 's[12:15]', 's[16:19]', 's[20:23]', 's[24:27]'
t0, t1, t2, t3, t4, t5, t6, t7 = 's28', 's29', 's30', 's31', 's32', 's33', 's34', 's35'
M48, M16, ML0, M60, M32 = 's[36:37]', 's[38:39]', 's[40:41]', 's[42:43]', 's[50:51]'
sC, sPLO, sPHI, sLIM, sCNT, sSTI = 's44', 's45', 's46', 's47', 's48', 's49'
sL, sACC, u0, u1, u2 = 's52', 's53', 's54', 's55', 's56'
P = {n: 64 + 2 * i for i, n in enumerate(['x', 'k', 'v', 'wq', 'wo', 'bx', 'ckv', 'wqb', 'wuk', 'wuv', 'wob', 'out', 'dbg', 'ws'])}
SZ = dict(x=1280, k=50331648, v=50331648, wq=7864320, wo=7864320, ckv=6291456, wqb=7864320, wuk=9437184, wuv=9437184, wob=7864320, out=1280, dbg=256)

L_WO, L_WQB, L_WOB, L_WUV, L_CKV, L_SCR = 0, 30720, 61440, 92160, 129024, 153600
L_SX = L_SCR; L_OW = L_SCR; L_PB = L_SCR + 4096; L_ML = L_SCR + 5120
L_XS = L_SCR + 8192; L_ONES = L_XS + 192; L_ZERO = L_ONES + 160
L_QS = L_ZERO + 160; L_US = L_QS + 384; L_SCAL = L_US + 192; L_JUNK = L_SCAL + 32
LDS_BYTES = 163840
assert L_JUNK + 64 <= LDS_BYTES

MiB = 1 << 20
W_Q, W_O, W_G, W_Y, W_E, W_P, W_F = 0, 2 * MiB, 5 * MiB // 2, 3 * MiB, 7 * MiB // 2, 4 * MiB, 8 * MiB
WS_BYTES = 16 * MiB
OOB = 64 * MiB
SCALE = 192 ** -0.5 * math.log2(math.e)
DP = 'row_mask:0xf bank_mask:0xf'
vCSA, vCSB = 61, 62
sRING = 's57'
SK, SV = 44, 45

MAP_TR_SA = {5: 6, 3: 5, 1: 4, 2: 3, 4: 2, 0: 1, 6: 7, 7: 8}
MAP_TR_DN = {5: 6, 3: 5, 2: 4, 4: 3, 1: 2, 0: 1}
MAP_NAT_SA = {7: 8, 6: 7, 5: 6, 4: 5, 1: 4, 3: 3, 2: 2, 0: 1}

class Gen:
    def __init__(self, cfg):
        self.cfg = cfg
        self.a = Asm()
        self.vm = {'g': [], '3': []}
        self.nstamp = 0
        self.names = []
        self.cold = []

    def vissue(self, tag, who='g3'):
        for w in who: self.vm[w].append(tag)
    def vwait(self, tag, who='g3'):
        n = 63; found = False
        for w in who:
            idx = [i for i, t in enumerate(self.vm[w]) if t == tag]
            if idx:
                found = True
                n = min(n, len(self.vm[w]) - 1 - idx[-1])
        if not found: return
        self.a(f's_waitcnt vmcnt({n})')
        for w in who:
            self.vm[w] = self.vm[w][max(0, len(self.vm[w]) - n):] if n else []
    def vdrain(self, who='g'):
        for w in who: self.vm[w] = []
    def vcap(self, n, who='g3'):
        if max(len(self.vm[w]) for w in who) > n:
            self.a(f's_waitcnt vmcnt({n})')
            for w in who: self.vm[w] = self.vm[w][max(0, len(self.vm[w]) - n):]

    def stamp(self, name=''):
        if not self.cfg.stamps: return
        self.a(f"""
        ; stamp {self.nstamp} {name}
        s_memrealtime s[96:97]
        s_add_u32 m0, {sSTI}, {self.nstamp}
        s_waitcnt lgkmcnt(0)
        v_writelane_b32 v63, s96, m0
        """)
        self.names.append(name)
        self.nstamp += 1

    def srd(self, name, dst=24, nbytes=None):
        p = P[name]
        self.a(f"""
        s_mov_b32 s{dst}, s{p}
        s_mov_b32 s{dst+1}, s{p+1}
        s_mov_b32 s{dst+2}, {nbytes if nbytes is not None else SZ[name]}
        s_mov_b32 s{dst+3}, 0x00020000
        """)

    def cond(self, skip_if):
        g = self
        class C:
            def __enter__(s):
                s.l = g.a.newlabel('Lskip')
                g.a(f'{skip_if}\ns_cbranch_scc1 {s.l}')
            def __exit__(s, *e):
                g.a.label(s.l)
        return C()
    def it0(self): return self.cond(f's_cmp_lg_u32 {sIT}, 0')
    def w3only(self): return self.cond(f's_cmp_lg_u32 {sW}, 3')

    def split3(self, gather_fn, w3_fn):
        a = self.a
        l3, le = a.newlabel('Lw3'), a.newlabel('Lj')
        a(f's_cmp_eq_u32 {sW}, 3\ns_cbranch_scc1 {l3}')
        gather_fn()
        a(f's_branch {le}')
        a.label(l3)
        w3_fn()
        a.label(le)

    def bitperm(self, dst, src, mp, tmp, add=None):
        a = self.a
        groups = {}
        for sb, db in mp.items(): groups.setdefault(db - sb, []).append(sb)
        first = True
        for sh, bits in sorted(groups.items()):
            mask = sum(1 << b for b in bits)
            tgt = dst if first else tmp
            a(f'v_and_b32 v{tgt}, {mask}, v{src}')
            if first:
                if sh > 0: a(f'v_lshlrev_b32 v{dst}, {sh}, v{dst}')
                elif sh < 0: a(f'v_lshrrev_b32 v{dst}, {-sh}, v{dst}')
            else:
                if sh >= 0: a(f'v_lshl_or_b32 v{dst}, v{tmp}, {sh}, v{dst}')
                else: a(f'v_lshrrev_b32 v{tmp}, {-sh}, v{tmp}\nv_or_b32 v{dst}, v{tmp}, v{dst}')
            first = False
        if add is not None: a(f'v_add_u32 v{dst}, {add}, v{dst}')

    def store_intra(self, lines):
        a = self.a
        ls, le = a.newlabel('Lslow'), a.newlabel('Lsd')
        a(f's_cmp_eq_u32 {sFAST}, 0\ns_cbranch_scc1 {ls}')
        for l in lines: a(l.format(sc=''))
        a(f's_branch {le}')
        a.label(ls)
        for l in lines: a(l.format(sc=' sc1'))
        a.label(le)
        for l in lines:
            if l.startswith('buffer'): self.vissue('st')

    def tree(self, regs, tmp):
        out = []
        r = list(regs)
        out.append(f'v_max3_u32 v{tmp}, v{r[0]}, v{r[1]}, v{r[2]}'); r = r[3:]
        while r:
            if len(r) >= 2: out.append(f'v_max3_u32 v{tmp}, v{tmp}, v{r[0]}, v{r[1]}'); r = r[2:]
            else: out.append(f'v_max_u32 v{tmp}, v{tmp}, v{r[0]}'); r = r[1:]
        return out

    def exact_poll(self, loads, regs, tmp):
        a = self.a
        lp, ld = a.newlabel('Lpoll'), a.newlabel('Lgot')
        a(f's_mov_b32 {sCNT}, 0')
        a.label(lp)
        for l in loads: a(l)
        a('s_waitcnt vmcnt(0)')
        for l in self.tree(regs, tmp): a(l)
        a(f"""
        v_cmp_eq_u32 vcc, -1, v{tmp}
        s_cbranch_vccz {ld}
        s_add_u32 {sCNT}, {sCNT}, 1
        s_cmp_lt_u32 {sCNT}, {sLIM}
        s_cbranch_scc1 {lp}
        s_mov_b32 {sLIM}, 0
        """)
        a.label(ld)

    def spec_poll(self, loads, regs, tmp, delay, compute, chk, mid=None, redo=None, all_loads=None, undo=None):
        a = self.a
        lc, lok, lcold = a.newlabel('Lc'), a.newlabel('Lok'), a.newlabel('Lcold')
        a(f's_mov_b32 {sACC}, 0')
        if delay: a(f's_sleep {delay}')
        for l in loads: a(l)
        if mid is not None: mid(lc)
        a('s_waitcnt vmcnt(0)')
        a.label(lc)
        compute()
        a(f'v_cmp_u_f32 vcc, v{chk[0]}, v{chk[1]}\ns_cbranch_vccnz {lcold}')
        a.label(lok)
        def cold():
            a.label(lcold)
            a(f's_cmp_lg_u32 {sACC}, 0\ns_cbranch_scc1 {lok}\ns_waitcnt lgkmcnt(0)')
            if undo: undo()
            self.exact_poll(all_loads or loads, regs, tmp)
            if redo: redo()
            a(f's_mov_b32 {sACC}, 1\ns_branch {lc}')
        self.cold.append(cold)
        if mid is None: self.vdrain('g')

    def allrows(self, op, r, t):
        return [f'v_mov_b32 v{t}, v{r}', f'v_permlane16_swap_b32 v{r}, v{t}', f'{op} v{r}, v{r}, v{t}',
                f'v_mov_b32 v{t}, v{r}', f'v_permlane32_swap_b32 v{r}, v{t}', f'{op} v{r}, v{r}, v{t}']

    def emit(self, lines):
        for l in lines: self.a(l)

    def idx(self, dst, tmp):
        self.a(f"""
        v_and_b32 v{tmp}, 1, v0
        v_mul_u32_u24 v{tmp}, 0xaaaa, v{tmp}
        v_or_b32 v{dst}, 0x4444, v{tmp}
        """)

    def merge(self, dst, accs, lo=0):
        return [f'v_add_f32_dpp v{dst}, v{r+lo}, v{r+lo+1} quad_perm:[0,1,2,3] row_mask:{1<<g:#x} bank_mask:0xf' for g, r in enumerate(accs)]

    G192 = dict(wq=(L_WO, 12288), wqb=(L_WQB, 12288), wuv=(L_WUV, 12288), wuk=(L_WUV, 12288), ckv=(L_CKV, 1536))
    def base192(self, name, dst):
        if name in ('wq', 'wqb'): return f's_mul_i32 {dst}, {sS}, {80*12288}\ns_mul_i32 {u1}, {sH}, 384\ns_add_u32 {dst}, {dst}, {u1}'
        if name in ('wuv', 'wuk'): return f's_mul_i32 {dst}, {sS}, {96*12288}\ns_mul_i32 {u1}, {sH}, 384\ns_add_u32 {dst}, {dst}, {u1}'
        return f's_mul_i32 {dst}, {sKB}, {64*1536}\ns_mul_i32 {u1}, {sCB}, 384\ns_add_u32 {dst}, {dst}, {u1}'
    def voff192(self, dst, tmp, rstride):
        self.a(f"""
        v_lshrrev_b32 v{dst}, 3, v0
        v_and_b32 v{tmp}, 6, v{dst}
        v_xor_b32 v{tmp}, v{tmp}, v0
        v_and_b32 v{tmp}, 7, v{tmp}
        v_mul_u32_u24 v{dst}, {rstride}, v{dst}
        v_lshl_add_u32 v{dst}, v{tmp}, 4, v{dst}
        """)
    def voff_wo(self, dst, tmp):
        self.a(f"""
        v_mul_u32_u24 v{dst}, 205, v0
        v_lshrrev_b32 v{dst}, 11, v{dst}
        v_mul_u32_u24 v{tmp}, 1120, v{dst}
        v_lshl_add_u32 v{dst}, v0, 4, v{tmp}
        """)

    def dma_all_wq(self):
        a = self.a
        self.srd('wq'); a(self.base192('wq', u0)); self.voff192(1, 2, 12288)
        for i in range(8):
            a(f's_add_u32 {t1}, {sW}, {4*i}' if i < 7 else f's_and_b32 {t1}, {sW}, 1\ns_add_u32 {t1}, {t1}, 28')
            a(f"""
            s_lshl_b32 {t2}, {t1}, 10
            s_add_u32 m0, {t2}, {L_WO}
            s_mul_i32 {t2}, {t1}, 43
            s_lshr_b32 {t2}, {t2}, 7
            s_mul_i32 {t3}, {t2}, {8*12288 - 384}
            s_lshl_b32 {t1}, {t1}, 7
            s_add_u32 {t3}, {t3}, {t1}
            s_add_u32 {t3}, {t3}, {u0}
            buffer_load_dwordx4 v1, {SRDT}, {t3} offen nt lds
            """)
            self.vissue('wq')

    def dma_all_wo(self, va, vb):
        a = self.a
        self.srd('wo'); self.voff_wo(va, vb)
        a(f"""
        s_mul_i32 {u0}, {sH}, {192*1280}
        s_mul_i32 {u1}, {sS}, 160
        s_add_u32 {u0}, {u0}, {u1}
        s_mul_i32 {u1}, {sW}, {48*1280}
        s_add_u32 {u0}, {u0}, {u1}
        s_mul_i32 {u1}, {sW}, {48*160}
        s_mov_b64 exec, {M60}
        """)
        for i in range(8):
            a(f"""
            s_add_u32 m0, {u1}, {L_WO + i*960}
            s_add_u32 {u2}, {u0}, {i*6*1280}
            buffer_load_dwordx4 v{va}, {SRDT}, {u2} offen nt lds
            """)
            self.vissue('wo')
        a('s_mov_b64 exec, -1')

    def window(self, key, va, vb, cap=None):
        a = self.a
        cap = self.cfg.capw.get(key) or cap or self.cfg.cap3
        for (name, first, cnt) in self.cfg.win.get(key, []):
            self.srd(name)
            if name == 'wob':
                self.voff_wo(va, vb)
                a(f's_mul_i32 {u0}, {sH}, {192*1280}\ns_mul_i32 {u1}, {sS}, 160\ns_add_u32 {u0}, {u0}, {u1}\ns_mov_b64 exec, {M60}')
                for i in range(first, first + cnt):
                    self.vcap(cap, '3')
                    a(f's_mov_b32 m0, {L_WOB + i*960}\ns_add_u32 {u2}, {u0}, {i*6*1280}\nbuffer_load_dwordx4 v{va}, {SRDT}, {u2} offen nt lds')
                    self.vissue(name, '3')
                a('s_mov_b64 exec, -1')
            else:
                lds, rs = self.G192[name]
                a(self.base192(name, u0)); self.voff192(va, vb, rs)
                for b in range(first, first + cnt):
                    self.vcap(cap, '3')
                    a(f's_mov_b32 m0, {lds + b*1024}\ns_add_u32 {u2}, {u0}, {(b//3)*8*rs + (b%3)*128}\nbuffer_load_dwordx4 v{va}, {SRDT}, {u2} offen nt lds')
                    self.vissue(name, '3')
            assert len(self.vm['3']) <= 60

    def w3_window(self, key, va=1, vb=2):
        def f():
            if self.cfg.win.get(key):
                with self.it0(): self.window(key, va, vb)
        return f

    def wbar(self, name):
        assert not any(n == name and False for n in [])
        with self.it0():
            with self.w3only(): self.vwait(name, '3')
            self.a('s_barrier')

    SR = 46
    def kv_addr(self):
        a = self.a
        self.voff192(SV, 1, 384)
        self.bitperm(1, 0, {3: 4, 4: 2, 5: 1}, 2)
        a(f"""
        v_mul_u32_u24 v1, 384, v1
        v_and_b32 v2, 0x70, v{SV}
        v_add_u32 v{SK}, v1, v2
        s_mul_i32 {sRING}, {sW}, 30720
        s_add_u32 {sRING}, {sRING}, 30720
        """)
    def k_raddr(self):
        self.row192_addr(self.SR, self.SR + 1, 1, sRING)
    def v_raddr(self, tmp):
        self.tr192_addr(self.SR, tmp)
        self.a(f'v_add_u32 v{self.SR}, {sRING}, v{self.SR}')
        for t in range(1, 4): self.a(f'v_xor_b32 v{self.SR+t}, {32*t}, v{self.SR}')
    def kv_issue(self, U, who='g3'):
        a = self.a
        slot = U % 5
        for b in range(6):
            beta, sig = divmod(b, 3)
            if U < 8: off = (32 * (U >> 1) + 8 * beta + (U & 1)) * 384 + sig * 128
            else: off = (16 * (U - 8) + 8 * beta) * 384 + sig * 128
            if self.cfg.cap and U >= self.cfg.capfrom: self.vcap(self.cfg.cap, who)
            a(f"""
            s_add_u32 m0, {sRING}, {slot*6144 + b*1024}
            s_add_u32 {t7}, {sKV}, {off}
            buffer_load_dwordx4 v{SK if U < 8 else SV}, {SRDK if U < 8 else SRDV}, {t7} offen nt lds
            """)
            self.vissue(f'U{U}', who)
    def kv_read(self, U):
        a = self.a
        slot = U % 5
        if U < 8:
            for u in range(6):
                r = 24 * U + 4 * u
                a(f'ds_read_b128 a[{r}:{r+3}], v{self.SR + (u & 1)} offset:{slot*6144 + (u//2)*1024}')
        else:
            q = U - 8
            for t in range(12):
                r = 64 + 96 * (q >> 2) + 8 * t + 2 * (q & 3)
                a(f'ds_read_b64_tr_b16 v[{r}:{r+1}], v{self.SR + (t & 3)} offset:{slot*6144 + (t>>2)*1024}')
    def kv_step(self, s_, who='g3'):
        if who == 'g3': self.vwait_split(f'U{s_}') if self.vm['g'] != self.vm['3'] else self.vwait(f'U{s_}')
        else: self.vwait(f'U{s_}', who)
        self.a('s_waitcnt lgkmcnt(0)')
        self.kv_read(s_)
        if s_ + self.cfg.depth < 16: self.kv_issue(s_ + self.cfg.depth, who)

    def tr192_addr(self, dst, tmp, pairmode=False):
        a = self.a
        a(f"""
        v_bfe_u32 v{dst}, v0, 2, 3
        v_and_b32 v{tmp}, 6, v{dst}
        v_lshlrev_b32 v{dst}, 7, v{dst}
        v_lshl_add_u32 v{dst}, v{tmp}, 4, v{dst}
        v_and_b32 v{tmp}, 3, v0
        """)
        if not pairmode: a(f'v_lshl_add_u32 v{dst}, v{tmp}, 3, v{dst}')
        else: a(f'v_lshlrev_b32 v{tmp}, 4, v{tmp}\nv_xor_b32 v{dst}, v{dst}, v{tmp}')
        a(f"""
        v_lshrrev_b32 v{tmp}, 5, v0
        v_mul_u32_u24 v{tmp}, 3072, v{tmp}
        v_add_u32 v{dst}, v{dst}, v{tmp}
        """)
    def tile_addr(self, dst, base, stile, lds_base):
        self.a(f"""
        s_and_b32 {u1}, {stile}, 3
        s_lshl_b32 {u1}, {u1}, 5
        s_lshr_b32 {u2}, {stile}, 2
        s_lshl_b32 {u2}, {u2}, 10
        s_add_u32 {u2}, {u2}, {lds_base}
        v_xor_b32 v{dst}, {u1}, v{base}
        v_add_u32 v{dst}, {u2}, v{dst}
        """)
    def row192_addr(self, dst, dst2, tmp, sbase):
        self.a(f"""
        v_and_b32 v{dst}, 7, v0
        v_and_b32 v{dst2}, 6, v0
        v_lshrrev_b32 v{tmp}, 4, v0
        v_xor_b32 v{dst2}, v{dst2}, v{tmp}
        v_lshlrev_b32 v{dst}, 7, v{dst}
        v_lshl_add_u32 v{dst}, v{dst2}, 4, v{dst}
        v_bfe_u32 v{dst2}, v0, 3, 1
        v_mul_u32_u24 v{dst2}, 3072, v{dst2}
        v_add3_u32 v{dst}, v{dst}, v{dst2}, {sbase}
        v_xor_b32 v{dst2}, 64, v{dst}
        """)
    def sa_read_addr(self, dst, tmp, base):
        self.a(f"""
        v_and_b32 v{tmp}, 1, v0
        v_lshlrev_b32 v{tmp}, 4, v{tmp}
        v_lshrrev_b32 v{dst}, 4, v0
        v_lshl_add_u32 v{dst}, v{dst}, 5, v{tmp}
        """)
        if base is not None: self.a(f'v_add_u32 v{dst}, {base}, v{dst}')


    WQB_ = ['a[240:247]', 'a[248:255]', 'a[216:223]', 'a[224:231]']
    WQT_ = ['v[56:57]', 'v[58:59]', 'a[232:233]', 'a[234:235]']

    def q_pre(self, which):
        a = self.a
        self.sa_read_addr(1, 6, None)
        a(f"""
        v_and_b32 v6, 2, v0
        v_mul_u32_u24 v6, {(L_ONES - L_XS) // 2}, v6
        v_add_u32 v6, {L_XS}, v6
        v_add_u32 v1, v1, v6
        v_lshrrev_b32 v3, 4, v0
        v_lshl_add_u32 v2, v3, 3, v6
        v_add_u32 v2, 128, v2
        v_and_b32 v6, 1, v0
        v_cmp_eq_u32 vcc, 1, v6
        v_mov_b32 v6, {L_ZERO}
        v_lshlrev_b32 v5, 2, v0
        v_cndmask_b32 v2, v2, v6, vcc
        """)
        self.idx(4, 6)
        if which == 'wqb':
            self.tr192_addr(7, 6)
            for k in range(3):
                a(f's_mul_i32 {u0}, {sW}, 3\ns_add_u32 {u0}, {u0}, {k}')
                self.tile_addr(6, 7, u0, L_WQB)
                b = 24 + 10 * k
                for u in range(5):
                    a(f'ds_read_b64_tr_b16 v[{b+2*u}:{b+2*u+1}], v6 offset:{2*u*3072}')

    def x_lane_consts(self):
        a = self.a
        a(f"""
        s_mul_i32 {u0}, {sW}, 7
        s_add_u32 {u1}, {u0}, 6
        s_min_u32 {u1}, {u1}, 19
        v_and_b32 v60, 7, v0
        v_add_u32 v60, {u0}, v60
        v_cmp_ge_u32 s[58:59], {u1}, v60
        v_min_u32 v60, {u1}, v60
        v_lshrrev_b32 v54, 3, v0
        v_mul_u32_u24 v54, 320, v54
        v_lshl_add_u32 v54, v60, 4, v54
        v_lshrrev_b32 v55, 4, v0
        v_lshl_add_u32 v60, v60, 2, v55
        """)
        self.bitperm(55, 60, {k: v for k, v in MAP_TR_SA.items() if k < 6}, 3)
        a(f"""
        v_cmp_gt_u32 vcc, 64, v60
        v_lshlrev_b32 v60, 1, v60
        v_cndmask_b32 v55, v60, v55, vcc
        v_add_u32 v55, {L_XS}, v55
        """)

    def x_stats(self, xr, r, t):
        ops = [f'v_lshlrev_b32 v{r}, 16, v{xr}',
               f'v_cndmask_b32 v{r}, 0, v{r}, s[58:59]',
               f'v_mul_f32_dpp v{r}, v{r}, v{r} quad_perm:[0,1,2,3] row_mask:0xf bank_mask:0x3',
               f'v_add_f32_dpp v{r}, v{r}, v{r} quad_perm:[1,0,3,2] {DP}',
               f'v_add_f32_dpp v{r}, v{r}, v{r} quad_perm:[2,3,0,1] {DP}',
               f'v_add_f32_dpp v{r}, v{r}, v{r} row_half_mirror {DP}'] + self.allrows('v_add_f32', r, t)
        return ops

    def stage_q(self, which):
        a = self.a
        a(f"""
        ds_read_b64 v[10:11], v2
        ds_read_b128 v[6:9], v1
        s_lshl_b32 {t0}, {sL}, 19
        s_lshl_b32 {t1}, {sCU}, 11
        s_add_u32 {t0}, {t0}, {t1}
        s_lshl_b32 {t2}, {sW}, 2
        s_add_u32 {t2}, {t2}, {t0}
        s_cmp_eq_u32 {sW}, 3
        s_cselect_b32 {t2}, {OOB}, {t2}
        """)
        ops = self.x_stats(20, 3, 1)
        if which == 'wq':
            nt = 4; WB = self.WQB_; WT = self.WQT_
            D = [24, 28, 32, 36]
            a(f"""
            s_lshl_b32 {t1}, {sW}, 7
            s_lshl_b32 {t3}, {sW}, 8
            s_sub_u32 {t3}, {t3}, 256
            s_mov_b32 s60, -1
            s_cmp_lt_u32 {sW}, 2
            s_cselect_b32 {t1}, {t1}, {t3}
            s_cselect_b32 s61, 0, -1
            s_add_u32 {t1}, {t1}, {t0}
            """)
            mask = 's[60:61]'
        else:
            nt = 3
            WB = [f'v[{24+10*k}:{24+10*k+7}]' for k in range(3)]
            WT = [f'v[{24+10*k+8}:{24+10*k+9}]' for k in range(3)]
            D = [12, 16, 20]
            a(f's_mul_i32 {t1}, {sW}, 192\ns_add_u32 {t1}, {t1}, {t0}')
            mask = M48
        for _ in range(5): a(ops.pop(0))
        a('s_waitcnt lgkmcnt(1)')
        for k in range(nt):
            a(f'v_mfma_f32_16x16x16_bf16 v[{D[k]}:{D[k]+3}], v[10:11], {WT[k]}, 0')
            if ops: a(ops.pop(0))
            if ops: a(ops.pop(0))
        a('s_waitcnt lgkmcnt(0)')
        while ops: a(ops.pop(0))
        for k in range(nt):
            a(f'v_smfmac_f32_16x16x64_bf16 v[{D[k]}:{D[k]+3}], v[6:9], {WB[k]}, v4')
        a(f"""
        v_and_b32 v1, 8, v0
        v_lshlrev_b32 v1, 1, v1
        v_sub_u32 v1, 784, v1
        """)
        self.emit(self.merge(2, D, 0))
        lines = [f's_mov_b64 exec, {mask}',
                 f'buffer_store_dword v2, v5, {SRDW}, {t1} offen{{sc}}',
                 's_mov_b64 exec, 0x101',
                 f'buffer_store_dword v3, v1, {SRDW}, {t2} offen{{sc}}',
                 's_mov_b64 exec, -1']
        self.store_intra(lines)
        with self.it0():
            self.emit(self.merge(2, D, 2))
            self.store_intra([f's_mov_b64 exec, {mask}', f'buffer_store_dword v2, v5, {SRDW}, {t1} offen offset:1024{{sc}}', 's_mov_b64 exec, -1'])

    def g8_pre(self, mp, stride):
        a = self.a
        a(f's_lshl_b32 {u0}, {sW}, 6\nv_add_u32 v1, {u0}, v0')
        self.bitperm(2, 1, mp, 3, add=L_QS)
        a(f'v_lshlrev_b32 v1, 2, v1\nv_and_b32 v3, 7, v0\nv_mul_u32_u24 v3, {stride}, v3')

    def sum8(self, r):
        return [f'v_pk_add_f32 v[{r}:{r+1}], v[{r}:{r+1}], v[{r+2}:{r+3}]', f'v_pk_add_f32 v[{r+4}:{r+5}], v[{r+4}:{r+5}], v[{r+6}:{r+7}]',
                f'v_pk_add_f32 v[{r}:{r+1}], v[{r}:{r+1}], v[{r+4}:{r+5}]', f'v_add_f32 v{r}, v{r}, v{r+1}']

    def gather_a(self, cs, first=False):
        a = self.a
        self.g8_pre(MAP_NAT_SA, 2048)
        a(f"""
        s_lshl_b32 {t0}, {sL}, 19
        s_lshl_b32 {t1}, {sH}, 14
        s_add_u32 {t0}, {t0}, {t1}
        s_add_u32 {t1}, {t0}, 4096
        s_add_u32 {t2}, {t0}, 8192
        s_add_u32 {t3}, {t0}, 12288
        """)
        so = [t0, t1, t2, t3]
        loads = [f'buffer_load_dwordx3 v[12:14], v3, {SRDW}, {t0} offen offset:768 sc1',
                 f'buffer_load_dwordx3 v[16:18], v3, {SRDW}, {t0} offen offset:784 sc1']
        loads += [f'buffer_load_dword v{4+p}, v1, {SRDW}, {so[p>>1]} offen offset:{2048*(p&1)} sc1' for p in range(8)]
        cl = [f'buffer_load_dword v{20+p}, v1, {SRDW}, {so[p>>1]} offen offset:{2048*(p&1)+1024} sc1' for p in range(8)]
        def cs_done():
            self.emit(self.sum8(20)); a(f'v_mul_f32 v{cs}, {f2u(1/640.)}, v20')
        if not first:
            with self.it0():
                self.exact_poll(cl, range(20, 28), 15)
                cs_done()
        def mid(lc):
            for _ in loads: self.vissue('ga', 'g')
            l = a.newlabel('Lmid')
            a(f's_cmp_lg_u32 {sIT}, 0\ns_cbranch_scc1 {l}')
            for x in cl: a(x); self.vissue('ga', 'g')
            a(f'buffer_load_dword v28, v3, {SRDW}, {t0} offen offset:780 sc1'); self.vissue('ga', 'g')
            for s_ in range(self.cfg.c2 + 1, self.cfg.c3 + 1): self.kv_step(s_, 'g')
            self.vwait('ga', 'g')
            cs_done()
            a(f"""
            s_getreg_b32 {u0}, hwreg(HW_REG_XCC_ID, 0, 4)
            v_cmp_ne_u32 vcc, {u0}, v28
            v_mov_b32 v29, {L_SCAL}
            s_cmp_eq_u64 vcc, 0
            s_cselect_b32 {u0}, {0 if self.cfg.force_slow else 1}, 0
            v_mov_b32 v28, {u0}
            ds_write_b32 v29, v28 offset:8
            s_branch {lc}
            """)
            a.label(l)
        def compute():
            s8 = self.sum8(4)
            a(f"""
            v_add_f32 v12, v12, v13
            {s8[0]}
            v_add_f32 v12, v12, v14
            {s8[1]}
            v_add_f32 v16, v16, v17
            v_add_f32_dpp v12, v12, v12 quad_perm:[1,0,3,2] {DP}
            {s8[2]}
            v_add_f32 v16, v16, v18
            v_add_f32_dpp v12, v12, v12 quad_perm:[2,3,0,1] {DP}
            {s8[3]}
            v_add_f32_dpp v12, v12, v12 row_half_mirror {DP}
            v_fma_f32 v4, -v12, v{cs}, v4
            v_cvt_pk_bf16_f32 v5, v4, v4
            ds_write_b16 v2, v5
            """)
        self.spec_poll(loads, list(range(4, 15)) + [16, 17, 18], 15, self.cfg.dly['a'], compute, (4, 16), mid=mid if first else None)

    def rstd_ops(self):
        return [f'v_add_f32_dpp v16, v16, v16 quad_perm:[1,0,3,2] {DP}',
                f'v_mul_f32 v12, {f2u(1/640.)}, v12',
                f'v_mov_b32 v13, {L_SCAL}',
                f'v_add_f32_dpp v16, v16, v16 quad_perm:[2,3,0,1] {DP}',
                'v_mul_f32 v12, v12, v12',
                f's_cmp_eq_u32 {sW}, 0',
                f'v_add_f32_dpp v16, v16, v16 row_half_mirror {DP}',
                f's_cselect_b32 {u0}, 0, 32',
                f'v_mul_f32 v16, {f2u(1/640.)}, v16',
                'v_sub_f32 v16, v16, v12',
                'v_max_f32 v16, 0, v16',
                f'v_add_f32 v16, {f2u(1e-5)}, v16',
                'v_rsq_f32 v16, v16',
                f'v_add_u32 v13, {u0}, v13',
                f'v_mul_f32 v16, {sC}, v16',
                'ds_write_b32 v13, v16']

    def att_pre(self):
        self.sa_read_addr(52, 55, L_QS)
        self.idx(53, 55)

    def clr_regs(self):
        self.a('v_lshlrev_b32 v8, 4, v0\nv_mov_b32 v4, -1\nv_mov_b32 v5, -1\nv_mov_b32 v6, -1\nv_mov_b32 v7, -1')

    def intra3(self, lines):
        n = len(self.vm['g'])
        self.store_intra(lines)
        self.vm['g'] = self.vm['g'][:n]
        self.vm['3'] = [('clr' if t == 'st' and i >= len(self.vm['3']) - len(lines) else t) for i, t in enumerate(self.vm['3'])]

    def clear_small(self):
        a = self.a
        self.clr_regs()
        a(f"""
        s_add_u32 {t0}, {sL}, 1
        s_lshl_b32 {t1}, {t0}, 19
        s_lshl_b32 {t2}, {sCU}, 11
        s_add_u32 {t1}, {t1}, {t2}
        s_lshl_b32 {t2}, {sIT}, 18
        s_lshl_b32 {t3}, {sCU}, 10
        s_add_u32 {t2}, {t2}, {t3}
        s_add_u32 {t2}, {t2}, {W_G}
        s_add_u32 {t3}, {t3}, {W_O + (1<<18)}
        s_add_u32 {t4}, {t1}, {1<<19}
        s_cmp_eq_u32 {sIT}, 0
        s_cselect_b32 {t3}, {t3}, {OOB}
        s_cselect_b32 {t4}, {t4}, {OOB}
        s_cselect_b32 {t5}, {t1}, {OOB}
        """)
        self.intra3([f'buffer_store_dwordx4 v[4:7], v8, {SRDW}, {t1} offen{{sc}}',
                     f'buffer_store_dwordx4 v[4:7], v8, {SRDW}, {t5} offen offset:1024{{sc}}',
                     f'buffer_store_dwordx4 v[4:7], v8, {SRDW}, {t2} offen{{sc}}',
                     f'buffer_store_dwordx4 v[4:7], v8, {SRDW}, {t3} offen{{sc}}',
                     f'buffer_store_dwordx4 v[4:7], v8, {SRDW}, {t4} offen{{sc}}'])
        a(f"""
        s_mul_i32 {t0}, {t0}, 81920
        s_mul_i32 {t1}, {sS}, 10240
        s_add_u32 {t0}, {t0}, {t1}
        s_mul_i32 {t1}, {sH}, 320
        s_add_u32 {t0}, {t0}, {t1}
        s_add_u32 {t0}, {t0}, {W_Y}
        s_add_u32 {t2}, {t0}, 81920
        s_cmp_eq_u32 {sIT}, 0
        s_cselect_b32 {t2}, {t2}, {OOB}
        s_lshl_b32 {t1}, {sIT}, 16
        s_mul_i32 {t3}, {sCU}, 192
        s_add_u32 {t1}, {t1}, {t3}
        s_add_u32 {t1}, {t1}, {W_E}
        s_mov_b64 exec, 0xfffff
        buffer_store_dwordx4 v[4:7], v8, {SRDW}, {t0} offen sc1
        buffer_store_dwordx4 v[4:7], v8, {SRDW}, {t2} offen sc1
        s_mov_b64 exec, 0xfff
        buffer_store_dwordx4 v[4:7], v8, {SRDW}, {t1} offen sc1
        s_mov_b64 exec, -1
        """)
        for _ in range(3): self.vissue('clr', '3')

    def clear_P(self):
        a = self.a
        self.clr_regs()
        a(f"""
        s_lshl_b32 {t1}, {sCU}, 13
        s_lshl_b32 {t2}, {sIT}, 21
        s_add_u32 {t1}, {t1}, {t2}
        s_add_u32 {t1}, {t1}, {W_P}
        s_add_u32 {t2}, {t1}, 4096
        """)
        self.vcap(50, '3')
        self.intra3([f'buffer_store_dwordx4 v[4:7], v8, {SRDW}, {[t1,t2][i>>2]} offen offset:{(i&3)*1024}{{sc}}' for i in range(8)])

    def clear_F(self, r=4):
        a = self.a
        a(f"""
        v_lshlrev_b32 v{r+4}, 4, v0
        v_mov_b32 v{r}, -1
        v_mov_b32 v{r+1}, -1
        v_mov_b32 v{r+2}, -1
        v_mov_b32 v{r+3}, -1
        s_lshl_b32 {t0}, {sCU}, 14
        s_lshl_b32 {t1}, {sIT}, 22
        s_add_u32 {t0}, {t0}, {t1}
        s_add_u32 {t0}, {t0}, {W_F}
        """)
        self.vcap(44, '3')
        for i in range(16):
            a(f'buffer_store_dwordx4 v[{r}:{r+3}], v{r+4}, {SRDW}, {t0} offen offset:{(i&3)*1024} sc1'); self.vissue('clrF', '3')
            if i & 3 == 3: a(f's_add_u32 {t0}, {t0}, 4096')

    def clr_ack(self, tag='clr', n1=0):
        a = self.a
        l1, l2 = a.newlabel('Lca'), a.newlabel('Lcb')
        a(f's_cmp_lg_u32 {sIT}, 0\ns_cbranch_scc1 {l1}')
        self.vwait(tag, '3')
        a(f's_branch {l2}')
        a.label(l1); a(f's_waitcnt vmcnt({n1})'); a.label(l2)

    def att_qk(self):
        a = self.a
        S = [20 + 4 * n for n in range(8)]
        for n in range(8): a(f'v_mov_b64 v[{S[n]}:{S[n]+1}], 0')
        a(f"""
        s_waitcnt lgkmcnt(0)
        s_barrier
        ds_read_b128 v[4:7], v52
        ds_read_b128 v[8:11], v52 offset:128
        """)
        ops = self.rstd_ops()
        for _ in range(6): a(ops.pop(0))
        Q = [4, 8, 4]
        for tau in range(3):
            if tau == 0: a('s_waitcnt lgkmcnt(1)')
            if tau == 1: a('s_waitcnt lgkmcnt(1)')
            if tau == 2: a('s_waitcnt lgkmcnt(1)')
            for n in range(8):
                i = 24 * n + 8 * tau
                a(f'v_smfmac_f32_16x16x64_bf16 v[{S[n]}:{S[n]+3}], v[{Q[tau]}:{Q[tau]+3}], a[{i}:{i+7}], v53')
                if tau == 0:
                    for _ in range(2):
                        if ops: a(ops.pop(0))
                if tau == 1 and n == 0:
                    a(f's_barrier\nv_mov_b32 v13, {L_SCAL}\nds_read_b96 v[12:14], v13')
                if tau == 1 and n == 2:
                    a(f"""
                    s_lshl_b32 {u0}, {sW}, 8
                    s_add_u32 {u0}, {u0}, {L_PB}
                    v_lshl_add_u32 v54, v0, 2, {u0}
                    """)
                if tau == 1 and n == 4:
                    a(f"""
                    s_sub_u32 {u0}, {u0}, {L_QS}
                    v_add_u32 v52, {u0}, v52
                    """)
                if tau == 1 and n == 5:
                    a(f'v_and_b32 v15, 2, v0\nv_cmp_eq_u32 vcc, 0, v15')
                if tau == 1 and n == 6:
                    a(f'v_mov_b32 v15, {L_ZERO}')
                if tau == 1 and n == 7:
                    a('v_cndmask_b32 v55, v52, v15, vcc\nv_cndmask_b32 v52, v15, v52, vcc')
            if tau == 0:
                assert not ops
                a('ds_read_b128 v[4:7], v52 offset:256')
        self.emit([x for pr in zip(self.merge(1, S[0::2]), self.merge(2, S[1::2])) for x in pr])
        a(f"""
        v_max_f32 v3, v1, v2
        s_waitcnt lgkmcnt(0)
        v_max_f32_dpp v3, v3, v3 quad_perm:[1,0,3,2] {DP}
        v_mov_b64 v[20:21], 0
        v_mov_b64 v[22:23], 0
        v_max_f32_dpp v3, v3, v3 quad_perm:[2,3,0,1] {DP}
        v_mov_b64 v[24:25], 0
        v_mov_b64 v[26:27], 0
        v_max_f32_dpp v3, v3, v3 row_half_mirror {DP}
        v_mov_b64 v[28:29], 0
        v_mov_b64 v[30:31], 0
        v_max_f32_dpp v3, v3, v3 row_mirror {DP}
        """)
        self.emit(self.allrows('v_max_f32', 3, 15))
        a(f"""
        v_mul_f32 v3, v3, v12
        v_fma_f32 v1, v1, v12, -v3
        v_fma_f32 v2, v2, v12, -v3
        v_exp_f32 v1, v1
        v_exp_f32 v2, v2
        v_cvt_pk_bf16_f32 v15, v1, v2
        ds_write_b32 v54, v15
        v_add_f32 v1, v1, v2
        v_mov_b64 v[32:33], 0
        v_mov_b64 v[34:35], 0
        v_mov_b64 v[36:37], 0
        v_mov_b64 v[38:39], 0
        v_mov_b64 v[40:41], 0
        v_mov_b64 v[42:43], 0
        s_waitcnt lgkmcnt(0)
        ds_read_b128 v[4:7], v52
        ds_read_b128 v[8:11], v55
        ds_read_b128 v[44:47], v52 offset:128
        ds_read_b128 v[48:51], v55 offset:128
        """)

    def att_pv(self, hook):
        a = self.a
        PL = [4, 44]; PH = [8, 48]
        side = [f'v_add_f32_dpp v1, v1, v1 quad_perm:[1,0,3,2] {DP}',
                f's_lshl_b32 {u0}, {sW}, 2', f's_add_u32 {u0}, {u0}, {L_ML}',
                f'v_add_f32_dpp v1, v1, v1 quad_perm:[2,3,0,1] {DP}',
                f'v_mov_b32 v2, {u0}', f'v_mov_b32 v52, {L_ML}',
                f'v_add_f32_dpp v1, v1, v1 row_half_mirror {DP}',
                'ds_write_b32 v2, v3', 's_nop 0',
                f'v_add_f32_dpp v1, v1, v1 row_mirror {DP}'] + self.allrows('v_add_f32', 1, 15) + \
               ['ds_write_b32 v2, v1 offset:16']
        for _ in range(7): a(side.pop(0))
        a('s_waitcnt lgkmcnt(0)')
        def mm(c, kap):
            b = 64 + 96 * kap + 8 * c
            d = 20 + 4 * (c >> 1)
            pr = (PL if c % 2 == 0 else PH)[kap]
            a(f'v_smfmac_f32_16x16x64_bf16 v[{d}:{d+3}], v[{pr}:{pr+3}], v[{b}:{b+7}], v53')
        order = [(c, kap) for kap in range(2) for c in range(12)]
        addr = [f's_mul_i32 {u0}, {sW}, 768', f's_add_u32 {u0}, {u0}, {L_OW}', f'v_lshl_add_u32 v54, v0, 2, {u0}', 's_nop 0']
        stage2 = ['s_waitcnt lgkmcnt(0)', 's_barrier', 'ds_read_b128 v[12:15], v52', 'ds_read_b128 v[16:19], v52 offset:16']
        stage3 = ['s_waitcnt lgkmcnt(0)',
                  'v_max3_f32 v2, v12, v13, v14', 'v_max_f32 v2, v2, v15',
                  'v_sub_f32 v3, v3, v2', 'v_sub_f32 v12, v12, v2', 'v_sub_f32 v13, v13, v2', 'v_sub_f32 v14, v14, v2', 'v_sub_f32 v15, v15, v2',
                  'v_exp_f32 v1, v3', 'v_exp_f32 v12, v12', 'v_exp_f32 v13, v13', 'v_exp_f32 v14, v14', 'v_exp_f32 v15, v15',
                  'v_mul_f32 v3, v12, v16', 'v_fmac_f32 v3, v13, v17', 'v_fmac_f32 v3, v14, v18', 'v_fmac_f32 v3, v15, v19']
        work = side + addr[:4] + stage2 + addr[4:] + stage3
        for n, (c, kap) in enumerate(order):
            if n == 12: hook()
            mm(c, kap)
            for _ in range(2):
                if work: a(work.pop(0))
        while work: a(work.pop(0))
        def mrg(dst, mu):
            k = 20 + 8 * mu
            return [f'v_add_f32_dpp v{dst}, v{r}, v{r+1} quad_perm:[0,1,2,3] row_mask:{1<<g:#x} bank_mask:0xf' for g, r in enumerate([k, k + 2, k + 4, k + 6])]
        a(f"""
        s_lshl_b32 {t0}, {sIT}, 18
        s_lshl_b32 {t1}, {sCU}, 10
        s_add_u32 {t0}, {t0}, {t1}
        s_add_u32 {t0}, {t0}, {W_O}
        s_cmp_lt_u32 {sW}, 3
        s_cselect_b32 {t1}, {t0}, {OOB}
        s_cselect_b32 {t2}, {OOB}, {t0}
        """)
        self.emit(mrg(12, 0)); self.emit(mrg(13, 1)); self.emit(mrg(14, 2))
        a(f"""
        v_mul_f32 v12, v12, v1
        v_mul_f32 v13, v13, v1
        v_mul_f32 v14, v14, v1
        ds_write_b32 v54, v12
        ds_write_b32 v54, v13 offset:256
        ds_write_b32 v54, v14 offset:512
        s_lshl_b32 {u0}, {sW}, 8
        v_lshl_add_u32 v4, v0, 2, {u0}
        v_add_u32 v5, {L_OW}, v4
        v_mov_b32 v7, 0
        """)
        with self.w3only(): self.clr_ack()
        a(f"""
        s_waitcnt lgkmcnt(0)
        s_barrier
        ds_read2st64_b32 v[8:9], v5 offset0:0 offset1:3
        ds_read2st64_b32 v[10:11], v5 offset0:6 offset1:9
        """)
        self.store_intra([f's_mov_b64 exec, {ML0}',
                          f'buffer_store_dwordx2 v[2:3], v7, {SRDW}, {t2} offen offset:768{{sc}}',
                          's_mov_b64 exec, -1',
                          's_waitcnt lgkmcnt(0)',
                          'v_pk_add_f32 v[8:9], v[8:9], v[10:11]',
                          'v_add_f32 v8, v8, v9',
                          f'buffer_store_dword v8, v4, {SRDW}, {t1} offen{{sc}}'])

    def o_pre(self, lds_base):
        a = self.a
        a(f"""
        v_lshrrev_b32 v54, 2, v0
        v_mul_u32_u24 v54, 160, v54
        v_and_b32 v55, 3, v0
        v_lshl_add_u32 v54, v55, 3, v54
        s_lshl_b32 {u0}, {sW}, 5
        s_add_u32 {u0}, {u0}, {lds_base}
        v_add_u32 v54, {u0}, v54
        """)
        for u in range(12):
            a(f'ds_read_b64_tr_b16 v[{30+2*u}:{31+2*u}], v54 offset:{16*u*160}')
        self.sa_read_addr(55, 29, L_QS)
        self.idx(29, 28)
        a(f"""
        v_lshlrev_b32 v28, 2, v0
        v_mov_b64 v[24:25], 0
        s_mul_i32 {t4}, {sL}, 81920
        s_mul_i32 {u1}, {sS}, 10240
        s_add_u32 {t4}, {t4}, {u1}
        s_mul_i32 {u1}, {sH}, 320
        s_add_u32 {t4}, {t4}, {u1}
        s_lshl_b32 {u1}, {sW}, 6
        s_add_u32 {t4}, {t4}, {u1}
        s_add_u32 {t4}, {t4}, {W_Y}
        """)

    def o_g(self):
        a = self.a
        a(f"""
        s_waitcnt lgkmcnt(0)
        s_barrier
        ds_read_b128 v[4:7], v55
        ds_read_b128 v[8:11], v55 offset:128
        ds_read_b128 v[12:15], v55 offset:256
        """)
        for tau in range(3):
            a(f's_waitcnt lgkmcnt({2-tau})')
            a(f'v_smfmac_f32_16x16x64_bf16 v[24:27], v[{4+4*tau}:{7+4*tau}], v[{30+8*tau}:{37+8*tau}], v29')
        a(f"""
        s_mov_b64 exec, {M16}
        v_add_f32 v24, v24, v25
        buffer_store_dword v24, v28, {SRDW}, {t4} offen sc1
        s_mov_b64 exec, -1
        """)

    def o_w3(self, key):
        a = self.a
        if key == 'b': self.clear_P()
        self.w3_window(key)()
        if key == 'b' and self.cfg.clrF == 'b': self.clear_F()
        a('v_mov_b32 v1, v29\nv_mov_b64 v[2:3], 0\nv_mov_b64 v[60:61], 0')
        for u in range(8):
            a(f'ds_read_b64_tr_b16 v[{14+2*u}:{15+2*u}], v54 offset:{16*u*160+32}')
        a(f"""
        s_waitcnt lgkmcnt(0)
        s_barrier
        ds_read_b128 v[6:9], v55
        ds_read_b128 v[10:13], v55 offset:128
        ds_read_b128 a[236:239], v55 offset:256
        s_waitcnt lgkmcnt(2)
        v_smfmac_f32_16x16x64_bf16 v[60:63], v[6:9], v[30:37], v1
        """)
        for u in range(8, 12):
            a(f'ds_read_b64_tr_b16 v[{30+2*(u-8)}:{31+2*(u-8)}], v54 offset:{16*u*160+32}')
        a(f"""
        v_smfmac_f32_16x16x64_bf16 v[2:5], v[6:9], v[14:21], v1
        s_waitcnt lgkmcnt(5)
        v_smfmac_f32_16x16x64_bf16 v[60:63], v[10:13], v[38:45], v1
        v_lshlrev_b32 v6, 2, v0
        v_smfmac_f32_16x16x64_bf16 v[2:5], v[10:13], v[22:29], v1
        s_waitcnt lgkmcnt(4)
        v_smfmac_f32_16x16x64_bf16 v[60:63], a[236:239], v[46:53], v1
        s_waitcnt lgkmcnt(0)
        v_smfmac_f32_16x16x64_bf16 v[2:5], a[236:239], v[30:37], v1
        """)
        self.emit(self.merge(7, [60, 2]))
        a(f"""
        s_mov_b64 exec, {M32}
        buffer_store_dword v7, v6, {SRDW}, {t4} offen sc1
        s_mov_b64 exec, -1
        """)

    def gather_b(self):
        a = self.a
        self.g8_pre(MAP_TR_SA, 1024)
        a(f"""
        s_lshl_b32 {t0}, {sIT}, 18
        s_lshl_b32 {t1}, {sH}, 13
        s_add_u32 {t0}, {t0}, {t1}
        s_add_u32 {t0}, {t0}, {W_O}
        s_add_u32 {t1}, {t0}, 4096
        """)
        loads = [f'buffer_load_dwordx2 v[12:13], v3, {SRDW}, {t0} offen offset:768 sc1']
        loads += [f'buffer_load_dword v{4+p}, v1, {SRDW}, {[t0,t1][p>>2]} offen offset:{1024*(p&3)} sc1' for p in range(8)]
        def compute():
            a(f"""
            v_max_f32_dpp v14, v12, v12 quad_perm:[1,0,3,2] {DP}
            v_max_f32_dpp v14, v14, v14 quad_perm:[2,3,0,1] {DP}
            v_max_f32_dpp v14, v14, v14 row_half_mirror {DP}
            v_sub_f32 v12, v12, v14
            v_exp_f32 v12, v12
            v_mul_f32 v13, v13, v12
            v_mul_f32_dpp v4, v12, v4 row_newbcast:0 {DP}
            v_add_f32_dpp v13, v13, v13 quad_perm:[1,0,3,2] {DP}
            v_mul_f32_dpp v5, v12, v5 row_newbcast:1 {DP}
            v_fmac_f32_dpp v4, v12, v6 row_newbcast:2 {DP}
            v_add_f32_dpp v13, v13, v13 quad_perm:[2,3,0,1] {DP}
            v_fmac_f32_dpp v5, v12, v7 row_newbcast:3 {DP}
            v_fmac_f32_dpp v4, v12, v8 row_newbcast:4 {DP}
            v_add_f32_dpp v13, v13, v13 row_half_mirror {DP}
            v_fmac_f32_dpp v5, v12, v9 row_newbcast:5 {DP}
            v_fmac_f32_dpp v4, v12, v10 row_newbcast:6 {DP}
            v_rcp_f32 v13, v13
            v_fmac_f32_dpp v5, v12, v11 row_newbcast:7 {DP}
            v_add_f32 v4, v4, v5
            v_mul_f32 v4, v4, v13
            v_cvt_pk_bf16_f32 v5, v4, v4
            ds_write_b16 v2, v5
            """)
        self.spec_poll(loads, range(4, 14), 15, self.cfg.dly['b'], compute, (4, 4))

    def gather_g(self):
        a = self.a
        self.g8_pre(MAP_TR_SA, 1024)
        a(f"""
        s_lshl_b32 {t0}, {sIT}, 18
        s_lshl_b32 {t1}, {sH}, 13
        s_add_u32 {t0}, {t0}, {t1}
        s_add_u32 {t0}, {t0}, {W_G}
        s_add_u32 {t1}, {t0}, 4096
        """)
        loads = [f'buffer_load_dword v{4+p}, v1, {SRDW}, {[t0,t1][p>>2]} offen offset:{1024*(p&3)} sc1' for p in range(8)]
        def compute():
            self.emit(self.sum8(4))
            a('v_cvt_pk_bf16_f32 v5, v4, v4\nds_write_b16 v2, v5')
        self.spec_poll(loads, range(4, 12), 15, self.cfg.dly['g'], compute, (4, 4))

    def gather_c(self):
        a = self.a
        self.x_lane_consts()
        a(f"""
        ds_read_u16 v22, v55
        s_mul_i32 {t0}, {sL}, 81920
        s_mul_i32 {t1}, {sS}, 10240
        s_add_u32 {t0}, {t0}, {t1}
        s_add_u32 {t0}, {t0}, {W_Y}
        s_add_u32 {t1}, {t0}, 5120
        s_waitcnt lgkmcnt(0)
        v_lshlrev_b32 v22, 16, v22
        """)
        loads = [f'buffer_load_dwordx4 v[6:9], v54, {SRDW}, {t0} offen sc1',
                 f'buffer_load_dwordx4 v[10:13], v54, {SRDW}, {t0} offen offset:2560 sc1',
                 f'buffer_load_dwordx4 v[14:17], v54, {SRDW}, {t1} offen sc1',
                 f'buffer_load_dwordx4 v[18:21], v54, {SRDW}, {t1} offen offset:2560 sc1']
        def compute():
            a(f"""
            v_pk_add_f32 v[6:7], v[6:7], v[10:11]
            v_pk_add_f32 v[14:15], v[14:15], v[18:19]
            v_pk_add_f32 v[8:9], v[8:9], v[12:13]
            v_pk_add_f32 v[16:17], v[16:17], v[20:21]
            v_pk_add_f32 v[6:7], v[6:7], v[14:15]
            v_pk_add_f32 v[8:9], v[8:9], v[16:17]
            v_permlane16_swap_b32 v6, v7
            v_permlane16_swap_b32 v8, v9
            v_add_f32 v6, v6, v7
            v_add_f32 v8, v8, v9
            v_permlane32_swap_b32 v6, v8
            v_add_f32 v6, v6, v8
            v_add_f32_dpp v6, v6, v6 row_ror:8 {DP}
            v_cvt_pk_bf16_f32 v7, v6, v6
            v_lshlrev_b32 v7, 16, v7
            v_add_f32 v7, v7, v22
            v_cvt_pk_bf16_f32 v20, v7, v7
            """)
        self.spec_poll(loads, range(6, 22), 3, self.cfg.dly['c'], compute, (6, 6))
        a('ds_write_b16 v55, v20')

    def uk_copy(self):
        a = self.a
        self.wbar('wuk')
        with self.it0():
            a(f"""
            s_lshl_b32 {u0}, {sW}, 1
            s_min_u32 {u0}, {u0}, 5
            s_mul_i32 {u0}, {u0}, {2*3072}
            s_add_u32 {u0}, {u0}, {L_WUV}
            """)
            self.row192_addr(1, 2, 3, u0)
            for u in range(6):
                a(f'ds_read_b128 a[{192+4*u}:{195+4*u}], v{1 + (u & 1)} offset:{(u//2)*1024}')
            with self.cond(f's_cmp_ge_u32 {sW}, 2'):
                for u in range(6):
                    a(f'ds_read_b128 a[{216+4*u}:{219+4*u}], v{1 + (u & 1)} offset:{2*3072 + (u//2)*1024}')

    def abs_pre(self):
        a = self.a
        self.sa_read_addr(52, 55, L_QS)
        self.idx(53, 55)
        a(f"""
        v_lshlrev_b32 v54, 1, v0
        v_mov_b64 v[40:41], 0
        v_mov_b64 v[44:45], 0
        s_lshl_b32 {t4}, {sIT}, 16
        s_mul_i32 {u1}, {sCU}, 192
        s_add_u32 {t4}, {t4}, {u1}
        s_add_u32 {t4}, {t4}, {W_E}
        s_lshl_b32 {u1}, {sW}, 1
        s_min_u32 {u1}, {u1}, 5
        s_lshl_b32 {u1}, {u1}, 5
        s_add_u32 {t4}, {t4}, {u1}
        s_mov_b32 s61, 0
        s_mov_b32 s60, 0x55555555
        s_cmp_lt_u32 {sW}, 2
        s_cselect_b32 s60, s60, 0x5555
        """)

    def stage_abs(self):
        a = self.a
        a(f"""
        s_waitcnt lgkmcnt(0)
        s_barrier
        ds_read_b128 v[28:31], v52
        ds_read_b128 v[32:35], v52 offset:128
        ds_read_b128 v[36:39], v52 offset:256
        """)
        for tau in range(3):
            a(f's_waitcnt lgkmcnt({2-tau})')
            a(f'v_smfmac_f32_16x16x64_bf16 v[40:43], v[{28+4*tau}:{31+4*tau}], a[{192+8*tau}:{199+8*tau}], v53')
            a(f'v_smfmac_f32_16x16x64_bf16 v[44:47], v[{28+4*tau}:{31+4*tau}], a[{216+8*tau}:{223+8*tau}], v53')
        self.emit(self.merge(48, [40, 44]))
        a(f"""
        v_mov_b32_dpp v49, v48 quad_perm:[1,1,3,3] {DP}
        s_mov_b64 exec, s[60:61]
        v_cvt_pk_bf16_f32 v48, v48, v49
        buffer_store_dword v48, v54, {SRDW}, {t4} offen sc1
        s_mov_b64 exec, -1
        """)
        self.vissue('st')
        self.emit(self.rstd_ops())

    def w3_behind(self, key, nloads, lc, va, vb):
        a = self.a
        for _ in range(nloads): self.vissue('pl', '3')
        if not self.cfg.win.get(key):
            self.vdrain('3'); return
        l = a.newlabel('Lbh')
        a(f's_lshl_b32 {u0}, {sIT}, 2\ns_add_u32 {u0}, {u0}, {sW}\ns_cmp_lg_u32 {u0}, 3\ns_cbranch_scc1 {l}')
        self.window(key, va, vb, cap=54)
        self.vwait('pl', '3')
        a(f's_branch {lc}')
        a.label(l)

    def stage_sc(self):
        a = self.a
        self.wbar('ckv')
        a(f"""
        s_lshr_b32 {u0}, {sW}, 1
        s_mul_i32 {u0}, {u0}, {4*3072}
        s_add_u32 {u0}, {u0}, {L_CKV}
        """)
        self.row192_addr(1, 3, 2, u0)
        seq = [(n, u) for n in range(2) for u in range(6)]
        def aread(k):
            n, u = seq[k]; r = 28 + 4 * (k % 5)
            a(f'ds_read_b128 v[{r}:{r+3}], v{1 if u % 2 == 0 else 3} offset:{n*2*3072 + (u//2)*1024}')
        def pre():
            for k in range(5): aread(k)
        pre()
        a(f"""
        v_and_b32 v60, 15, v0
        v_mul_u32_u24 v60, 1536, v60
        v_lshl_add_u32 v2, v2, 4, v60
        s_lshl_b32 {t1}, {sIT}, 16
        s_and_b32 {u1}, {sW}, 1
        s_mul_i32 {u1}, {u1}, {16*1536}
        s_add_u32 {t1}, {t1}, {u1}
        s_mul_i32 {u1}, {sCB}, 384
        s_add_u32 {t1}, {t1}, {u1}
        s_add_u32 {t1}, {t1}, {W_E}
        s_lshl_b32 {t0}, {sIT}, 21
        s_lshl_b32 {u1}, {sCU}, 13
        s_add_u32 {t0}, {t0}, {u1}
        s_lshl_b32 {u1}, {sW}, 11
        s_add_u32 {t0}, {t0}, {u1}
        s_add_u32 {t0}, {t0}, {W_P}
        """)
        loads = [f'buffer_load_dwordx4 v[{4+4*u}:{7+4*u}], v2, {SRDW}, {t1} offen offset:{64*u} sc1' for u in range(6)]
        def compute():
            self.stamp('e got')
            for k in range(12):
                n, u = seq[k]; r = 28 + 4 * (k % 5); d = 52 if n == 0 else 48
                a(f's_waitcnt lgkmcnt({min(4, 11-k)})')
                a(f'v_mfma_f32_16x16x32_bf16 v[{d}:{d+3}], v[{r}:{r+3}], v[{4+4*u}:{7+4*u}], ' + ('0' if u == 0 else f'v[{d}:{d+3}]'))
                if k + 5 < 12: aread(k + 5)
            a('v_lshlrev_b32 v60, 4, v0')
        self.spec_poll(loads, range(4, 28), 60, self.cfg.dly['e'], compute, (52, 52),
                       mid=lambda lc: self.w3_behind('e', 6, lc, 48, 49), redo=pre)
        self.vdrain('g')
        self.store_intra([f'buffer_store_dwordx4 v[52:55], v60, {SRDW}, {t0} offen{{sc}}',
                          f'buffer_store_dwordx4 v[48:51], v60, {SRDW}, {t0} offen offset:1024{{sc}}'])

    def stage_ctx(self):
        a = self.a
        a(f"""
        s_xor_b32 {t1}, {t0}, {1<<13}
        s_xor_b32 {t2}, {t0}, {2<<13}
        s_xor_b32 {t3}, {t0}, {3<<13}
        """)
        loads = []
        for k, s_ in enumerate([t1, t2, t3]):
            loads.append(f'buffer_load_dwordx4 v[{4+8*k}:{7+8*k}], v60, {SRDW}, {s_} offen sc1')
            loads.append(f'buffer_load_dwordx4 v[{8+8*k}:{11+8*k}], v60, {SRDW}, {s_} offen offset:1024 sc1')
        self.tr192_addr(1, 3, pairmode=True)
        a(f"""
        s_lshr_b32 {t4}, {sW}, 1
        s_mul_i32 {u0}, {t4}, {4*3072 + 1024}
        s_add_u32 {u0}, {u0}, {L_CKV}
        s_lshl_b32 {u1}, {t4}, 6
        s_lshl_b32 {u2}, {t4}, 10
        v_xor_b32 v1, {u1}, v1
        v_add_u32 v1, {u0}, v1
        v_xor_b32 v2, 64, v1
        v_add_u32 v2, {u2}, v2
        s_mov_b32 {t5}, {4*3072}
        s_cmp_eq_u32 {t4}, 0
        s_cselect_b32 {t5}, {t5}, {(-4*3072) & 0xffffffff}
        s_lshl_b32 {t6}, {sW}, 11
        s_add_u32 {t6}, {t6}, {L_SX}
        s_xor_b32 {t7}, {sW}, 2
        s_lshl_b32 {t7}, {t7}, 11
        s_add_u32 {t7}, {t7}, {L_SX}
        """)
        def cread(tile, r):
            k, hf = divmod(tile, 2)
            ar = 2 if k == 1 else 1; off = 8 * hf + (1024 if k == 2 else 0)
            a(f'ds_read_b64_tr_b16 v[{r}:{r+1}], v{ar} offset:{off}')
            a(f'ds_read_b64_tr_b16 v[{r+2}:{r+3}], v{ar} offset:{off + 2*3072}')
        for tl in range(4): cread(tl, 28 + 4 * tl)
        def compute():
            self.stamp('p got')
            for i in (0, 2):
                a(f'v_pk_add_f32 v[{4+i}:{5+i}], v[{4+i}:{5+i}], v[{52+i}:{53+i}]\nv_pk_add_f32 v[{8+i}:{9+i}], v[{8+i}:{9+i}], v[{48+i}:{49+i}]')
                a(f'v_pk_add_f32 v[{12+i}:{13+i}], v[{12+i}:{13+i}], v[{20+i}:{21+i}]\nv_pk_add_f32 v[{16+i}:{17+i}], v[{16+i}:{17+i}], v[{24+i}:{25+i}]')
            a(f'v_add_u32 v3, {t6}, v60')
            for i in (0, 2): a(f'v_pk_add_f32 v[{4+i}:{5+i}], v[{4+i}:{5+i}], v[{12+i}:{13+i}]')
            a('ds_write_b128 v3, v[4:7]')
            for i in (0, 2): a(f'v_pk_add_f32 v[{8+i}:{9+i}], v[{8+i}:{9+i}], v[{16+i}:{17+i}]')
            a(f"""
            ds_write_b128 v3, v[8:11] offset:1024
            v_pk_add_f32 v[12:13], v[4:5], v[6:7]
            v_pk_add_f32 v[14:15], v[8:9], v[10:11]
            v_pk_add_f32 v[12:13], v[12:13], v[14:15]
            """)
        self.spec_poll(loads, range(4, 28), 3, self.cfg.dly['p'], compute, (12, 13),
                       mid=lambda lc: self.w3_behind('p', 6, lc, 44, 45))
        self.vdrain('g')
        cread(4, 44); cread(5, 48)
        a(f"""
        v_add_u32 v3, {t7}, v60
        v_mov_b32 v27, {L_SCAL}
        v_max3_f32 v60, v4, v5, v6
        v_max3_f32 v60, v60, v7, v8
        s_waitcnt lgkmcnt(4)
        s_barrier
        ds_read_b128 v[12:15], v3
        ds_read_b128 v[16:19], v3 offset:1024
        ds_read_b32 v26, v27
        v_max3_f32 v60, v60, v9, v10
        v_max_f32 v60, v60, v11
        v_add_u32 v1, {t5}, v1
        v_add_u32 v2, {t5}, v2
        s_waitcnt lgkmcnt(1)
        v_max3_f32 v60, v60, v12, v13
        v_max3_f32 v60, v60, v14, v15
        v_max3_f32 v60, v60, v16, v17
        v_max3_f32 v60, v60, v18, v19
        """)
        self.emit(self.allrows('v_max_f32', 60, 3))
        a(f"""
        s_waitcnt lgkmcnt(0)
        v_mul_f32 v60, v60, v26
        v_ceil_f32 v60, v60
        v_sub_f32 v24, 0, v60
        """)
        pk = lambda k: f'v_pk_fma_f32 v[{k}:{k+1}], v[{k}:{k+1}], v[26:27], v[24:25] op_sel_hi:[1,0,0]'
        for k in range(4, 12, 2): a(pk(k))
        for k in range(4, 12): a(f'v_exp_f32 v{k}, v{k}')
        for k in range(4): a(f'v_cvt_pk_bf16_f32 v{20+k}, v{4+2*k}, v{5+2*k}')
        A_own = [28, 32, 36, 40, 44, 48]
        acc = [52, 28, 32, 36, 40, 44]
        valu = [pk(k) for k in range(12, 20, 2)]
        valu += ['v_pk_add_f32 v[4:5], v[4:5], v[6:7]', 'v_pk_add_f32 v[8:9], v[8:9], v[10:11]', 'v_pk_add_f32 v[4:5], v[4:5], v[8:9]', 'v_add_f32 v3, v4, v5']
        valu += ['CR0', 'CR1']
        valu += [f'v_exp_f32 v{k}, v{k}' for k in range(12, 20)]
        def dov(x):
            if x == 'CR0': cread(0, 4)
            elif x == 'CR1': cread(1, 8)
            else: a(x)
        for tl in range(6):
            a(f'v_mfma_f32_16x16x32_bf16 v[{acc[tl]}:{acc[tl]+3}], v[{A_own[tl]}:{A_own[tl]+3}], v[20:23], 0')
            for _ in range(2):
                if valu: dov(valu.pop(0))
        cread(2, 48); cread(3, 20)
        while valu: dov(valu.pop(0))
        for k in range(4): a(f'v_cvt_pk_bf16_f32 v{24+k}, v{12+2*k}, v{13+2*k}')
        a(f"""
        v_pk_add_f32 v[12:13], v[12:13], v[14:15]
        v_pk_add_f32 v[16:17], v[16:17], v[18:19]
        s_waitcnt lgkmcnt(6)
        v_mfma_f32_16x16x32_bf16 v[52:55], v[4:7], v[24:27], v[52:55]
        v_pk_add_f32 v[12:13], v[12:13], v[16:17]
        """)
        cread(4, 16)
        a(f"""
        s_waitcnt lgkmcnt(6)
        v_mfma_f32_16x16x32_bf16 v[28:31], v[8:11], v[24:27], v[28:31]
        v_add_f32 v3, v3, v12
        v_add_f32 v3, v3, v13
        """)
        cread(5, 12)
        side = self.allrows('v_add_f32', 3, 2) + ['v_mov_b32 v2, v60',
                'v_and_b32 v1, 15, v0', 'v_lshlrev_b32 v1, 17, v1', 'v_lshrrev_b32 v60, 4, v0', 'v_lshl_add_u32 v1, v60, 4, v1']
        a(f"""
        s_and_b32 {t0}, {sW}, 1
        s_lshl_b32 {t0}, {t0}, 7
        s_lshl_b32 {t1}, {sCB}, 1
        s_add_u32 {t0}, {t0}, {t1}
        """)
        A_oth = [4, 8, 48, 20, 16, 12]
        for tl in range(2, 6):
            a(f's_waitcnt lgkmcnt({2*(5-tl)})')
            a(f'v_mfma_f32_16x16x32_bf16 v[{acc[tl]}:{acc[tl]+3}], v[{A_oth[tl]}:{A_oth[tl]+3}], v[24:27], v[{acc[tl]}:{acc[tl]+3}]')
            for _ in range(3):
                if side: a(side.pop(0))
        assert not side
        a(f"""
        s_add_u32 {t0}, {t0}, {t4}
        s_lshl_b32 {t0}, {t0}, 14
        s_lshl_b32 {t1}, {sKB}, 8
        s_add_u32 {t0}, {t0}, {t1}
        s_lshl_b32 {t1}, {sIT}, 22
        s_add_u32 {t0}, {t0}, {t1}
        s_add_u32 {t0}, {t0}, {W_F}
        """)
        for k in range(3):
            x, y = acc[2 * k], acc[2 * k + 1]
            o = [4, 8, 48][k]
            a(f"""
            v_cvt_pk_bf16_f32 v{o}, v{x}, v{x+1}
            v_cvt_pk_bf16_f32 v{o+1}, v{x+2}, v{x+3}
            v_cvt_pk_bf16_f32 v{o+2}, v{y}, v{y+1}
            v_cvt_pk_bf16_f32 v{o+3}, v{y+2}, v{y+3}
            buffer_store_dwordx4 v[{o}:{o+3}], v1, {SRDW}, {t0} offen offset:{64*k} sc1
            """)
            self.vissue('st')
            if k == 0:
                a(f"""
                s_mov_b64 exec, {M16}
                buffer_store_dwordx2 v[2:3], v1, {SRDW}, {t0} offen offset:192 sc1
                s_mov_b64 exec, -1
                """)
                self.vissue('st')

    def uv_wread(self, r, areg):
        for u in range(6):
            self.a(f'ds_read_b64_tr_b16 v[{r+2*u}:{r+2*u+1}], v{areg} offset:{2*u*3072}')

    def uv_pre(self):
        a = self.a
        self.wbar('wuv')
        self.tr192_addr(55, 3)
        for k in range(3):
            a(f's_mul_i32 {u0}, {sW}, 3\ns_add_u32 {u0}, {u0}, {k}')
            self.tile_addr(60, 55, u0, L_WUV)
            if k < 2: self.uv_wread(28 + 12 * k, 60)

    def gather_f(self):
        a = self.a
        def addrs():
            a(f"""
            v_lshrrev_b32 v2, 2, v0
            v_lshlrev_b32 v2, 8, v2
            v_and_b32 v3, 3, v0
            v_lshl_add_u32 v1, v3, 4, v2
            s_lshl_b32 {u0}, {sW}, 6
            v_add_u32 v1, {u0}, v1
            """)
        addrs()
        a(f"""
        s_lshl_b32 {t0}, {sIT}, 22
        s_lshl_b32 {t1}, {sCU}, 14
        s_add_u32 {t0}, {t0}, {t1}
        s_add_u32 {t0}, {t0}, {W_F}
        s_add_u32 {t1}, {t0}, 4096
        s_add_u32 {t2}, {t0}, 8192
        s_add_u32 {t3}, {t0}, 12288
        s_cmp_eq_u32 {sW}, 2
        s_cselect_b32 {t5}, 0.5, 1.0
        """)
        so = [t0, t1, t2, t3]
        loads = [f'buffer_load_dwordx2 v[{20+2*i}:{21+2*i}], v2, {SRDW}, {so[i]} offen offset:192 sc1' for i in range(4)]
        loads += [f'buffer_load_dwordx4 v[{4+4*i}:{7+4*i}], v1, {SRDW}, {so[i]} offen sc1' for i in range(4)]
        lo = [52, 53, 54, 55]
        def ldsaddr(lc=None):
            self.bitperm(2, 0, {0: 5, 4: 4, 5: 3, 1: 2}, 3)
            self.bitperm(1, 0, {0: 5, 5: 4, 1: 3, 4: 2}, 3)
            a(f"""
            s_cmp_eq_u32 {sW}, 2
            s_cselect_b64 vcc, -1, 0
            s_lshl_b32 {u0}, {sW}, 6
            s_add_u32 {u0}, {u0}, {L_US}
            v_cndmask_b32 v2, v2, v1, vcc
            v_add_u32 v2, {u0}, v2
            v_mov_b64 v[52:53], 0
            v_mov_b64 v[54:55], 0
            """)
        def compute():
            self.stamp('f got')
            a(f"""
            v_max3_f32 v3, v20, v22, v24
            v_max_f32 v3, v3, v26
            v_max_f32_dpp v3, v3, v3 row_ror:4 {DP}
            v_max_f32_dpp v3, v3, v3 row_ror:8 {DP}
            """)
            self.emit(self.allrows('v_max_f32', 3, 1))
            for i in range(4): a(f'v_sub_f32 v{20+2*i}, v{20+2*i}, v3')
            for i in range(4): a(f'v_exp_f32 v{20+2*i}, v{20+2*i}')
            a('v_mul_f32 v3, v20, v21')
            for i in range(1, 4): a(f'v_fmac_f32 v3, v{20+2*i}, v{21+2*i}')
            for i in range(4): a(f'v_lshrrev_b32 v{21+2*i}, 16, v{20+2*i}')
            side = [f'v_add_f32_dpp v3, v3, v3 row_ror:4 {DP}', f'v_add_f32_dpp v3, v3, v3 row_ror:8 {DP}'] + \
                   self.allrows('v_add_f32', 3, 1) + ['v_rcp_f32 v3, v3', f'v_mul_f32 v3, {t5}, v3']
            for i in range(4):
                for c in range(4):
                    a(f'v_dot2c_f32_bf16 v{lo[c]}, v{4+4*i+c}, v{21+2*i}')
                    if side and c % 2 == 1: a(side.pop(0))
            for c in range(4):
                a(f'v_dot2_f32_bf16 v{4+c}, v{4+c}, v20, 0')
                if side and c % 2 == 1: a(side.pop(0))
            assert not side
            sw = ['v_permlane16_swap_b32 v52, v53', 'v_permlane16_swap_b32 v54, v55', 'v_add_f32 v52, v52, v53', 'v_add_f32 v54, v54, v55',
                  'v_permlane32_swap_b32 v52, v54', 'v_add_f32 v52, v52, v54']
            for i in range(1, 4):
                for c in range(4):
                    a(f'v_dot2_f32_bf16 v{4+c}, v{4+4*i+c}, v{20+2*i}, v{4+c}')
                    if sw and c % 2 == 1: a(sw.pop(0))
            self.uv_wread(8, 60)
            a(f"""
            v_permlane16_swap_b32 v4, v5
            v_permlane16_swap_b32 v6, v7
            v_add_f32_dpp v52, v52, v52 row_ror:4 {DP}
            v_add_f32 v4, v4, v5
            v_add_f32 v6, v6, v7
            v_add_f32_dpp v52, v52, v52 row_ror:8 {DP}
            v_permlane32_swap_b32 v4, v6
            v_add_f32 v4, v4, v6
            v_mul_f32 v52, v52, v3
            v_add_f32_dpp v4, v4, v4 row_ror:4 {DP}
            v_add_f32_dpp v4, v4, v4 row_ror:8 {DP}
            v_mul_f32 v4, v4, v3
            v_cvt_pk_bf16_f32 v5, v52, v4
            ds_write_b32 v2, v5
            """)
        self.spec_poll(loads, range(4, 28), 3, self.cfg.dly['f'], compute, (52, 4), mid=ldsaddr, redo=ldsaddr, undo=addrs)
        self.vdrain('g')

    def stage_uv(self):
        a = self.a
        self.sa_read_addr(1, 3, L_US)
        a(f"""
        v_and_b32 v2, 48, v0
        v_add_u32 v2, {L_US + 128}, v2
        s_waitcnt lgkmcnt(0)
        s_barrier
        ds_read_b128 v[24:27], v2
        ds_read_b128 v[20:23], v1
        """)
        self.idx(3, 60)
        a(f"""
        v_lshlrev_b32 v60, 2, v0
        s_lshl_b32 {t0}, {sIT}, 18
        s_lshl_b32 {t1}, {sCU}, 10
        s_add_u32 {t0}, {t0}, {t1}
        s_mul_i32 {t1}, {sW}, 192
        s_add_u32 {t0}, {t0}, {t1}
        s_add_u32 {t0}, {t0}, {W_G}
        s_waitcnt lgkmcnt(1)
        """)
        Wb = [28, 40, 8]; D = [52, 4, 36]
        for k in range(3):
            a(f'v_mfma_f32_16x16x32_bf16 v[{D[k]}:{D[k]+3}], v[24:27], v[{Wb[k]+8}:{Wb[k]+11}], 0')
        a('s_waitcnt lgkmcnt(0)')
        for k in range(3):
            a(f'v_smfmac_f32_16x16x64_bf16 v[{D[k]}:{D[k]+3}], v[20:23], v[{Wb[k]}:{Wb[k]+7}], v3')
        self.emit(self.merge(2, D))
        self.store_intra([f's_mov_b64 exec, {M48}', f'buffer_store_dword v2, v60, {SRDW}, {t0} offen{{sc}}', 's_mov_b64 exec, -1'])

    def build(self):
        a = self.a; cfg = self.cfg
        a(f"""
        s_cmp_ge_u32 s2, 256
        s_cbranch_scc1 L_end
        s_load_dwordx16 s[64:79], s[0:1], 0
        s_load_dwordx8 s[80:87], s[0:1], 64
        s_load_dwordx4 s[88:91], s[0:1], 96
        v_lshrrev_b32 v1, 6, v0
        v_mov_b32 v51, v0
        v_and_b32 v0, 63, v0
        v_readfirstlane_b32 {sW}, v1
        s_and_b32 {t0}, s2, 7
        s_lshl_b32 {t0}, {t0}, 5
        s_lshr_b32 {t1}, s2, 3
        s_add_u32 {sCU}, {t0}, {t1}
        s_lshr_b32 {sH}, {sCU}, 3
        s_and_b32 {sS}, {sCU}, 7
        s_lshr_b32 {sKB}, {sCU}, 2
        s_and_b32 {sCB}, {sCU}, 3
        s_mov_b32 {sIT}, 0
        s_mov_b32 {sL}, 0
        s_mov_b32 {sFAST}, 0
        s_mov_b32 {sSTI}, 0
        s_mul_i32 {sKV}, {sCU}, 196608
        s_mul_i32 {t0}, {sW}, 49152
        s_add_u32 {sKV}, {sKV}, {t0}
        s_mov_b32 s36, -1
        s_mov_b32 s37, 0xffff
        s_mov_b32 s38, 0xffff
        s_mov_b32 s39, 0
        s_mov_b64 {ML0}, 1
        s_mov_b32 s42, -1
        s_mov_b32 s43, 0x0fffffff
        s_mov_b32 s50, -1
        s_mov_b32 s51, 0
        s_mov_b32 {sC}, {f2u(SCALE)}
        s_mov_b32 {sPLO}, 0x05040100
        s_mov_b32 {sPHI}, 0x07060302
        s_mov_b32 {sLIM}, {cfg.lim}
        """)
        if cfg.stamps: a('v_mov_b32 v63, 0')
        self.kv_addr()
        a('s_waitcnt lgkmcnt(0)')
        self.stamp('start')
        self.srd('k', 12); self.srd('v', 16); self.srd('ws', 20, WS_BYTES)
        self.dma_all_wq()
        self.x_lane_consts()
        self.srd('x')
        a(f's_mul_i32 {t0}, {sS}, 160\nbuffer_load_ushort v20, v60, {SRDT}, {t0} offen')
        self.vissue('x')
        D = cfg.depth
        n0 = min(D, cfg.n0)
        for U in range(n0): self.kv_issue(U)
        a(f"""
        v_mov_b32 v4, -1
        v_mov_b32 v5, -1
        v_mov_b32 v6, -1
        v_mov_b32 v7, -1
        v_lshlrev_b32 v1, 4, v0
        s_lshl_b32 {t0}, {sCU}, 10
        s_add_u32 {t0}, {t0}, {W_O}
        s_cmp_eq_u32 {sW}, 0
        s_cselect_b32 {t0}, {t0}, {OOB}
        buffer_store_dwordx4 v[4:7], v1, {SRDW}, {t0} offen sc1
        s_mul_i32 {t0}, {sS}, 10240
        s_mul_i32 {t1}, {sH}, 320
        s_add_u32 {t0}, {t0}, {t1}
        s_add_u32 {t0}, {t0}, {W_Y}
        s_cmp_eq_u32 {sW}, 1
        s_cselect_b32 {t0}, {t0}, {OOB}
        s_mov_b64 exec, 0xfffff
        buffer_store_dwordx4 v[4:7], v1, {SRDW}, {t0} offen sc1
        s_getreg_b32 {t1}, hwreg(HW_REG_XCC_ID, 0, 4)
        v_mov_b32 v8, {t1}
        s_lshl_b32 {t0}, {sCU}, 11
        s_cmp_eq_u32 {sW}, 3
        s_cselect_b32 {t0}, {t0}, {OOB}
        s_mov_b64 exec, {ML0}
        buffer_store_dword v8, v1, {SRDW}, {t0} offen offset:780 sc1
        s_mov_b64 exec, -1
        v_lshlrev_b32 v1, 2, v0
        v_min_u32 v1, 156, v1
        v_add_u32 v1, {L_ONES}, v1
        v_mov_b32 v2, 0x3f803f80
        v_mov_b32 v3, 0
        ds_write_b32 v1, v2
        ds_write_b32 v1, v3 offset:160
        """)
        for _ in range(3): self.vissue('clr0')
        self.vwait('x')
        a(f"""
        ds_write_b16 v55, v20
        s_waitcnt lgkmcnt(0)
        s_barrier
        """)
        self.tr192_addr(42, 3)
        for k in range(4):
            a(f"""
            s_lshl_b32 {u0}, {sW}, 1
            s_lshl_b32 {t4}, {sW}, 2
            s_sub_u32 {t4}, {t4}, 4
            s_cmp_lt_u32 {sW}, 2
            s_cselect_b32 {u0}, {u0}, {t4}
            s_add_u32 {u0}, {u0}, {k}
            """)
            self.tile_addr(43, 42, u0, L_WO)
            b = int(self.WQB_[k][2:5])
            for u in range(4):
                a(f'ds_read_b64_tr_b16 a[{b+2*u}:{b+2*u+1}], v43 offset:{2*u*3072}')
            a(f'ds_read_b64_tr_b16 {self.WQT_[k]}, v43 offset:{8*3072}')
        self.q_pre('wq')
        a('s_waitcnt lgkmcnt(0)')

        a.label('L_top')
        self.stamp('top')
        self.stage_q('wq')
        self.stamp('q pub')
        with self.it0():
            self.srd('dbg')
            a('v_mov_b32 v2, 0')
            if cfg.warm_code:
                a(f"""
                s_getpc_b64 s[92:93]
                L_pc:
                v_lshlrev_b32 v1, 7, v51
                v_min_u32 v1, L_last-L_pc, v1
                global_load_dword v6, v1, s[92:93]
                """)
                self.vissue('warm')
            for U in range(n0, D): self.kv_issue(U)
            self.k_raddr()
            self.vwait('st')
            a(f"""
            s_barrier
            v_mov_b32 v1, 1
            s_cmp_lg_u32 {sW}, 0
            s_cbranch_scc1 L_noat
            s_mov_b64 exec, {ML0}
            buffer_atomic_add v1, v2, {SRDT}, 0 offen sc1
            s_mov_b64 exec, -1
            L_noat:
            """)
            for s_ in range(cfg.c2 + 1):
                if s_ == 8: self.v_raddr(1)
                self.kv_step(s_)
                if cfg.fine and s_ % 2: self.stamp(f'U{s_}')
                if s_ == cfg.c1:
                    a(f'buffer_load_dword v6, v2, {SRDT}, 0 offen sc1')
                    self.vissue('cnt')
            assert cfg.c2 >= 8 and cfg.c3 + 1 + D >= 16
            self.vwait('cnt')
            lp, ld = a.newlabel('Lcnt'), a.newlabel('Lcntok')
            a(f's_mov_b32 {sCNT}, 0')
            a.label(lp)
            a(f"""
            v_readfirstlane_b32 {t0}, v6
            s_cmp_ge_u32 {t0}, 256
            s_cbranch_scc1 {ld}
            s_sleep 8
            buffer_load_dword v6, v2, {SRDT}, 0 offen sc1
            s_add_u32 {sCNT}, {sCNT}, 1
            s_waitcnt vmcnt(0)
            s_cmp_lt_u32 {sCNT}, {sLIM}
            s_cbranch_scc1 {lp}
            s_mov_b32 {sLIM}, 0
            """)
            a.label(ld)
            if cfg.fine: self.stamp('cnt ok')
        self.att_pre()
        def w3a():
            self.clear_small()
            with self.it0():
                for s_ in range(cfg.c2 + 1, cfg.c3 + 1): self.kv_step(s_, '3')
        self.split3(lambda: self.gather_a(vCSA, first=True), w3a)
        with self.it0():
            self.dma_all_wo(54, 55)
        self.stamp("a' done")
        self.att_qk()
        with self.it0():
            a(f'v_readfirstlane_b32 {sFAST}, v14')
        self.stamp('qk done')
        def hook():
            with self.it0():
                self.SR = 4
                self.v_raddr(8)
                for s_ in range(cfg.c3 + 1, 16): self.kv_step(s_)
                self.vwait_split('wo')
                a('s_waitcnt lgkmcnt(0)')
            self.stamp('v ready')
        self.att_pv(hook)
        self.stamp('b pub')
        self.o_pre(L_WO)
        def gb():
            self.gather_b(); self.stamp('b done'); self.o_g()
        self.split3(gb, lambda: self.o_w3('b'))
        self.vissue('st')
        self.stamp('c pub')
        self.wbar('wqb')
        self.q_pre('wqb')
        def w3c():
            if cfg.clrF == 'c': self.clear_F(8)
            self.w3_window('c', 6, 7)(); self.clr_ack('clr', 16 if cfg.clrF == 'c' else 0)
        self.split3(self.gather_c, w3c)
        a(f"""
        s_add_u32 {sL}, {sL}, 1
        s_waitcnt lgkmcnt(0)
        s_barrier
        """)
        self.stamp('c done')
        if cfg.win.get('q'):
            with self.w3only(): self.w3_window('q', 12, 13)()
        self.stage_q('wqb')
        self.stamp('qb pub')
        self.uk_copy()
        self.abs_pre()
        def w3a2():
            self.w3_window('a')(); self.clr_ack('clrF')
        self.split3(lambda: self.gather_a(vCSB), w3a2)
        self.stamp("a'b done")
        self.stage_abs()
        self.stamp('e pub')
        self.stage_sc()
        self.stamp('p pub')
        self.stage_ctx()
        self.stamp('f pub')
        self.uv_pre()
        def w3f():
            self.w3_window('f')(); self.uv_wread(8, 60)
        self.split3(self.gather_f, w3f)
        self.stage_uv()
        self.stamp('g pub')
        self.wbar('wob')
        self.o_pre(L_WOB)
        def gg():
            self.gather_g(); self.stamp('g done'); self.o_g()
        self.split3(gg, lambda: self.o_w3('g'))
        self.stamp('c2 pub')
        lfin = a.newlabel('Lcont')
        a(f"""
        s_cmp_eq_u32 {sIT}, 0
        s_cbranch_scc1 {lfin}
        s_cmp_lg_u32 {sH}, 0
        s_cbranch_scc1 L_exit
        s_cmp_eq_u32 {sW}, 3
        s_cbranch_scc1 L_exit
        """)
        a.label(lfin)
        self.q_pre('wq')
        self.split3(self.gather_c, lambda: None)
        a(f"""
        s_cmp_lg_u32 {sIT}, 0
        s_cbranch_scc1 L_out
        s_add_u32 {sL}, {sL}, 1
        s_mov_b32 {sIT}, 1
        s_mov_b32 {sSTI}, {{NST}}
        s_waitcnt lgkmcnt(0)
        s_barrier
        s_branch L_top
        """)
        for c in self.cold: c()
        a.label('L_out')
        self.srd('out')
        a(f"""
        s_mul_i32 {t0}, {sS}, 160
        buffer_store_short v20, v60, {SRDT}, {t0} offen
        """)
        a.label('L_exit')
        if cfg.stamps:
            self.stamp('end')
            a(f"""
            s_cmp_lg_u32 {sW}, 0
            s_cbranch_scc1 L_end
            s_lshl_b32 {t0}, s2, 8
            s_add_u32 {t0}, {t0}, 0x8000000
            v_lshl_add_u32 v1, v0, 2, {t0}
            global_store_dword v1, v63, s[90:91]
            s_cmp_lg_u32 s2, 0
            s_cbranch_scc1 L_end
            v_add_u32 v1, 1, v0
            v_mul_u32_u24 v2, 43, v1
            v_lshrrev_b32 v2, 7, v2
            v_mul_u32_u24 v3, 3, v2
            v_cmp_eq_u32 vcc, v3, v1
            v_lshlrev_b32 v2, 2, v2
            v_readlane_b32 {t0}, v63, 0
            s_or_b32 vcc_lo, vcc_lo, 1
            s_and_b32 vcc_hi, vcc_hi, 0xfff
            v_subrev_u32 v63, {t0}, v63
            s_mov_b64 exec, vcc
            global_store_dword v2, v63, s[88:89] offset:4
            """)
        a.label('L_last')
        a.label('L_end')
        txt = a.finalize().replace('{NST}', str(self.nstamp - 2))
        return wrap(txt, 256, 256, LDS_BYTES)

    def vwait_split(self, tag):
        ng = tag in self.vm['g']; n3 = tag in self.vm['3']
        if not (ng or n3): return
        self.split3(lambda: self.vwait(tag, 'g'), lambda: self.vwait(tag, '3'))

if __name__ == '__main__':
    import argparse, json
    ap = argparse.ArgumentParser()
    ap.add_argument('-o', default='cdna_kernels/' + NAME + '.s')
    ap.add_argument('--stamps', action='store_true')
    ap.add_argument('--slow', action='store_true')
    ap.add_argument('--set', action='append', default=[])
    args = ap.parse_args()
    cfg = Cfg()
    cfg.stamps = args.stamps; cfg.force_slow = args.slow
    for kv in args.set:
        k, v = kv.split('=', 1)
        if '.' in k:
            d, kk = k.split('.'); dd = dict(getattr(cfg, d)); dd[kk] = eval(v); setattr(cfg, d, dd)
        else:
            setattr(cfg, k, eval(v))
    g = Gen(cfg)
    txt = g.build()
    open(args.o, 'w').write(txt)
    if cfg.stamps:
        json.dump(g.names, open(args.o + '.names.json', 'w'))
    print('wrote', args.o, len(txt), 'bytes')
```

```python
import sys
sys.path.insert(0, 'dev')
from gen import *

class LT(Gen):
    def build(self, wq=True, reads=True, st=False, atom=False, w3only=False):
        a = self.a; cfg = self.cfg
        a(f"""
        s_cmp_ge_u32 s2, 256
        s_cbranch_scc1 L_end
        s_load_dwordx16 s[64:79], s[0:1], 0
        s_load_dwordx8 s[80:87], s[0:1], 64
        s_load_dwordx4 s[88:91], s[0:1], 96
        v_lshrrev_b32 v1, 6, v0
        v_and_b32 v0, 63, v0
        v_readfirstlane_b32 {sW}, v1
        s_and_b32 {t0}, s2, 7
        s_lshl_b32 {t0}, {t0}, 5
        s_lshr_b32 {t1}, s2, 3
        s_add_u32 {sCU}, {t0}, {t1}
        s_lshr_b32 {sH}, {sCU}, 3
        s_and_b32 {sS}, {sCU}, 7
        s_lshr_b32 {sKB}, {sCU}, 2
        s_and_b32 {sCB}, {sCU}, 3
        s_mov_b32 {sSTI}, 0
        s_mov_b32 {sIT}, 0
        s_mul_i32 {sKV}, {sCU}, 196608
        s_mul_i32 {t0}, {sW}, 49152
        s_add_u32 {sKV}, {sKV}, {t0}
        s_mov_b32 s42, -1
        s_mov_b32 s43, 0x0fffffff
        s_mov_b64 {ML0}, 1
        v_mov_b32 v63, 0
        """)
        self.kv_addr()
        a('s_waitcnt lgkmcnt(0)')
        self.stamp('start')
        self.srd('k', 12); self.srd('v', 16); self.srd('ws', 20, WS_BYTES)
        if w3only:
            with self.w3only():
                self.window('x', 1, 2)
                a('s_waitcnt vmcnt(0)')
            a('s_barrier')
            self.stamp('w3'); self.stamp('w3'); self.stamp('w3')
        else:
            if wq: self.dma_all_wq()
            D = cfg.depth
            for U in range(min(2, D)): self.kv_issue(U)
            if wq: self.vwait('wq'); a('s_barrier')
            if st:
                a(f'v_lshlrev_b32 v5, 2, v0\ns_lshl_b32 {t0}, {sCU}, 11\ns_lshl_b32 {t1}, {sW}, 8\ns_add_u32 {t0}, {t0}, {t1}')
                a(f'buffer_store_dword v5, v5, {SRDW}, {t0} offen sc1\nbuffer_store_dword v5, v5, {SRDW}, {t0} offen offset:1024 sc1')
                self.vissue('st'); self.vissue('st')
            for U in range(2, D): self.kv_issue(U)
            self.k_raddr()
            if atom:
                self.srd('dbg')
                self.vwait('st')
                a(f"""
                s_barrier
                v_mov_b32 v1, 1
                v_mov_b32 v2, 0
                s_cmp_lg_u32 {sW}, 0
                s_cbranch_scc1 L_noat
                s_mov_b64 exec, {ML0}
                buffer_atomic_add v1, v2, {SRDT}, 0 offen sc1
                s_mov_b64 exec, -1
                L_noat:
                """)
            if not reads: self.kv_read = lambda U: None
            for s_ in range(16):
                if s_ == 8: self.v_raddr(1)
                self.kv_step(s_)
                if s_ in (1, 7): self.stamp('u')
            a('s_waitcnt vmcnt(0) lgkmcnt(0)\ns_barrier')
            self.stamp('end')
        a(f"""
        s_cmp_lg_u32 {sW}, 0
        s_cbranch_scc1 L_end
        s_lshl_b32 {t0}, s2, 8
        s_add_u32 {t0}, {t0}, 0x8000000
        v_lshl_add_u32 v1, v0, 2, {t0}
        global_store_dword v1, v63, s[90:91]
        """)
        a.label('L_end')
        return wrap(a.finalize(), 256, 256, LDS_BYTES)

T = [('a_nowq_d3', dict(wq=False), dict(depth=3)), ('b_nowq_d3_nord', dict(wq=False, reads=False), dict(depth=3)),
     ('c_wq_d3', dict(), dict(depth=3)), ('d_wq_d2', dict(), dict(depth=2)), ('e_wq_d4', dict(), dict(depth=4)),
     ('f_st', dict(st=True), dict(depth=3)), ('g_atom', dict(st=True, atom=True), dict(depth=3)),
     ('h_wq_d2_cap7', dict(), dict(depth=2, cap=7, capfrom=2)),
     ('w3_36', dict(w3only=True), dict(win=dict(x=[('wuk', 0, 36)]), cap3=50)),
     ('w3_126', dict(w3only=True), dict(win=dict(x=[('wqb', 0, 30), ('wuk', 0, 36), ('ckv', 0, 24), ('wuv', 0, 36)]), cap3=50)),
     ('w3_126c24', dict(w3only=True), dict(win=dict(x=[('wqb', 0, 30), ('wuk', 0, 36), ('ckv', 0, 24), ('wuv', 0, 36)]), cap3=24)),
     ]
for nm, kw, cf in T:
    cfg = Cfg(); cfg.stamps = True
    for k, v in cf.items(): setattr(cfg, k, v)
    open(f'lu_{nm}.s', 'w').write(LT(cfg).build(**kw))
```

```python
import sys, math, struct
sys.path.insert(0, 'dev')
from gasm import *

def f2u(x): return struct.unpack('<I', struct.pack('<f', x))[0]

class Cfg:
    stamps = False
    force_slow = False
    dly = dict(a=3, b=3, g=4, p=6, c=7, e=10, f=17)
    warm_code = True
    cap = 7
    cap2 = 7
    lim = 0x100000
    noclr1 = False
    fine = ()
    touch = True
    big0 = False
    ntkv = True
    ntw = True
    ride = 12
    cap3x = 2
    early = 1
    lt = False
    skip = ()
    shadow0 = False
    ldi = ' sc1'
    ldx = ' sc1'
    c1 = 6; c2 = 8; c3 = 11
    seg = dict(v13=[('wo', 0, 4)], v14=[('wo', 4, 8)], b1=[('wqb', 0, 8)], b2=[('ckv', 0, 6)], c1=[('wuk', 0, 0), ('wuv', 0, 3)],
               c2=[('wuv', 3, 9)], a1=[('wob', 0, 8)])

sFAST = 's3'
sCU, sH, sS, sKB, sCB, sW, sIT, sKV = 's4', 's5', 's6', 's7', 's8', 's9', 's10', 's11'
SRDK, SRDV, SRDW, SRDT = 's[12:15]', 's[16:19]', 's[20:23]', 's[24:27]'
t0, t1, t2, t3, t4, t5, t6, t7 = 's28', 's29', 's30', 's31', 's32', 's33', 's34', 's35'
M48, M16, ML0, M60, M32, MXV, MQ, MABS = 's[36:37]', 's[38:39]', 's[40:41]', 's[42:43]', 's[50:51]', 's[58:59]', 's[60:61]', 's[92:93]'
sC, sYP, sYG, sLIM, sCNT, sSTI = 's44', 's45', 's46', 's47', 's48', 's49'
sHB, sACC, u0, u1, u2, sRING, sEP = 's52', 's53', 's54', 's55', 's56', 's57', 's62'
sEPB, sEG, sPO, sFP, sFG, sFSP, sFSG = 's63', 's94', 's95', 's98', 's99', 's100', 's101'
sUH, sW3O = 's0', 's1'
P = {n: 64 + 2 * i for i, n in enumerate(['x', 'k', 'v', 'wq', 'wo', 'bx', 'ckv', 'wqb', 'wuk', 'wuv', 'wob', 'out', 'dbg', 'ws'])}
SZ = dict(x=1280, k=50331648, v=50331648, wq=7864320, wo=7864320, ckv=6291456, wqb=7864320, wuk=9437184, wuv=9437184, wob=7864320, out=1280)

L_WO, L_WQB, L_WOB, L_WUV, L_CKV, L_SCR = 0, 30720, 61440, 92160, 129024, 153600
L_SX = L_SCR; L_OW = L_SCR; L_PB = L_SCR + 4096; L_ML = L_SCR + 5120
L_XS = L_SCR + 8192; L_ONES = L_XS + 192; L_ZERO = L_ONES + 160
L_QS = L_ZERO + 160; L_US = L_QS + 384; L_SCAL = L_US + 192; L_JUNK = L_SCAL + 32
LDS_BYTES = 163840

KiB, MiB = 1 << 10, 1 << 20
HSTR = 65536; B_QA, B_O, B_QB, B_G, B_CA, B_CB = 0, 8192, 16384, 24576, 32768, 40960
W_H = 0; IT_H = 2 * MiB
W_Y = 4 * MiB
W_E = W_Y + 512 * KiB
W_FS = W_E + 128 * KiB
W_FL = W_FS + 128 * KiB
W_EP = W_FL + 64 * KiB
W_P = 5 * MiB
W_F = 9 * MiB
WS_BYTES = 16 * MiB
OOB = 64 * MiB
SCALE = 192 ** -0.5 * math.log2(math.e)
DP = 'row_mask:0xf bank_mask:0xf'
vCSA, vCSB = 61, 62
SK = 44
MAP_TR_SA = {5: 6, 3: 5, 1: 4, 2: 3, 4: 2, 0: 1}
MAP_NAT_SA = {5: 6, 4: 5, 1: 4, 3: 3, 2: 2, 0: 1}

class Gen:
    def __init__(self, cfg):
        self.cfg = cfg
        self.a = Asm()
        self.vm = {'g': [], '3': []}
        self.nstamp = 0; self.names = []; self.side = []; self.npoll = 0
        self.SR = 46; self.SV = 45

    def vissue(self, tag, who='g3'):
        for w in who: self.vm[w].append(tag)
    def vwait(self, tag, who='g3'):
        n = 63; found = False
        for w in who:
            idx = [i for i, t in enumerate(self.vm[w]) if t == tag]
            if idx: found = True; n = min(n, len(self.vm[w]) - 1 - idx[-1])
        if not found: return
        self.a(f's_waitcnt vmcnt({n})')
        for w in who: self.vm[w] = self.vm[w][max(0, len(self.vm[w]) - n):] if n else []
    def vdrain(self, who='g'):
        for w in who: self.vm[w] = []
    SLOW = ('st', 'clr', 'clrF', 'fl', 'dr', 'cnt', 'pl')
    def capn(self, n, w):
        q = self.vm[w]
        if w == '3': n += self.cfg.cap3x
        for i in range(max(0, len(q) - self.cfg.ride), len(q)):
            if q[i] in self.SLOW:
                while i > 0 and q[i - 1] in self.SLOW: i -= 1
                return max(n, len(q) - i)
        return n
    def vcap(self, n, who='g3'):
        def one(w, m):
            if len(self.vm[w]) > m:
                self.a(f's_waitcnt vmcnt({m})'); self.vm[w] = self.vm[w][len(self.vm[w]) - m:]
        ns = {w: self.capn(n, w) for w in who}
        if len(who) == 1: return one(who, ns[who])
        hi, lo = max(ns.values()), min(ns.values())
        wl = 'g' if ns['g'] == lo else '3'
        if hi != lo and len(self.vm[wl]) > lo:
            with self.skip(f's_cmp_{"eq" if wl == "g" else "lg"}_u32 {sW}, 3'): one(wl, lo)
        if max(len(self.vm[w]) for w in who) > hi:
            self.a(f's_waitcnt vmcnt({hi})')
            for w in who: self.vm[w] = self.vm[w][max(0, len(self.vm[w]) - hi):]
    def vwait_split(self, tag):
        if tag in self.vm['g'] or tag in self.vm['3']:
            self.split3(lambda: self.vwait(tag, 'g'), lambda: self.vwait(tag, '3'))

    def stamp(self, name=''):
        if not self.cfg.stamps: return
        self.a(f's_memrealtime s[96:97]\ns_add_u32 m0, {sSTI}, {self.nstamp}\ns_waitcnt lgkmcnt(0)\nv_writelane_b32 v63, s96, m0')
        self.names.append(name); self.nstamp += 1

    def srd(self, name, dst=24, nbytes=None):
        p = P[name]
        self.a(f's_mov_b32 s{dst}, s{p}\ns_mov_b32 s{dst+1}, s{p+1}\ns_mov_b32 s{dst+2}, {nbytes if nbytes is not None else SZ[name]}\ns_mov_b32 s{dst+3}, 0x00020000')

    def aside(self, label, ret=None):
        g = self
        class C:
            def __enter__(s):
                s.save = g.a.items; g.a.items = []; g.a.label(label)
            def __exit__(s, *e):
                if ret: g.a(f's_branch {ret}')
                g.side.append(g.a.items); g.a.items = s.save
        return C()
    def ool(self, take_if):
        lx, lr = self.a.newlabel('Lx'), self.a.newlabel('Lr')
        self.a(f'{take_if}\ns_cbranch_scc1 {lx}'); self.a.label(lr)
        return self.aside(lx, lr)
    def it0(self): return self.ool(f's_cmp_eq_u32 {sIT}, 0')
    def w3only(self): return self.ool(f's_cmp_eq_u32 {sW}, 3')
    def skip(self, skip_if):
        g = self
        class C:
            def __enter__(s): s.l = g.a.newlabel('Ls'); g.a(f'{skip_if}\ns_cbranch_scc1 {s.l}')
            def __exit__(s, *e): g.a.label(s.l)
        return C()
    def it1(self): return self.skip(f's_cmp_eq_u32 {sIT}, 0')
    def either(self, take_if, main, alt):
        lx, lr = self.a.newlabel('Lx'), self.a.newlabel('Lr')
        self.a(f'{take_if}\ns_cbranch_scc1 {lx}')
        main()
        self.a.label(lr)
        with self.aside(lx, lr): alt()
    def split3(self, g, w3): self.either(f's_cmp_eq_u32 {sW}, 3', g, w3)
    def emit(self, lines):
        for l in lines: self.a(l)

    def bitperm(self, dst, src, mp, tmp, add=None):
        out = []; groups = {}
        for sb, db in mp.items(): groups.setdefault(db - sb, []).append(sb)
        first = True
        for sh, bits in sorted(groups.items()):
            mask = sum(1 << b for b in bits)
            out.append(f'v_and_b32 v{dst if first else tmp}, {mask}, v{src}')
            if first:
                if sh > 0: out.append(f'v_lshlrev_b32 v{dst}, {sh}, v{dst}')
                elif sh < 0: out.append(f'v_lshrrev_b32 v{dst}, {-sh}, v{dst}')
            elif sh >= 0: out.append(f'v_lshl_or_b32 v{dst}, v{tmp}, {sh}, v{dst}')
            else: out += [f'v_lshrrev_b32 v{tmp}, {-sh}, v{tmp}', f'v_or_b32 v{dst}, v{tmp}, v{dst}']
            first = False
        if add is not None: out.append(f'v_add_u32 v{dst}, {add}, v{dst}')
        return out

    def store_intra(self, lines, who='g3', tag='st', precmp=False):
        self.either('' if precmp else f's_cmp_eq_u32 {sFAST}, 0',
                    lambda: self.emit([l.format(sc='') for l in lines]), lambda: self.emit([l.format(sc=' sc1') for l in lines]))
        for l in lines:
            if l.startswith('buffer'): self.vissue(tag, who)

    def exact_poll(self, loads, regs, tmp):
        a = self.a
        lp, ld = a.newlabel('Lpoll'), a.newlabel('Lgot')
        a(f's_mov_b32 {sCNT}, 0'); a.label(lp)
        self.emit(loads); a('s_waitcnt vmcnt(0)')
        r = list(regs)
        a(f'v_max3_u32 v{tmp}, v{r[0]}, v{r[1]}, v{r[2]}'); r = r[3:]
        while r:
            if len(r) >= 2: a(f'v_max3_u32 v{tmp}, v{tmp}, v{r[0]}, v{r[1]}'); r = r[2:]
            else: a(f'v_max_u32 v{tmp}, v{tmp}, v{r[0]}'); r = r[1:]
        a(f"""
        v_cmp_eq_u32 vcc, -1, v{tmp}
        s_cbranch_vccz {ld}
        s_add_u32 {sCNT}, {sCNT}, 1
        s_cmp_lt_u32 {sCNT}, {sLIM}
        s_cbranch_scc1 {lp}
        s_mov_b32 {sLIM}, 0
        """)
        a.label(ld)

    def spec_poll(self, loads, regs, tmp, delay, compute, chk, mid=None, first0=None, redo=None, undo=None, who='g'):
        a = self.a
        lc, lok, lcold = a.newlabel('Lc'), a.newlabel('Lok'), a.newlabel('Lcold')
        pid = self.npoll; self.npoll += 1
        if delay: a(f's_sleep {delay}')
        fl = self.cfg.ldi if pid in (0, 1, 3, 5, 7) else self.cfg.ldx
        self.emit([l.replace(' sc1', fl) for l in loads])
        for _ in loads: self.vissue('pl', who)
        a(f's_mov_b32 {sACC}, 0')
        if mid: mid()
        if first0:
            lx = a.newlabel('Lx')
            a(f's_cmp_eq_u32 {sIT}, 0\ns_cbranch_scc1 {lx}')
            with self.aside(lx, lc): first0(lc)
        else: self.vdrain(who)
        if pid in self.cfg.fine: self.stamp(f'mid{pid}')
        a('s_waitcnt vmcnt(0)')
        if pid in self.cfg.fine: self.stamp(f'got{pid}')
        a.label(lc)
        compute()
        a(f'v_cmp_u_f32 vcc, v{chk[0]}, v{chk[1]}\ns_cbranch_vccnz {lcold}')
        a.label(lok)
        with self.aside(lcold, lc):
            a(f's_cmp_lg_u32 {sACC}, 0\ns_cbranch_scc1 {lok}\ns_waitcnt lgkmcnt(0)')
            if undo: undo()
            self.exact_poll(loads, regs, tmp)
            if self.cfg.stamps: a(f's_add_u32 {sCNT}, {sCNT}, 1\ns_mul_i32 {sCNT}, {sCNT}, {sIT}\nv_writelane_b32 v63, {sCNT}, {50+pid}')
            if redo: redo()
            a(f's_mov_b32 {sACC}, 1')

    def allrows(self, op, r, t):
        return [f'v_mov_b32 v{t}, v{r}', f'v_permlane16_swap_b32 v{r}, v{t}', f'{op} v{r}, v{r}, v{t}',
                f'v_mov_b32 v{t}, v{r}', f'v_permlane32_swap_b32 v{r}, v{t}', f'{op} v{r}, v{r}, v{t}']
    def idx(self, dst):
        return [f'v_and_b32 v{dst}, 1, v0', f'v_mul_u32_u24 v{dst}, 0xaaaa, v{dst}', f'v_or_b32 v{dst}, 0x4444, v{dst}']
    def merge(self, dst, accs, lo=0):
        return [f'v_add_f32_dpp v{dst}, v{r+lo}, v{r+lo+1} quad_perm:[0,1,2,3] row_mask:{1<<g:#x} bank_mask:0xf' for g, r in enumerate(accs)]
    def sa_addr(self, dst, tmp, base):
        o = [f'v_and_b32 v{tmp}, 1, v0', f'v_lshlrev_b32 v{tmp}, 4, v{tmp}', f'v_lshrrev_b32 v{dst}, 4, v0', f'v_lshl_add_u32 v{dst}, v{dst}, 5, v{tmp}']
        if base is not None: o.append(f'v_add_u32 v{dst}, {base}, v{dst}')
        return o
    def sum8(self, r):
        return [f'v_pk_add_f32 v[{r}:{r+1}], v[{r}:{r+1}], v[{r+2}:{r+3}]', f'v_pk_add_f32 v[{r+4}:{r+5}], v[{r+4}:{r+5}], v[{r+6}:{r+7}]',
                f'v_pk_add_f32 v[{r}:{r+1}], v[{r}:{r+1}], v[{r+4}:{r+5}]', f'v_add_f32 v{r}, v{r}, v{r+1}']
    def pub_voff(self, dst, tmp, scol):
        return [f'v_add_u32 v{dst}, {scol}, v0', f'v_lshrrev_b32 v{tmp}, 6, v{dst}', f'v_mul_u32_u24 v{tmp}, 448, v{tmp}',
                f's_lshl_b32 {u1}, {sS}, 8', f's_lshl_b32 {u2}, {sW}, 11', f's_sub_u32 {u1}, {u1}, {u2}', f's_add_u32 {u1}, {u1}, 8192',
                f'v_add_lshl_u32 v{dst}, v{dst}, v{tmp}, 2', f'v_add_u32 v{dst}, {u1}, v{dst}']

    G192 = dict(wq=(L_WO, 12288, 30), wqb=(L_WQB, 12288, 30), wuv=(L_WUV, 12288, 36), ckv=(L_CKV, 1536, 24))
    def base192(self, name, dst):
        if name in ('wq', 'wqb'): return f's_mul_i32 {dst}, {sS}, {80*12288}\ns_mul_i32 {u1}, {sH}, 384\ns_add_u32 {dst}, {dst}, {u1}'
        if name == 'wuv': return f's_mul_i32 {dst}, {sS}, {96*12288}\ns_mul_i32 {u1}, {sH}, 384\ns_add_u32 {dst}, {dst}, {u1}'
        return f's_mul_i32 {dst}, {sKB}, {64*1536}\ns_mul_i32 {u1}, {sCB}, 384\ns_add_u32 {dst}, {dst}, {u1}'
    def voff192(self, dst, tmp, rstride):
        self.a(f"""
        v_lshrrev_b32 v{dst}, 3, v0
        v_and_b32 v{tmp}, 6, v{dst}
        v_xor_b32 v{tmp}, v{tmp}, v0
        v_and_b32 v{tmp}, 7, v{tmp}
        v_mul_u32_u24 v{dst}, {rstride}, v{dst}
        v_lshl_add_u32 v{dst}, v{tmp}, 4, v{dst}
        """)
    def dma192(self, name, i0, i1, va, vb, who, cap):
        a = self.a
        lds, rs, nblk = self.G192[name]
        self.srd(name); a(self.base192(name, u0)); self.voff192(va, vb, rs)
        for i in range(i0, i1):
            a(f's_add_u32 {u1}, {sW}, {4*i}' if 4 * i + 3 < nblk else f's_and_b32 {u1}, {sW}, 1\ns_add_u32 {u1}, {u1}, {4*i}')
            a(f"""
            s_lshl_b32 {u2}, {u1}, 10
            s_add_u32 m0, {u2}, {lds}
            s_mul_i32 {u2}, {u1}, 43
            s_lshr_b32 {u2}, {u2}, 7
            s_mul_i32 {u2}, {u2}, {8*rs - 384}
            s_lshl_b32 {u1}, {u1}, 7
            s_add_u32 {u2}, {u2}, {u1}
            s_add_u32 {u2}, {u2}, {u0}
            """)
            if cap: self.vcap(cap, who)
            a(f'buffer_load_dwordx4 v{va}, {SRDT}, {u2} offen nt lds'); self.vissue(name, who)
    def dmawo(self, name, i0, i1, va, vb, who, cap):
        a = self.a
        self.srd(name)
        a(f"""
        v_mul_u32_u24 v{va}, 205, v0
        v_lshrrev_b32 v{va}, 11, v{va}
        v_mul_u32_u24 v{vb}, 1120, v{va}
        v_lshl_add_u32 v{va}, v0, 4, v{vb}
        s_mul_i32 {u0}, {sH}, {192*1280}
        s_mul_i32 {u1}, {sS}, 160
        s_add_u32 {u0}, {u0}, {u1}
        s_mul_i32 {u1}, {sW}, {48*1280}
        s_add_u32 {u0}, {u0}, {u1}
        s_mul_i32 {u1}, {sW}, {48*160}
        s_mov_b64 exec, {M60}
        """)
        for i in range(i0, i1):
            if cap: self.vcap(cap, who)
            a(f's_add_u32 m0, {u1}, {(L_WO if name == "wo" else L_WOB) + i*960}\ns_add_u32 {u2}, {u0}, {i*6*1280}\nbuffer_load_dwordx4 v{va}, {SRDT}, {u2} offen nt lds')
            self.vissue(name, who)
        a('s_mov_b64 exec, -1')
    def uk_direct(self, va, vb, who, cap):
        a = self.a
        self.srd('wuk')
        a(f"""
        v_and_b32 v{va}, 15, v0
        v_lshrrev_b32 v{vb}, 4, v0
        v_mul_u32_u24 v{va}, 12288, v{va}
        v_lshl_add_u32 v{va}, v{vb}, 4, v{va}
        s_lshl_b32 {u1}, {sW}, 1
        s_min_u32 {u1}, {u1}, 5
        s_mul_i32 {u0}, {sS}, 6
        s_add_u32 {u0}, {u0}, {u1}
        s_mul_i32 {u0}, {u0}, {16*12288}
        s_mul_i32 {u1}, {sH}, 384
        s_add_u32 {u0}, {u0}, {u1}
        """)
        assert cap
        if 'g' in who:
            with self.skip(f's_cmp_ge_u32 {sW}, 2'):
                a(f's_add_u32 {u1}, {u0}, {16*12288}')
                for u in range(6):
                    a(f's_waitcnt vmcnt({cap})\nbuffer_load_dwordx4 a[{216+4*u}:{219+4*u}], v{va}, {SRDT}, {u1} offen offset:{64*u} nt')
        for u in range(6):
            a(f's_waitcnt vmcnt({cap})')
            for w in who: self.vm[w] = self.vm[w][max(0, len(self.vm[w]) - cap):]
            a(f'buffer_load_dwordx4 a[{192+4*u}:{195+4*u}], v{va}, {SRDT}, {u0} offen offset:{64*u} nt'); self.vissue('wuk', who)
    def seg(self, key, va, vb, who='g3', cap=True):
        cp = self.cfg.cap2 if cap else None
        for (name, i0, i1) in self.cfg.seg.get(key, []):
            if name == 'wuk': self.uk_direct(va, vb, who, cp)
            elif name in ('wo', 'wob'): self.dmawo(name, i0, i1, va, vb, who, cp)
            else: self.dma192(name, i0, i1, va, vb, who, cp)
    def behind(self, key, va, vb):
        if not self.cfg.seg.get(key): return None
        def f(lc):
            self.seg(key, va, vb, 'g', cap=False); self.vwait('pl', 'g')
        return f

    def kv_addr(self):
        self.voff192(self.SV, 1, 384)
        self.emit(self.bitperm(1, 0, {3: 4, 4: 2, 5: 1}, 2))
        self.a(f"""
        v_mul_u32_u24 v1, 384, v1
        v_and_b32 v2, 0x70, v{self.SV}
        v_add_u32 v{SK}, v1, v2
        s_mul_i32 {sRING}, {sW}, 18432
        s_add_u32 {sRING}, {sRING}, {L_SCR - 4*18432}
        """)
    def v_raddr(self, tmp):
        self.emit(self.tr192_addr(self.SR, tmp))
        self.a(f'v_add_u32 v{self.SR}, {sRING}, v{self.SR}')
        for t in range(1, 4): self.a(f'v_xor_b32 v{self.SR+t}, {32*t}, v{self.SR}')
    def kv_issue(self, U, who='g3'):
        for b in range(6):
            beta, sig = divmod(b, 3)
            off = ((32 * (U >> 1) + 8 * beta + (U & 1)) if U < 8 else (16 * (U - 8) + 8 * beta)) * 384 + sig * 128
            if U >= 2: self.vcap(self.cfg.cap, who)
            self.a(f's_add_u32 m0, {sRING}, {(U%3)*6144 + b*1024}\ns_add_u32 {t7}, {sKV}, {off}\n'
                   f'buffer_load_dwordx4 v{SK if U < 8 else self.SV}, {SRDK if U < 8 else SRDV}, {t7} offen nt lds')
            self.vissue(f'U{U}', who)
    def kv_step(self, s_, who='g3'):
        a = self.a
        if who == 'g3' and self.vm['g'] != self.vm['3']: self.vwait_split(f'U{s_}')
        else: self.vwait(f'U{s_}', who)
        a('s_waitcnt lgkmcnt(0)')
        sl = (s_ % 3) * 6144
        if s_ < 8:
            for u in range(6): a(f'ds_read_b128 a[{24*s_+4*u}:{24*s_+4*u+3}], v{self.SR + (u & 1)} offset:{sl + (u//2)*1024}')
        else:
            q = s_ - 8
            for t in range(12):
                r = 64 + 96 * (q >> 2) + 8 * t + 2 * (q & 3)
                a(f'ds_read_b64_tr_b16 v[{r}:{r+1}], v{self.SR + (t & 3)} offset:{sl + (t>>2)*1024}')
        if s_ + 2 < 16: self.kv_issue(s_ + 2, who)

    def tr192_addr(self, dst, tmp, pairmode=False):
        o = [f'v_bfe_u32 v{dst}, v0, 2, 3', f'v_and_b32 v{tmp}, 6, v{dst}', f'v_lshlrev_b32 v{dst}, 7, v{dst}',
             f'v_lshl_add_u32 v{dst}, v{tmp}, 4, v{dst}', f'v_and_b32 v{tmp}, 3, v0']
        o += [f'v_lshl_add_u32 v{dst}, v{tmp}, 3, v{dst}'] if not pairmode else [f'v_lshlrev_b32 v{tmp}, 4, v{tmp}', f'v_xor_b32 v{dst}, v{dst}, v{tmp}']
        return o + [f'v_lshrrev_b32 v{tmp}, 5, v0', f'v_mul_u32_u24 v{tmp}, 3072, v{tmp}', f'v_add_u32 v{dst}, v{dst}, v{tmp}']
    def tile_addr(self, dst, base, stile, lds_base):
        self.a(f"""
        s_and_b32 {u1}, {stile}, 3
        s_lshl_b32 {u1}, {u1}, 5
        s_lshr_b32 {u2}, {stile}, 2
        s_lshl_b32 {u2}, {u2}, 10
        s_add_u32 {u2}, {u2}, {lds_base}
        v_xor_b32 v{dst}, {u1}, v{base}
        v_add_u32 v{dst}, {u2}, v{dst}
        """)
    def row192_addr(self, dst, dst2, tmp, sbase):
        self.a(f"""
        v_and_b32 v{dst}, 7, v0
        v_and_b32 v{dst2}, 6, v0
        v_lshrrev_b32 v{tmp}, 4, v0
        v_xor_b32 v{dst2}, v{dst2}, v{tmp}
        v_lshlrev_b32 v{dst}, 7, v{dst}
        v_lshl_add_u32 v{dst}, v{dst2}, 4, v{dst}
        v_bfe_u32 v{dst2}, v0, 3, 1
        v_mul_u32_u24 v{dst2}, 3072, v{dst2}
        v_add3_u32 v{dst}, v{dst}, v{dst2}, {sbase}
        v_xor_b32 v{dst2}, 64, v{dst}
        """)

    WQB_ = ['a[240:247]', 'a[248:255]', 'a[216:223]', 'a[224:231]']
    WQT_ = ['v[56:57]', 'v[58:59]', 'a[232:233]', 'a[234:235]']

    def clr_regs(self, r):
        self.a(f'v_mov_b32 v{r}, -1\nv_mov_b32 v{r+1}, -1\nv_mov_b32 v{r+2}, -1\nv_mov_b32 v{r+3}, -1\nv_lshlrev_b32 v{r+4}, 4, v0')
    def box_voff(self, dst, tmp):
        self.a(f"""
        v_lshrrev_b32 v{tmp}, 4, v0
        v_mul_u32_u24 v{tmp}, 1792, v{tmp}
        v_lshl_add_u32 v{dst}, v0, 4, v{tmp}
        s_lshl_b32 {u1}, {sS}, 8
        s_mul_i32 {u2}, {sS}, 224
        v_add_u32 v{dst}, {u1}, v{dst}
        v_subrev_u32 v{tmp}, {u2}, v{dst}
        v_cmp_gt_u32 vcc, 48, v0
        s_sub_u32 {u0}, {sHB}, 6144
        v_cndmask_b32 v{dst}, v{tmp}, v{dst}, vcc
        """)
    def clear_boxes(self, offs, r, tag='clr'):
        a = self.a
        self.clr_regs(r); self.box_voff(r + 5, r + 6)
        ts = [t0, t1, t2, t3]
        for o, t in zip(offs, ts): a(f's_add_u32 {t}, {u0}, {o}')
        a('s_mov_b32 exec_hi, 0x3ffff')
        for o, t in zip(offs, ts):
            a(f'buffer_store_dwordx4 v[{r}:{r+3}], v{r+5}, {SRDW}, {t} offen sc1'); self.vissue(tag, '3')
        a('s_mov_b64 exec, -1')
    def touch(self, offs, r, withP):
        a = self.a
        with self.skip(f's_cmp_eq_u32 {sFAST}, 0'):
            self.box_voff(r + 5, r + 6)
            a('s_mov_b32 exec_hi, 0x3ffff')
            for o in offs:
                a(f's_add_u32 {t0}, {u0}, {o}\nbuffer_load_dword v62, v{r+5}, {SRDW}, {t0} offen sc1')
            a('s_mov_b64 exec, -1')
            if withP:
                a(f's_sub_u32 {t0}, {sPO}, 6144\nv_lshlrev_b32 v{r+5}, 7, v0\nbuffer_load_dword v62, v{r+5}, {SRDW}, {t0} offen sc1')

    def clear_cross_small(self, r, yoffs, tag='clr'):
        a = self.a
        a('s_mov_b64 exec, 0xfffff')
        for o in yoffs:
            a(f's_add_u32 {t0}, {sYP}, {o - 192}\nbuffer_store_dwordx4 v[{r}:{r+3}], v{r+4}, {SRDW}, {t0} offen sc1'); self.vissue(tag, '3')
    def clear_EFS(self, r, it=0, tag='clr'):
        a = self.a
        a(f"""
        s_add_u32 {t0}, {sEPB}, {(65536*it - 160) & 0xffffffff}
        s_mov_b64 exec, 0xfff
        buffer_store_dwordx4 v[{r}:{r+3}], v{r+4}, {SRDW}, {t0} offen sc1
        s_lshl_b32 {t0}, {sCU}, 8
        s_add_u32 {t0}, {t0}, {W_FS + 65536*it}
        s_mov_b64 exec, {M16}
        buffer_store_dwordx4 v[{r}:{r+3}], v{r+4}, {SRDW}, {t0} offen sc1
        s_mov_b64 exec, -1
        """)
        self.vissue(tag, '3'); self.vissue(tag, '3')
    def clear_P(self, r, it=0, tag='clr'):
        self.a(f's_add_u32 {t1}, {sPO}, {(2*MiB*it - 6144) & 0xffffffff}\ns_add_u32 {t2}, {t1}, 4096')
        for i in range(8):
            self.a(f'buffer_store_dwordx4 v[{r}:{r+3}], v{r+4}, {SRDW}, {[t1,t2][i>>2]} offen offset:{(i&3)*1024} sc1'); self.vissue(tag, '3')
    def clear_F(self, r, it=0):
        a = self.a
        a(f's_and_b32 {t1}, {sH}, 1\ns_mul_i32 {t1}, {t1}, {12288-64}\ns_add_u32 {t0}, {sFG}, {t1}\ns_add_u32 {t0}, {t0}, {(3*MiB*it - 384) & 0xffffffff}')
        for i in range(12):
            a(f'buffer_store_dwordx4 v[{r}:{r+3}], v{r+4}, {SRDW}, {t0} offen offset:{(i&3)*1024} sc1'); self.vissue('clrF', '3')
            if i & 3 == 3: a(f's_add_u32 {t0}, {t0}, 4096')

    def q_pre(self, which):
        a = self.a
        self.emit(self.sa_addr(1, 3, None))
        a(f"""
        v_and_b32 v3, 2, v0
        v_mul_u32_u24 v3, {(L_ONES - L_XS) // 2}, v3
        v_add_u32 v3, {L_XS}, v3
        v_add_u32 v1, v1, v3
        v_lshrrev_b32 v2, 4, v0
        v_lshl_add_u32 v2, v2, 3, v3
        v_add_u32 v2, 128, v2
        v_and_b32 v3, 1, v0
        v_cmp_eq_u32 vcc, 1, v3
        v_mov_b32 v3, {L_ZERO}
        v_cndmask_b32 v2, v2, v3, vcc
        """)
        self.emit(self.idx(4))
        if which == 'wq':
            a(f's_lshl_b32 {u0}, {sW}, 5\ns_lshl_b32 {u1}, {sW}, 6\ns_sub_u32 {u1}, {u1}, 64\ns_cmp_lt_u32 {sW}, 2\ns_cselect_b32 {u0}, {u0}, {u1}')
        else: a(f's_mul_i32 {u0}, {sW}, 48')
        self.emit(self.pub_voff(5, 3, u0))
        box = B_QA if which == 'wq' else B_QB
        a(f"""
        s_add_u32 {t4}, {sHB}, {(box - 8192) & 0xffffffff}
        s_mul_i32 {t5}, {sW}, {(4 - 2048) & 0xffffffff}
        s_lshl_b32 {u1}, {sS}, 5
        s_add_u32 {t5}, {t5}, {u1}
        s_add_u32 {t5}, {t5}, {sHB}
        s_add_u32 {t5}, {t5}, {box + 6144}
        s_add_u32 {t5}, {t5}, {sW3O}
        """)
    def q_reads(self, va=6, vb=7):
        a = self.a
        self.emit(self.tr192_addr(vb, va))
        for k in range(3):
            a(f's_mul_i32 {u0}, {sW}, 3\ns_add_u32 {u0}, {u0}, {k}')
            self.tile_addr(va, vb, u0, L_WQB)
            for u in range(5): a(f'ds_read_b64_tr_b16 v[{24+10*k+2*u}:{25+10*k+2*u}], v{va} offset:{2*u*3072}')
    def x_gaddr(self):
        return [f's_mul_i32 {u0}, {sW}, 7', f's_add_u32 {u1}, {u0}, 6', f's_min_u32 {u1}, {u1}, 19',
                'v_and_b32 v60, 7, v0', f'v_add_u32 v60, {u0}, v60', f'v_min_u32 v60, {u1}, v60',
                'v_lshrrev_b32 v54, 3, v0', 'v_mul_u32_u24 v54, 320, v54', 'v_lshl_add_u32 v54, v60, 4, v54']
    def x_laddr(self):
        return ['v_lshrrev_b32 v55, 4, v0', 'v_lshl_add_u32 v60, v60, 2, v55'] + self.bitperm(55, 60, MAP_TR_SA, 3) + \
               ['v_cmp_gt_u32 vcc, 64, v60', 'v_lshlrev_b32 v60, 1, v60', 'v_cndmask_b32 v55, v60, v55, vcc', f'v_add_u32 v55, {L_XS}, v55']
    def x_stats(self):
        return ['v_lshlrev_b32 v3, 16, v20', f'v_cndmask_b32 v3, 0, v3, {MXV}',
                'v_mul_f32_dpp v3, v3, v3 quad_perm:[0,1,2,3] row_mask:0xf bank_mask:0x3',
                f'v_add_f32_dpp v3, v3, v3 quad_perm:[1,0,3,2] {DP}', f'v_add_f32_dpp v3, v3, v3 quad_perm:[2,3,0,1] {DP}',
                f'v_add_f32_dpp v3, v3, v3 row_half_mirror {DP}'] + self.allrows('v_add_f32', 3, 22)
    def g8_gaddr(self, r):
        return [f'v_lshlrev_b32 v{r}, 2, v0', f'v_and_b32 v{r+1}, 7, v0', f's_lshl_b32 {u0}, {sW}, 11', f's_sub_u32 {u0}, 6144, {u0}',
                f'v_lshl_add_u32 v{r+1}, v{r+1}, 5, {u0}']
    def g8_laddr(self, dst, tmp, mp):
        return [f's_lshl_b32 {u0}, {sW}, 7', f's_add_u32 {u0}, {u0}, {L_QS}'] + self.bitperm(dst, 0, mp, tmp, add=u0)

    def stage_q(self, which):
        a = self.a
        a('ds_read_b64 v[10:11], v2\nds_read_b128 v[6:9], v1')
        self.emit(self.x_stats()[6:])
        if which == 'wq': nt = 4; WB = self.WQB_; WT = self.WQT_; D = [24, 28, 32, 36]; mask = MQ
        else:
            nt = 3; WB = [f'v[{24+10*k}:{31+10*k}]' for k in range(3)]; WT = [f'v[{32+10*k}:{33+10*k}]' for k in range(3)]
            D = [12, 16, 20]; mask = M48
        fill = ['v_and_b32 v1, 8, v0', 'v_lshlrev_b32 v1, 1, v1', 'v_sub_u32 v1, 16, v1'] + self.g8_gaddr(54) + [f's_add_u32 {t0}, {t4}, 8192']
        a('s_waitcnt lgkmcnt(1)')
        for k in range(nt):
            a(f'v_mfma_f32_16x16x16_bf16 v[{D[k]}:{D[k]+3}], v[10:11], {WT[k]}, 0')
            for _ in range(2):
                if fill: a(fill.pop(0))
        a('s_waitcnt lgkmcnt(0)')
        for k in range(nt):
            a(f'v_smfmac_f32_16x16x64_bf16 v[{D[k]}:{D[k]+3}], v[6:9], {WB[k]}, v4')
            for _ in range(2):
                if fill: a(fill.pop(0))
        lines = ['s_mov_b64 exec, 0x101', f'buffer_store_dword v3, v1, {SRDW}, {t5} offen{{sc}}', f's_mov_b64 exec, {mask}'] + \
                self.merge(2, D) + [f'buffer_store_dword v2, v5, {SRDW}, {t4} offen{{sc}}', 's_mov_b64 exec, -1']
        def colsum():
            cb = (B_CA - B_QA) if which == 'wq' else (B_CB - B_QB)
            a(f's_add_u32 {t1}, {t4}, {cb}')
            self.emit(self.merge(2, D, 2))
            self.store_intra([f's_mov_b64 exec, {mask}', f'buffer_store_dword v2, v5, {SRDW}, {t1} offen{{sc}}', 's_mov_b64 exec, -1'])
        if which == 'wq':
            sv = {k: list(v) for k, v in self.vm.items()}
            def hot():
                self.store_intra(lines); self.vm = sv
            self.either(f's_cmp_eq_u32 {sIT}, 0', hot, lambda: self.first_publish(D))
        else:
            self.store_intra(lines)
            with self.it0(): colsum()

    def first_publish(self, D):
        a = self.a
        self.emit(self.merge(2, D)); self.emit(self.merge(6, D, 2))
        a(f"""
        s_lshl_b32 {u0}, {sW}, 7
        s_lshl_b32 {u1}, {sW}, 8
        s_sub_u32 {u1}, {u1}, 256
        s_cmp_lt_u32 {sW}, 2
        s_cselect_b32 {u0}, {u0}, {u1}
        s_add_u32 {u0}, {u0}, {L_SX}
        v_lshl_add_u32 v5, v0, 2, {u0}
        s_lshl_b32 {u0}, {sW}, 2
        s_add_u32 {u0}, {u0}, {L_SX + 768}
        v_add_u32 v1, {u0}, v1
        s_getreg_b32 {u1}, hwreg(HW_REG_XCC_ID, 0, 4)
        s_cmp_eq_u32 {sW}, 3
        s_cselect_b64 vcc, -1, 0
        v_mov_b32 v7, {u1}
        v_cndmask_b32 v3, v3, v7, vcc
        s_mov_b64 exec, {MQ}
        ds_write_b32 v5, v2
        ds_write_b32 v5, v6 offset:1024
        s_mov_b64 exec, 0x101
        ds_write_b32 v1, v3
        s_mov_b64 exec, -1
        s_waitcnt lgkmcnt(0)
        s_barrier
        """)
        with self.skip(f's_cmp_lg_u32 {sW}, 3'):
            self.clr_regs(4); self.box_voff(9, 10)
            a(f"""
            v_add_u32 v2, {L_SX}, v8
            ds_read_b128 v[12:15], v2
            ds_read_b128 v[16:19], v2 offset:1024
            s_add_u32 {t1}, {u0}, {B_O}
            s_add_u32 {t2}, {u0}, {B_CA}
            s_add_u32 {t3}, {sYP}, {-192 & 0xffffffff}
            s_mov_b64 exec, 0xfffff
            buffer_store_dwordx4 v[4:7], v8, {SRDW}, {t3} offen sc1
            s_mov_b32 exec_lo, -1
            s_mov_b32 exec_hi, 0x3ffff
            buffer_store_dwordx4 v[4:7], v9, {SRDW}, {t1} offen sc1
            s_waitcnt lgkmcnt(0)
            buffer_store_dwordx4 v[12:15], v9, {SRDW}, {u0} offen sc1
            s_mov_b64 exec, {M48}
            buffer_store_dwordx4 v[16:19], v9, {SRDW}, {t2} offen sc1
            s_mov_b64 exec, -1
            """)
            for _ in range(4): self.vissue('st', '3')
            if self.cfg.early >= 1:
                sk = self.cfg.skip
                if 'cB' not in sk: self.clear_boxes([B_QB, B_G, B_CB], 4)
                if 'cY' not in sk: self.clear_cross_small(4, [81920, 2 * 81920, 3 * 81920]); a('s_mov_b64 exec, -1')
                if 'cE' not in sk: self.clear_EFS(4); self.clear_EFS(4, 1)
                if 'cB' not in sk: self.clear_boxes([IT_H + B_QA, IT_H + B_O, IT_H + B_QB, IT_H + B_G], 4)
            if self.cfg.early >= 2:
                self.clear_P(4); self.clear_F(4)

    def gather_a(self, cs, first, pre):
        a = self.a
        loads = [f'buffer_load_dwordx3 v[12:14], v55, {SRDW}, {t0} offen sc1', f'buffer_load_dwordx3 v[16:18], v55, {SRDW}, {t0} offen offset:16 sc1']
        loads += [f'buffer_load_dword v{4+p}, v54, {SRDW}, {t0} offen offset:{256*p} sc1' for p in range(8)]
        cl = [f'buffer_load_dword v{20+p}, v54, {SRDW}, {t1} offen offset:{256*p} sc1' for p in range(8)]
        cb = (B_CA - B_QA) if first else (B_CB - B_QB)
        def cs_done():
            self.emit(self.sum8(20)); a(f'v_mul_f32 v{cs}, {f2u(1/640.)}, v20')
        def mid():
            self.emit(self.g8_laddr(2, 3, MAP_NAT_SA)); pre()
        def first0(lc):
            a(f's_add_u32 {t1}, {t0}, {cb}')
            self.emit(cl)
            for _ in cl: self.vissue('pl', 'g')
            if first:
                a(f'buffer_load_dword v28, v55, {SRDW}, {t0} offen offset:12 sc1'); self.vissue('pl', 'g')
                for s_ in range(self.cfg.c2 + 1, self.cfg.c3 + 1): self.kv_step(s_, 'g')
            self.vwait('pl', 'g')
            cs_done()
            if first:
                a(f"""
                s_getreg_b32 {u0}, hwreg(HW_REG_XCC_ID, 0, 4)
                v_cmp_ne_u32 vcc, {u0}, v28
                v_mov_b32 v29, {L_SCAL}
                s_cmp_eq_u64 vcc, 0
                s_cselect_b32 {u0}, {0 if self.cfg.force_slow else 1}, 0
                v_mov_b32 v28, {u0}
                ds_write_b32 v29, v28 offset:8
                """)
                self.zero_S()
        def undo():
            if not first:
                with self.skip(f's_cmp_lg_u32 {sIT}, 0'):
                    self.exact_poll(cl, range(20, 28), 15); cs_done()
        def compute():
            s8 = self.sum8(4)
            a(f"""
            v_add_f32 v12, v12, v13
            {s8[0]}
            v_add_f32 v12, v12, v14
            {s8[1]}
            v_add_f32 v16, v16, v17
            v_add_f32_dpp v12, v12, v12 quad_perm:[1,0,3,2] {DP}
            {s8[2]}
            v_add_f32 v16, v16, v18
            v_add_f32_dpp v12, v12, v12 quad_perm:[2,3,0,1] {DP}
            {s8[3]}
            v_add_f32_dpp v12, v12, v12 row_half_mirror {DP}
            v_fma_f32 v4, -v12, v{cs}, v4
            v_cvt_pk_bf16_f32 v5, v4, v4
            ds_write_b16 v2, v5
            """)
        self.spec_poll(loads, list(range(4, 15)) + [16, 17, 18], 15, self.cfg.dly['a'], compute, (4, 16), mid=mid, first0=first0, undo=undo)

    def rstd_ops(self):
        return [f'v_add_f32_dpp v16, v16, v16 quad_perm:[1,0,3,2] {DP}', f'v_mul_f32 v12, {f2u(1/640.)}, v12', f'v_mov_b32 v13, {L_SCAL}',
                f'v_add_f32_dpp v16, v16, v16 quad_perm:[2,3,0,1] {DP}', 'v_mul_f32 v12, v12, v12', f's_min_u32 {u0}, {sW}, 1',
                f'v_add_f32_dpp v16, v16, v16 row_half_mirror {DP}', f's_lshl_b32 {u0}, {u0}, 5', f'v_mul_f32 v16, {f2u(1/640.)}, v16',
                'v_sub_f32 v16, v16, v12', 'v_max_f32 v16, 0, v16', f'v_add_f32 v16, {f2u(1e-5)}, v16', 'v_rsq_f32 v16, v16',
                f'v_add_u32 v13, {u0}, v13', f'v_mul_f32 v16, {sC}, v16', 'ds_write_b32 v13, v16']

    S_ = [20 + 4 * n for n in range(8)]
    def zero_S(self):
        for r in self.S_: self.a(f'v_mov_b64 v[{r}:{r+1}], 0')
    def att_pre0(self):
        self.emit(self.sa_addr(52, 53, L_QS)); self.emit(self.idx(53))
        self.a(f"""
        v_lshlrev_b32 v60, 4, v0
        s_xor_b32 {u0}, {sIT}, 1
        s_mul_i32 {u0}, {u0}, {0 if self.cfg.shadow0 else OOB}
        s_add_u32 {t5}, {sPO}, {u0}
        s_and_b32 {u1}, {sH}, 1
        s_mul_i32 {u1}, {u1}, {12288-64}
        s_add_u32 {u0}, {u0}, {u1}
        s_mul_i32 {u1}, {sW}, {3072-128}
        s_add_u32 {u0}, {u0}, {u1}
        s_add_u32 {t4}, {sFG}, {u0}
        """)
    def att_pre(self):
        self.att_pre0()
        with self.it1(): self.zero_S()

    def shadow_clear(self, so, off):
        return '' if self.cfg.big0 else f'buffer_store_dwordx4 v[16:19], v60, {SRDW}, {so} offen offset:{off} sc1'

    def att_qk(self):
        a = self.a; S = self.S_
        a('s_waitcnt lgkmcnt(0)\ns_barrier\nds_read_b128 v[4:7], v52\nds_read_b128 v[8:11], v52 offset:128')
        ops = self.rstd_ops()
        for _ in range(8): a(ops.pop(0))
        Q = [4, 8, 4]
        extra = {(1, 0): ['s_barrier', f'v_mov_b32 v13, {L_SCAL}', 'ds_read_b96 v[12:14], v13'],
                 (1, 2): [f's_lshl_b32 {u0}, {sW}, 8', f's_add_u32 {u0}, {u0}, {L_PB}'],
                 (1, 3): [f'v_lshl_add_u32 v54, v0, 2, {u0}', f's_sub_u32 {u0}, {u0}, {L_QS}'],
                 (1, 4): [f'v_add_u32 v52, {u0}, v52', 'v_and_b32 v15, 2, v0'],
                 (1, 5): ['v_cmp_eq_u32 vcc, 0, v15', f'v_mov_b32 v15, {L_ZERO}'],
                 (1, 7): ['v_cndmask_b32 v55, v52, v15, vcc', 'v_cndmask_b32 v52, v15, v52, vcc']}
        mg = [x for pr in zip(self.merge(1, S[0::2]), self.merge(2, S[1::2])) for x in pr]
        cs_ = self.shadow_clear
        extra[(0, 6)] = ['v_mov_b64 v[18:19], -1']
        extra[(0, 7)] = ['v_mov_b64 v[16:17], -1']
        extra[(1, 1)] = [cs_(t5, 0)]
        extra[(1, 6)] = [cs_(t5, 1024)]
        extra[(2, 2)] = [cs_(t4, 0)]
        if not self.cfg.big0:
            for _ in range(5): self.vissue('dr')
        for tau in range(3):
            a('s_waitcnt lgkmcnt(1)')
            for n in range(8):
                i = 24 * n + 8 * tau
                a(f'v_smfmac_f32_16x16x64_bf16 v[{S[n]}:{S[n]+3}], v[{Q[tau]}:{Q[tau]+3}], a[{i}:{i+7}], v53')
                if tau == 0:
                    for _ in range(2):
                        if ops: a(ops.pop(0))
                self.emit(extra.get((tau, n), []))
                if tau == 2 and n >= 4: a('s_nop 0'); a(mg.pop(0))
                elif tau == 2: a('s_nop 1')
            if tau == 0: a('ds_read_b128 v[4:7], v52 offset:256')
        z = [f'v_mov_b64 v[{r}:{r+1}], 0' for r in range(20, 44, 2)]
        a(z.pop(0)); a(mg.pop(0)); a(z.pop(0)); a(mg.pop(0)); a(z.pop(0)); a(z.pop(0)); a(mg.pop(0)); a(z.pop(0)); a(z.pop(0)); a(mg.pop(0))
        a(f"""
        v_max_f32 v3, v1, v2
        s_waitcnt lgkmcnt(0)
        {z.pop(0)}
        v_max_f32_dpp v3, v3, v3 quad_perm:[1,0,3,2] {DP}
        {z.pop(0)}
        {z.pop(0)}
        v_max_f32_dpp v3, v3, v3 quad_perm:[2,3,0,1] {DP}
        {z.pop(0)}
        {z.pop(0)}
        v_max_f32_dpp v3, v3, v3 row_half_mirror {DP}
        {z.pop(0)}
        v_mul_f32 v1, v1, v12
        v_max_f32_dpp v3, v3, v3 row_mirror {DP}
        v_mov_b32 v15, v3
        v_mul_f32 v2, v2, v12
        v_permlane16_swap_b32 v3, v15
        v_max_f32 v3, v3, v15
        v_mov_b32 v15, v3
        v_permlane32_swap_b32 v3, v15
        v_max_f32 v3, v3, v15
        v_fma_f32 v1, -v3, v12, v1
        v_fma_f32 v2, -v3, v12, v2
        v_exp_f32 v1, v1
        v_exp_f32 v2, v2
        v_mul_f32 v3, v3, v12
        v_cvt_pk_bf16_f32 v15, v1, v2
        ds_write_b32 v54, v15
        ds_read_b128 v[4:7], v52
        ds_read_b128 v[8:11], v55
        ds_read_b128 v[44:47], v52 offset:128
        ds_read_b128 v[48:51], v55 offset:128
        v_add_f32 v1, v1, v2
        {cs_(t4, 1024)}
        """)
        assert not z and not mg

    def att_pv(self, hook):
        a = self.a
        PL = [4, 44]; PH = [8, 48]
        side = [f's_lshl_b32 {u0}, {sW}, 2', f's_add_u32 {u0}, {u0}, {L_ML}',
                f'v_add_f32_dpp v1, v1, v1 quad_perm:[1,0,3,2] {DP}', f'v_mov_b32 v2, {u0}', f'v_mov_b32 v52, {L_ML}',
                f'v_add_f32_dpp v1, v1, v1 quad_perm:[2,3,0,1] {DP}', 'ds_write_b32 v2, v3', f's_mul_i32 {u0}, {sW}, 768',
                f'v_add_f32_dpp v1, v1, v1 row_half_mirror {DP}', f's_add_u32 {u0}, {u0}, {L_OW}', f'v_lshl_add_u32 v54, v0, 2, {u0}',
                f'v_add_f32_dpp v1, v1, v1 row_mirror {DP}']
        self.emit(side)
        a('s_waitcnt lgkmcnt(3)')
        def mm(c, kap):
            b = 64 + 96 * kap + 8 * c; d = 20 + 4 * (c >> 1); pr = (PL if c % 2 == 0 else PH)[kap]
            a(f'v_smfmac_f32_16x16x64_bf16 v[{d}:{d+3}], v[{pr}:{pr+3}], v[{b}:{b+7}], v53')
        def mrg(dst, mu):
            k = 20 + 8 * mu
            return [f'v_add_f32_dpp v{dst}, v{r}, v{r+1} quad_perm:[0,1,2,3] row_mask:{1<<g:#x} bank_mask:0xf' for g, r in enumerate([k, k + 2, k + 4, k + 6])]
        w0 = self.allrows('v_add_f32', 1, 15) + ['ds_write_b32 v2, v1 offset:16', None, self.shadow_clear(t4, 2048), None, None, None, None,
              's_waitcnt lgkmcnt(0)', 's_barrier', 'ds_read_b128 v[12:15], v52', 'ds_read_b128 v[16:19], v52 offset:16',
              f's_add_u32 {t0}, {sHB}, {B_O}', f's_lshl_b32 {u0}, {sS}, 8', f's_add_u32 {t1}, {t0}, {u0}', f's_add_u32 {t1}, {t1}, {sW3O}',
              f's_lshl_b32 {u0}, {sS}, 5', f's_add_u32 {t2}, {t0}, {u0}', 's_waitcnt lgkmcnt(0)']
        for c in range(12):
            mm(c, 0)
            for _ in range(2):
                if w0:
                    x = w0.pop(0)
                    if x: a(x)
        assert not w0
        hook()
        w1 = ['v_max3_f32 v2, v12, v13, v14', 'v_max_f32 v2, v2, v15', 'v_sub_f32 v3, v3, v2', 'v_sub_f32 v12, v12, v2',
              'v_exp_f32 v1, v3', None, 'v_sub_f32 v13, v13, v2', 'v_sub_f32 v14, v14, v2', 'v_sub_f32 v15, v15, v2', f's_xor_b32 {u0}, {sW3O}, {OOB}',
              'v_exp_f32 v12, v12', None, 'v_exp_f32 v13, v13', None] + mrg(4, 0) + ['v_exp_f32 v14, v14', None, 'v_mul_f32 v4, v4, v1', 'ds_write_b32 v54, v4']
        for c in range(12):
            mm(c, 1)
            for _ in range(2):
                if w1:
                    x = w1.pop(0)
                    if x: a(x)
        assert not w1
        self.emit(mrg(5, 1))
        a(f"""
        v_mul_f32 v5, v5, v1
        ds_write_b32 v54, v5 offset:256
        v_exp_f32 v15, v15
        """)
        self.emit(mrg(6, 2))
        a(f"""
        v_mul_f32 v6, v6, v1
        ds_write_b32 v54, v6 offset:512
        v_mul_f32 v3, v12, v16
        v_fmac_f32 v3, v13, v17
        s_add_u32 {t2}, {t2}, {u0}
        s_lshl_b32 {u0}, {sW}, 8
        s_add_u32 {u0}, {u0}, {L_OW}
        v_lshl_add_u32 v5, v0, 2, {u0}
        v_fmac_f32 v3, v14, v18
        v_fmac_f32 v3, v15, v19
        s_waitcnt lgkmcnt(0)
        s_barrier
        ds_read2st64_b32 v[8:9], v5 offset0:0 offset1:3
        ds_read2st64_b32 v[10:11], v5 offset0:6 offset1:9
        """)
        self.emit(self.g8_gaddr(26))
        self.store_intra([f's_mov_b64 exec, {ML0}', f'buffer_store_dwordx2 v[2:3], v26, {SRDW}, {t2} offen{{sc}}', 's_mov_b64 exec, -1',
                          's_waitcnt lgkmcnt(0)', 'v_pk_add_f32 v[8:9], v[8:9], v[10:11]', 'v_add_f32 v8, v8, v9',
                          f'buffer_store_dword v8, v26, {SRDW}, {t1} offen{{sc}}'])

    def o_reads(self):
        for u in range(12): self.a(f'ds_read_b64_tr_b16 v[{30+2*u}:{31+2*u}], v28 offset:{16*u*160}')
    def o_pre(self, lds_base, late):
        a = self.a
        a(f"""
        v_lshrrev_b32 v28, 2, v0
        v_mul_u32_u24 v28, 160, v28
        v_and_b32 v29, 3, v0
        v_lshl_add_u32 v28, v29, 3, v28
        s_lshl_b32 {u0}, {sW}, 5
        s_add_u32 {u0}, {u0}, {lds_base}
        v_add_u32 v28, {u0}, v28
        """)
        self.o_reads()
        self.emit(self.sa_addr(55, 29, L_QS)); self.emit(self.idx(29))
        a('v_mov_b64 v[22:23], 0')
    def o_g(self, late):
        a = self.a
        a('s_waitcnt lgkmcnt(0)\ns_barrier')
        if late:
            with self.it0(): self.o_reads()
        a('ds_read_b128 v[4:7], v55\nds_read_b128 v[8:11], v55 offset:128\nds_read_b128 v[12:15], v55 offset:256')
        self.emit(self.x_gaddr())
        for tau in range(3):
            a(f's_waitcnt lgkmcnt({2-tau})')
            a(f'v_smfmac_f32_16x16x64_bf16 v[22:25], v[{4+4*tau}:{7+4*tau}], v[{30+8*tau}:{37+8*tau}], v29')
        a(f"""
        s_add_u32 {t1}, {sYG}, 5120
        s_mov_b64 exec, {M16}
        v_add_f32 v22, v22, v23
        buffer_store_dword v22, v26, {SRDW}, {sYP} offen sc1
        s_mov_b64 exec, -1
        """)
    def o_w3(self, late):
        a = self.a
        a('v_mov_b32 v1, v29\nv_mov_b32 v54, v28\nv_mov_b64 v[2:3], 0\nv_mov_b64 v[60:61], 0')
        def r4():
            for u in range(8): a(f'ds_read_b64_tr_b16 v[{14+2*u}:{15+2*u}], v54 offset:{16*u*160+32}')
        if not late: r4()
        else:
            with self.it1(): r4()
        a('s_waitcnt lgkmcnt(0)\ns_barrier')
        if late:
            with self.it0():
                self.o_reads(); r4(); a('s_waitcnt lgkmcnt(0)')
        a("""
        ds_read_b128 v[6:9], v55
        ds_read_b128 v[10:13], v55 offset:128
        ds_read_b128 a[236:239], v55 offset:256
        s_waitcnt lgkmcnt(2)
        v_smfmac_f32_16x16x64_bf16 v[60:63], v[6:9], v[30:37], v1
        """)
        for u in range(8, 12): a(f'ds_read_b64_tr_b16 v[{30+2*(u-8)}:{31+2*(u-8)}], v54 offset:{16*u*160+32}')
        a(f"""
        v_smfmac_f32_16x16x64_bf16 v[2:5], v[6:9], v[14:21], v1
        s_waitcnt lgkmcnt(5)
        v_smfmac_f32_16x16x64_bf16 v[60:63], v[10:13], v[38:45], v1
        v_lshlrev_b32 v6, 2, v0
        v_smfmac_f32_16x16x64_bf16 v[2:5], v[10:13], v[22:29], v1
        s_waitcnt lgkmcnt(4)
        v_smfmac_f32_16x16x64_bf16 v[60:63], a[236:239], v[46:53], v1
        s_waitcnt lgkmcnt(0)
        v_smfmac_f32_16x16x64_bf16 v[2:5], a[236:239], v[30:37], v1
        s_mov_b64 exec, {M32}
        """)
        self.emit(self.merge(7, [60, 2]))
        a(f'buffer_store_dword v7, v6, {SRDW}, {sYP} offen sc1\ns_mov_b64 exec, -1')

    def gather_b(self, pre):
        a = self.a
        loads = [f'buffer_load_dwordx2 v[12:13], v27, {SRDW}, {t0} offen sc1']
        loads += [f'buffer_load_dword v{4+p}, v26, {SRDW}, {t0} offen offset:{256*p} sc1' for p in range(8)]
        def mid():
            self.emit(self.g8_laddr(2, 3, MAP_TR_SA)); pre()
        def compute():
            a(f"""
            v_max_f32_dpp v14, v12, v12 quad_perm:[1,0,3,2] {DP}
            v_max_f32_dpp v14, v14, v14 quad_perm:[2,3,0,1] {DP}
            v_max_f32_dpp v14, v14, v14 row_half_mirror {DP}
            v_sub_f32 v12, v12, v14
            v_exp_f32 v12, v12
            v_mul_f32 v13, v13, v12
            v_mul_f32_dpp v4, v12, v4 row_newbcast:0 {DP}
            v_mul_f32_dpp v5, v12, v5 row_newbcast:1 {DP}
            v_add_f32_dpp v13, v13, v13 quad_perm:[1,0,3,2] {DP}
            v_fmac_f32_dpp v4, v12, v6 row_newbcast:2 {DP}
            v_fmac_f32_dpp v5, v12, v7 row_newbcast:3 {DP}
            v_add_f32_dpp v13, v13, v13 quad_perm:[2,3,0,1] {DP}
            v_fmac_f32_dpp v4, v12, v8 row_newbcast:4 {DP}
            v_fmac_f32_dpp v5, v12, v9 row_newbcast:5 {DP}
            v_add_f32_dpp v13, v13, v13 row_half_mirror {DP}
            v_fmac_f32_dpp v4, v12, v10 row_newbcast:6 {DP}
            v_fmac_f32_dpp v5, v12, v11 row_newbcast:7 {DP}
            v_rcp_f32 v13, v13
            v_add_f32 v4, v4, v5
            v_mul_f32 v4, v4, v13
            v_cvt_pk_bf16_f32 v5, v4, v4
            ds_write_b16 v2, v5
            """)
        self.spec_poll(loads, range(4, 14), 15, self.cfg.dly['b'], compute, (4, 4), mid=mid, first0=self.behind('b2', 16, 17))

    def gather_g(self, pre):
        a = self.a
        loads = [f'buffer_load_dword v{4+p}, v26, {SRDW}, {t0} offen offset:{256*p} sc1' for p in range(8)]
        def mid():
            self.emit(self.g8_laddr(2, 3, MAP_TR_SA)); pre()
        def compute():
            self.emit(self.sum8(4)); a('v_cvt_pk_bf16_f32 v5, v4, v4\nds_write_b16 v2, v5')
        self.spec_poll(loads, range(4, 12), 15, self.cfg.dly['g'], compute, (4, 4), mid=mid)

    def gather_c(self, key):
        a = self.a
        self.emit(self.x_laddr())
        a('ds_read_u16 v22, v55')
        loads = [f'buffer_load_dwordx4 v[6:9], v54, {SRDW}, {sYG} offen sc1', f'buffer_load_dwordx4 v[10:13], v54, {SRDW}, {sYG} offen offset:2560 sc1',
                 f'buffer_load_dwordx4 v[14:17], v54, {SRDW}, {t1} offen sc1', f'buffer_load_dwordx4 v[18:21], v54, {SRDW}, {t1} offen offset:2560 sc1']
        def mid(): a('s_waitcnt lgkmcnt(0)\nv_lshlrev_b32 v22, 16, v22')
        def compute():
            a(f"""
            v_pk_add_f32 v[6:7], v[6:7], v[10:11]
            v_pk_add_f32 v[14:15], v[14:15], v[18:19]
            v_pk_add_f32 v[8:9], v[8:9], v[12:13]
            v_pk_add_f32 v[6:7], v[6:7], v[14:15]
            v_pk_add_f32 v[16:17], v[16:17], v[20:21]
            v_pk_add_f32 v[8:9], v[8:9], v[16:17]
            v_permlane16_swap_b32 v6, v7
            v_add_f32 v6, v6, v7
            v_permlane16_swap_b32 v8, v9
            v_add_f32 v8, v8, v9
            v_permlane32_swap_b32 v6, v8
            v_add_f32 v6, v6, v8
            v_add_f32_dpp v6, v6, v6 row_ror:8 {DP}
            v_cvt_pk_bf16_f32 v7, v6, v6
            v_lshlrev_b32 v7, 16, v7
            v_add_f32 v7, v7, v22
            v_cvt_pk_bf16_f32 v20, v7, v7
            ds_write_b16 v55, v20
            """)
        bh = self.behind(key, 3, 53) if key else None
        self.spec_poll(loads, range(6, 22), 3, self.cfg.dly['c'], compute, (6, 6), mid=mid, first0=bh)
        self.emit(self.x_stats()[:6])

    def abs_pre(self):
        self.emit(self.sa_addr(52, 53, L_QS)); self.emit(self.idx(53))
        self.a('v_lshlrev_b32 v50, 1, v0\nv_mov_b64 v[40:41], 0\nv_mov_b64 v[44:45], 0')
    def stage_abs(self):
        a = self.a
        a('s_waitcnt lgkmcnt(0)\ns_barrier\nds_read_b128 v[28:31], v52\nds_read_b128 v[32:35], v52 offset:128\nds_read_b128 v[36:39], v52 offset:256')
        ops = self.rstd_ops()
        for _ in range(8): a(ops.pop(0))
        for tau in range(3):
            a(f's_waitcnt lgkmcnt({2-tau})')
            a(f'v_smfmac_f32_16x16x64_bf16 v[40:43], v[{28+4*tau}:{31+4*tau}], a[{192+8*tau}:{199+8*tau}], v53')
            a(f'v_smfmac_f32_16x16x64_bf16 v[44:47], v[{28+4*tau}:{31+4*tau}], a[{216+8*tau}:{223+8*tau}], v53')
        for _ in range(6): a(ops.pop(0))
        self.emit(self.merge(48, [40, 44]))
        self.emit(ops)
        a(f"""
        v_mov_b32_dpp v49, v48 quad_perm:[1,1,3,3] {DP}
        s_mov_b64 exec, {MABS}
        v_cvt_pk_bf16_f32 v48, v48, v49
        buffer_store_dword v48, v50, {SRDW}, {sEPB} offen sc1
        s_mov_b64 exec, -1
        """)
        self.vissue('st')

    def stage_sc(self):
        a = self.a
        a(f's_lshr_b32 {u0}, {sW}, 1\ns_mul_i32 {u0}, {u0}, {4*3072}\ns_add_u32 {u0}, {u0}, {L_CKV}')
        self.row192_addr(1, 3, 2, u0)
        seq = [(n, u) for n in range(2) for u in range(6)]
        def aread(k):
            n, u = seq[k]; r = 28 + 4 * (k % 5)
            a(f'ds_read_b128 v[{r}:{r+3}], v{1 if u % 2 == 0 else 3} offset:{n*2*3072 + (u//2)*1024}')
        def pre():
            for k in range(5): aread(k)
            a('v_lshlrev_b32 v60, 4, v0')
        a(f"""
        v_and_b32 v60, 15, v0
        v_mul_u32_u24 v60, 1536, v60
        v_lshl_add_u32 v2, v2, 4, v60
        s_xor_b32 {t1}, {sPO}, {1<<13}
        s_xor_b32 {t2}, {sPO}, {2<<13}
        s_xor_b32 {t3}, {sPO}, {3<<13}
        """)
        pre()
        loads = [f'buffer_load_dwordx4 v[{4+4*u}:{7+4*u}], v2, {SRDW}, {sEG} offen offset:{64*u} sc1' for u in range(6)]
        def mf(k):
            n, u = seq[k]; r = 28 + 4 * (k % 5); d = 52 if n == 0 else 48
            a(f's_waitcnt lgkmcnt({min(4, 11-k)})')
            a(f'v_mfma_f32_16x16x32_bf16 v[{d}:{d+3}], v[{r}:{r+3}], v[{4+4*u}:{7+4*u}], ' + ('0' if u == 0 else f'v[{d}:{d+3}]'))
            if k + 5 < 12: aread(k + 5)
        def compute():
            self.stamp('e got')
            for k in range(10): mf(k)
        self.spec_poll(loads, range(4, 28), 60, self.cfg.dly['e'], compute, (52, 52), redo=pre, who='g3')
        a(f's_cmp_eq_u32 {sFAST}, 0')
        mf(10); mf(11)
        self.store_intra([f'buffer_store_dwordx4 v[52:55], v60, {SRDW}, {sPO} offen{{sc}}',
                          f'buffer_store_dwordx4 v[48:51], v60, {SRDW}, {sPO} offen offset:1024{{sc}}'], precmp=True)

    def stage_ctx(self):
        a = self.a
        loads = []
        for k, s_ in enumerate([t1, t2, t3]):
            loads.append(f'buffer_load_dwordx4 v[{4+8*k}:{7+8*k}], v60, {SRDW}, {s_} offen sc1')
            loads.append(f'buffer_load_dwordx4 v[{8+8*k}:{11+8*k}], v60, {SRDW}, {s_} offen offset:1024 sc1')
        def cread(tile, r):
            k, hf = divmod(tile, 2)
            ar = 2 if k == 1 else 1; off = 8 * hf + (1024 if k == 2 else 0)
            a(f'ds_read_b64_tr_b16 v[{r}:{r+1}], v{ar} offset:{off}\nds_read_b64_tr_b16 v[{r+2}:{r+3}], v{ar} offset:{off + 2*3072}')
        def sxw(): a(f'v_add_u32 v3, {t6}, v60')
        def mid():
            self.emit(self.tr192_addr(1, 3, pairmode=True))
            a(f"""
            s_lshr_b32 {t4}, {sW}, 1
            s_mul_i32 {u0}, {t4}, {4*3072 + 1024}
            s_add_u32 {u0}, {u0}, {L_CKV}
            s_lshl_b32 {u1}, {t4}, 6
            s_lshl_b32 {u2}, {t4}, 10
            v_xor_b32 v1, {u1}, v1
            v_add_u32 v1, {u0}, v1
            v_xor_b32 v2, 64, v1
            v_add_u32 v2, {u2}, v2
            """)
            for tl in range(5): cread(tl, 28 + 4 * tl)
            a(f"""
            s_mul_i32 {t5}, {t4}, {(-8*3072) & 0xffffffff}
            s_add_u32 {t5}, {t5}, {4*3072}
            s_lshl_b32 {t6}, {sW}, 11
            s_xor_b32 {t7}, {t6}, 4096
            s_add_u32 {t6}, {t6}, {L_SX}
            s_add_u32 {t7}, {t7}, {L_SX}
            """)
            sxw()
        def compute():
            self.stamp('p got')
            a("""
            v_pk_add_f32 v[4:5], v[4:5], v[52:53]
            v_pk_add_f32 v[6:7], v[6:7], v[54:55]
            v_pk_add_f32 v[12:13], v[12:13], v[20:21]
            v_pk_add_f32 v[14:15], v[14:15], v[22:23]
            v_pk_add_f32 v[4:5], v[4:5], v[12:13]
            v_pk_add_f32 v[6:7], v[6:7], v[14:15]
            ds_write_b128 v3, v[4:7]
            v_pk_add_f32 v[8:9], v[8:9], v[48:49]
            v_pk_add_f32 v[10:11], v[10:11], v[50:51]
            v_pk_add_f32 v[16:17], v[16:17], v[24:25]
            v_pk_add_f32 v[18:19], v[18:19], v[26:27]
            v_pk_add_f32 v[8:9], v[8:9], v[16:17]
            v_pk_add_f32 v[10:11], v[10:11], v[18:19]
            ds_write_b128 v3, v[8:11] offset:1024
            v_pk_add_f32 v[12:13], v[4:5], v[6:7]
            v_pk_add_f32 v[14:15], v[8:9], v[10:11]
            v_pk_add_f32 v[12:13], v[12:13], v[14:15]
            """)
        self.spec_poll(loads, range(4, 28), 3, self.cfg.dly['p'], compute, (12, 13), mid=mid, redo=sxw, who='g3')
        a(f"""
        v_add_u32 v3, {t7}, v60
        v_mov_b32 v27, {L_SCAL}
        s_waitcnt lgkmcnt(0)
        s_barrier
        ds_read_b128 v[12:15], v3
        ds_read_b128 v[16:19], v3 offset:1024
        ds_read_b32 v26, v27
        """)
        cread(5, 48)
        a(f"""
        v_max3_f32 v60, v4, v5, v6
        v_max3_f32 v60, v60, v7, v8
        v_max3_f32 v60, v60, v9, v10
        v_max_f32 v60, v60, v11
        v_add_u32 v1, {t5}, v1
        v_add_u32 v2, {t5}, v2
        s_waitcnt lgkmcnt(4)
        v_max3_f32 v60, v60, v12, v13
        v_max3_f32 v60, v60, v14, v15
        s_waitcnt lgkmcnt(2)
        v_max3_f32 v60, v60, v16, v17
        v_max3_f32 v60, v60, v18, v19
        v_mov_b32 v3, v60
        v_pk_mul_f32 v[4:5], v[4:5], v[26:27] op_sel_hi:[1,0]
        v_pk_mul_f32 v[6:7], v[6:7], v[26:27] op_sel_hi:[1,0]
        v_permlane16_swap_b32 v60, v3
        v_max_f32 v60, v60, v3
        v_mov_b32 v3, v60
        v_pk_mul_f32 v[8:9], v[8:9], v[26:27] op_sel_hi:[1,0]
        v_pk_mul_f32 v[10:11], v[10:11], v[26:27] op_sel_hi:[1,0]
        v_permlane32_swap_b32 v60, v3
        v_max_f32 v60, v60, v3
        v_mul_f32 v24, -v60, v26
        v_floor_f32 v24, v24
        """.replace('v_mul_f32 v24, -v60, v26', 'v_mul_f32_e64 v24, -v60, v26'))
        for k in range(4, 12, 2): a(f'v_pk_add_f32 v[{k}:{k+1}], v[{k}:{k+1}], v[24:25] op_sel_hi:[1,0]')
        for k in range(4, 12): a(f'v_exp_f32 v{k}, v{k}')
        for k in range(4): a(f'v_cvt_pk_bf16_f32 v{20+k}, v{4+2*k}, v{5+2*k}')
        pk = lambda k: f'v_pk_fma_f32 v[{k}:{k+1}], v[{k}:{k+1}], v[26:27], v[24:25] op_sel_hi:[1,0,0]'
        A_own = [28, 32, 36, 40, 44, 48]; acc = [52, 28, 32, 36, 40, 44]
        valu = [pk(12), pk(14), 'v_pk_add_f32 v[4:5], v[4:5], v[6:7]', 'v_pk_add_f32 v[8:9], v[8:9], v[10:11]', pk(16), pk(18),
                'v_pk_add_f32 v[4:5], v[4:5], v[8:9]', 'CR1', 'v_add_f32 v3, v4, v5', 'CR0', 'v_sub_f32 v60, 0, v24']
        valu += [f'v_exp_f32 v{k}, v{k}' for k in range(12, 20)]
        def dov(x):
            if x == 'CR0': cread(1, 4)
            elif x == 'CR1': cread(0, 8)
            else: a(x)
        dov(valu.pop(0)); dov(valu.pop(0))
        a('s_waitcnt lgkmcnt(0)')
        for tl in range(6):
            a(f'v_mfma_f32_16x16x32_bf16 v[{acc[tl]}:{acc[tl]+3}], v[{A_own[tl]}:{A_own[tl]+3}], v[20:23], 0')
            for _ in range(2):
                if valu: dov(valu.pop(0))
        cread(2, 48); cread(3, 20)
        while valu: dov(valu.pop(0))
        for k in range(4): a(f'v_cvt_pk_bf16_f32 v{24+k}, v{12+2*k}, v{13+2*k}')
        a("""
        v_pk_add_f32 v[12:13], v[12:13], v[14:15]
        v_pk_add_f32 v[16:17], v[16:17], v[18:19]
        s_waitcnt lgkmcnt(6)
        v_mfma_f32_16x16x32_bf16 v[52:55], v[8:11], v[24:27], v[52:55]
        v_pk_add_f32 v[12:13], v[12:13], v[16:17]
        """)
        cread(4, 16)
        a("""
        s_waitcnt lgkmcnt(6)
        v_mfma_f32_16x16x32_bf16 v[28:31], v[4:7], v[24:27], v[28:31]
        v_add_f32 v3, v3, v12
        v_add_f32 v3, v3, v13
        """)
        cread(5, 12)
        side = ['v_bfe_u32 v1, v0, 1, 3', 'v_mul_u32_u24 v1, 196608, v1', 'v_and_b32 v2, 1, v0', 'v_lshl_add_u32 v1, v2, 6, v1',
                'v_and_b32 v2, 48, v0', 'v_add_u32 v1, v1, v2']
        A_oth = [8, 4, 48, 20, 16, 12]
        def out(k):
            x, y = acc[2 * k], acc[2 * k + 1]; o = [4, 8, 48][k]
            a(f"""
            v_cvt_pk_bf16_f32 v{o}, v{x}, v{x+1}
            v_cvt_pk_bf16_f32 v{o+1}, v{x+2}, v{x+3}
            v_cvt_pk_bf16_f32 v{o+2}, v{y}, v{y+1}
            v_cvt_pk_bf16_f32 v{o+3}, v{y+2}, v{y+3}
            buffer_store_dwordx4 v[{o}:{o+3}], v1, {SRDW}, {sFP} offen offset:{128*k} sc1
            """)
            self.vissue('st')
        for tl in range(2, 6):
            a(f's_waitcnt lgkmcnt({2*(5-tl)})')
            a(f'v_mfma_f32_16x16x32_bf16 v[{acc[tl]}:{acc[tl]+3}], v[{A_oth[tl]}:{A_oth[tl]+3}], v[24:27], v[{acc[tl]}:{acc[tl]+3}]')
            for _ in range(2):
                if side: a(side.pop(0))
        out(0); out(1); out(2)
        self.emit(self.allrows('v_add_f32', 3, 2))
        a(f"""
        v_mov_b32 v2, v60
        v_lshlrev_b32 v1, 3, v0
        s_mov_b64 exec, {M16}
        buffer_store_dwordx2 v[2:3], v1, {SRDW}, {sFSP} offen sc1
        s_mov_b64 exec, -1
        """)
        self.vissue('st')

    def uv_wread(self, r, areg):
        for u in range(6): self.a(f'ds_read_b64_tr_b16 v[{r+2*u}:{r+2*u+1}], v{areg} offset:{2*u*3072}')
    def uv_pre(self):
        a = self.a
        self.emit(self.tr192_addr(55, 54))
        for k in range(3):
            a(f's_mul_i32 {u0}, {sW}, 3\ns_add_u32 {u0}, {u0}, {k}')
            self.tile_addr(60, 55, u0, L_WUV)
            if k < 2: self.uv_wread(28 + 12 * k, 60)

    def gather_f(self):
        a = self.a
        def addrs():
            a("""
            v_lshrrev_b32 v2, 2, v0
            v_mul_u32_u24 v1, 384, v2
            v_lshlrev_b32 v2, 10, v2
            v_and_b32 v3, 3, v0
            v_lshl_add_u32 v1, v3, 4, v1
            """)
        addrs()
        so = [sFG, t0, t1, t2]; ss = [sFSG, t3, t4, t5]
        for i in range(1, 4): a(f's_add_u32 {so[i]}, {sFG}, {6144*i}\ns_add_u32 {ss[i]}, {sFSG}, {16384*i}')
        loads = [f'buffer_load_dwordx2 v[{20+2*i}:{21+2*i}], v2, {SRDW}, {ss[i]} offen sc1' for i in range(4)]
        loads += [f'buffer_load_dwordx4 v[{4+4*i}:{7+4*i}], v1, {SRDW}, {so[i]} offen sc1' for i in range(4)]
        lo = [52, 53, 54, 55]
        def ldsaddr():
            self.emit(self.bitperm(2, 0, {0: 5, 4: 4, 5: 3, 1: 2}, 3)); self.emit(self.bitperm(1, 0, {0: 5, 5: 4, 1: 3, 4: 2}, 3))
            a(f"""
            s_cmp_eq_u32 {sW}, 2
            s_cselect_b64 vcc, -1, 0
            s_lshl_b32 {u0}, {sW}, 6
            s_add_u32 {u0}, {u0}, {L_US}
            v_cndmask_b32 v2, v2, v1, vcc
            v_add_u32 v2, {u0}, v2
            v_mov_b64 v[52:53], 0
            v_mov_b64 v[54:55], 0
            """)
        def compute():
            self.stamp('f got')
            a(f"""
            v_max3_f32 v3, v20, v22, v24
            v_max_f32 v3, v3, v26
            v_max_f32_dpp v3, v3, v3 row_ror:4 {DP}
            v_max_f32_dpp v3, v3, v3 row_ror:8 {DP}
            """)
            self.emit(self.allrows('v_max_f32', 3, 1))
            for i in range(4): a(f'v_sub_f32 v{20+2*i}, v{20+2*i}, v3')
            for i in range(4): a(f'v_exp_f32 v{20+2*i}, v{20+2*i}')
            a('v_mul_f32 v3, v20, v21')
            for i in range(1, 4): a(f'v_fmac_f32 v3, v{20+2*i}, v{21+2*i}')
            for i in range(4): a(f'v_lshrrev_b32 v{21+2*i}, 16, v{20+2*i}')
            side = [f'v_add_f32_dpp v3, v3, v3 row_ror:4 {DP}', f'v_add_f32_dpp v3, v3, v3 row_ror:8 {DP}'] + \
                   self.allrows('v_add_f32', 3, 1) + ['v_rcp_f32 v3, v3', f'v_mul_f32 v3, {sUH}, v3']
            for i in range(4):
                for c in range(4):
                    a(f'v_dot2c_f32_bf16 v{lo[c]}, v{4+4*i+c}, v{21+2*i}')
                    if side and c % 2 == 1: a(side.pop(0))
            for c in range(4):
                a(f'v_dot2_f32_bf16 v{4+c}, v{4+c}, v20, 0')
                if side and c % 2 == 1: a(side.pop(0))
            sw = ['v_permlane16_swap_b32 v52, v53', 'v_permlane16_swap_b32 v54, v55', 'v_add_f32 v52, v52, v53', 'v_add_f32 v54, v54, v55',
                  'v_permlane32_swap_b32 v52, v54', 'v_add_f32 v52, v52, v54']
            for i in range(1, 4):
                for c in range(4):
                    a(f'v_dot2_f32_bf16 v{4+c}, v{4+4*i+c}, v{20+2*i}, v{4+c}')
                    if sw and c % 2 == 1: a(sw.pop(0))
            a(f"""
            v_add_f32_dpp v52, v52, v52 row_ror:4 {DP}
            v_permlane16_swap_b32 v4, v5
            v_permlane16_swap_b32 v6, v7
            v_add_f32 v4, v4, v5
            v_add_f32 v6, v6, v7
            v_add_f32_dpp v52, v52, v52 row_ror:8 {DP}
            v_permlane32_swap_b32 v4, v6
            v_add_f32 v4, v4, v6
            v_mul_f32 v52, v52, v3
            v_add_f32_dpp v4, v4, v4 row_ror:4 {DP}
            v_add_f32_dpp v4, v4, v4 row_ror:8 {DP}
            v_mul_f32 v4, v4, v3
            v_cvt_pk_bf16_f32 v5, v52, v4
            ds_write_b32 v2, v5
            """)
            self.uv_wread(8, 60)
        self.spec_poll(loads, range(4, 28), 3, self.cfg.dly['f'], compute, (52, 4), mid=ldsaddr, redo=ldsaddr, undo=addrs)

    def stage_uv(self):
        a = self.a
        a(f"""
        v_and_b32 v2, 48, v0
        v_and_b32 v3, 1, v0
        v_lshlrev_b32 v1, 1, v2
        v_add_u32 v2, {L_US + 128}, v2
        v_lshl_add_u32 v1, v3, 4, v1
        s_waitcnt lgkmcnt(6)
        s_barrier
        ds_read_b128 v[24:27], v2
        v_add_u32 v1, {L_US}, v1
        ds_read_b128 v[20:23], v1
        v_mul_u32_u24 v3, 0xaaaa, v3
        v_or_b32 v3, 0x4444, v3
        s_mul_i32 {u0}, {sW}, 48
        """)
        fill = self.pub_voff(60, 1, u0) + [f's_add_u32 {t0}, {sHB}, {B_G}', f's_add_u32 {t4}, {sHB}, {B_G - 8192}']
        for _ in range(6): a(fill.pop(0))
        a('s_waitcnt lgkmcnt(1)')
        Wb = [28, 40, 8]; D = [52, 4, 36]
        for k in range(3):
            a(f'v_mfma_f32_16x16x32_bf16 v[{D[k]}:{D[k]+3}], v[24:27], v[{Wb[k]+8}:{Wb[k]+11}], 0')
            for _ in range(2):
                if fill: a(fill.pop(0))
        a('s_waitcnt lgkmcnt(0)')
        for k in range(3): a(f'v_smfmac_f32_16x16x64_bf16 v[{D[k]}:{D[k]+3}], v[20:23], v[{Wb[k]}:{Wb[k]+7}], v3')
        a('v_lshlrev_b32 v26, 2, v0')
        self.store_intra([f's_mov_b64 exec, {M48}'] + self.merge(2, D) + [f'buffer_store_dword v2, v60, {SRDW}, {t4} offen{{sc}}', 's_mov_b64 exec, -1'])

    def build(self):
        a = self.a; cfg = self.cfg
        a(f"""
        s_cmp_ge_u32 s2, 256
        s_cbranch_scc1 L_end
        s_load_dwordx16 s[64:79], s[0:1], 0
        s_load_dwordx8 s[80:87], s[0:1], 64
        s_load_dwordx4 s[88:91], s[0:1], 96
        v_lshrrev_b32 v1, 6, v0
        v_mov_b32 v51, v0
        v_and_b32 v0, 63, v0
        v_readfirstlane_b32 {sW}, v1
        s_and_b32 {t0}, s2, 7
        s_lshl_b32 {t0}, {t0}, 5
        s_lshr_b32 {t1}, s2, 3
        s_add_u32 {sCU}, {t0}, {t1}
        s_lshr_b32 {sH}, {sCU}, 3
        s_and_b32 {sS}, {sCU}, 7
        s_mul_i32 {sKV}, {sCU}, 196608
        s_mul_i32 {t0}, {sW}, 49152
        s_add_u32 {sKV}, {sKV}, {t0}
        s_mov_b32 {sSTI}, 0
        """)
        if cfg.stamps: a('v_mov_b32 v63, 0')
        self.kv_addr()
        a('s_waitcnt lgkmcnt(0)')
        self.stamp('start')
        self.dma192('wq', 0, 8, 1, 2, 'g3', None)
        self.srd('k', 12)
        self.emit(self.x_gaddr())
        a(f'v_and_b32 v3, 7, v0\nv_add_u32 v3, {u0}, v3\nv_cmp_ge_u32 {MXV}, {u1}, v3')
        self.emit(self.x_laddr())
        self.srd('x')
        a(f's_mul_i32 {t0}, {sS}, 160\nbuffer_load_ushort v20, v60, {SRDT}, {t0} offen'); self.vissue('x')
        for U in range(2): self.kv_issue(U)
        self.srd('v', 16); self.srd('ws', 20, WS_BYTES)
        a(f"""
        s_add_u32 s96, s90, {W_EP}
        s_addc_u32 s97, s91, 0
        s_load_dword {sEP}, s[96:97], 0
        s_getpc_b64 s[98:99]
        L_pc:
        s_lshr_b32 {t0}, s2, 3
        s_lshl_b32 {t0}, {t0}, 2
        s_add_u32 {t0}, {t0}, {sW}
        s_lshl_b32 {t0}, {t0}, 8
        s_min_u32 {t0}, {t0}, L_last-L_pc-132
        s_add_u32 s98, s98, {t0}
        s_addc_u32 s99, s99, 0
        {'s_load_dword s74, s[98:99], 0' if cfg.warm_code else ''}
        {'s_load_dword s75, s[98:99], 128' if cfg.warm_code else ''}
        s_lshr_b32 {sKB}, {sCU}, 2
        s_and_b32 {sCB}, {sCU}, 3
        s_mov_b32 {sIT}, 0
        s_mov_b32 {sFAST}, 0
        s_mov_b32 s36, -1
        s_mov_b32 s37, 0xffff
        s_mov_b32 s38, 0xffff
        s_mov_b32 s39, 0
        s_mov_b64 {ML0}, 1
        s_mov_b32 s42, -1
        s_mov_b32 s43, 0x0fffffff
        s_mov_b32 s50, -1
        s_mov_b32 s51, 0
        s_mov_b32 {sC}, {f2u(SCALE)}
        s_mov_b32 {sLIM}, {cfg.lim}
        s_mov_b32 s60, -1
        s_mov_b32 s93, 0
        s_mov_b32 s92, 0x55555555
        s_cmp_lt_u32 {sW}, 2
        s_cselect_b32 s61, 0, -1
        s_cselect_b32 s92, s92, 0x5555
        s_cmp_eq_u32 {sW}, 2
        s_cselect_b32 {sUH}, 0.5, 1.0
        s_cmp_eq_u32 {sW}, 3
        s_cselect_b32 {sW3O}, {OOB}, 0
        s_lshl_b32 {sHB}, {sH}, 16
        s_lshl_b32 {t0}, {sW}, 11
        s_add_u32 {sHB}, {sHB}, {t0}
        s_add_u32 {sHB}, {sHB}, {W_H + 8192}
        s_mul_i32 {sYG}, {sS}, 10240
        s_add_u32 {sYG}, {sYG}, {W_Y}
        s_mul_i32 {sYP}, {sH}, 320
        s_add_u32 {sYP}, {sYP}, {sYG}
        s_lshl_b32 {t0}, {sW}, 6
        s_add_u32 {sYP}, {sYP}, {t0}
        s_mul_i32 {sEPB}, {sCU}, 192
        s_lshl_b32 {t0}, {sW}, 1
        s_min_u32 {t0}, {t0}, 5
        s_lshl_b32 {t0}, {t0}, 5
        s_add_u32 {sEPB}, {sEPB}, {t0}
        s_add_u32 {sEPB}, {sEPB}, {W_E}
        s_and_b32 {t1}, {sW}, 1
        s_lshr_b32 {t2}, {sW}, 1
        s_mul_i32 {sEG}, {t1}, {16*1536}
        s_mul_i32 {t0}, {sCB}, 384
        s_add_u32 {sEG}, {sEG}, {t0}
        s_add_u32 {sEG}, {sEG}, {W_E}
        s_lshl_b32 {sPO}, {sCU}, 13
        s_lshl_b32 {t0}, {sW}, 11
        s_add_u32 {sPO}, {sPO}, {t0}
        s_add_u32 {sPO}, {sPO}, {W_P}
        s_lshl_b32 {t0}, {t1}, 6
        s_lshl_b32 {t3}, {sCB}, 1
        s_add_u32 {t0}, {t0}, {t3}
        s_add_u32 {t0}, {t0}, {t2}
        s_lshl_b32 {t0}, {t0}, 6
        s_add_u32 {t0}, {t0}, {sKB}
        s_mul_i32 {sFP}, {t0}, 384
        s_add_u32 {sFP}, {sFP}, {W_F}
        s_lshr_b32 {t0}, {sH}, 1
        s_lshl_b32 {t0}, {t0}, 3
        s_add_u32 {t0}, {t0}, {sS}
        s_mul_i32 {sFG}, {t0}, 24576
        s_and_b32 {t0}, {sH}, 1
        s_lshl_b32 {t0}, {t0}, 6
        s_add_u32 {sFG}, {sFG}, {t0}
        s_lshl_b32 {t0}, {sW}, 7
        s_add_u32 {sFG}, {sFG}, {t0}
        s_add_u32 {sFG}, {sFG}, {W_F}
        s_lshl_b32 {sFSP}, {sCU}, 8
        s_lshl_b32 {t0}, {t1}, 7
        s_add_u32 {sFSP}, {sFSP}, {t0}
        s_mul_i32 {t0}, {t2}, {OOB}
        s_add_u32 {sFSP}, {sFSP}, {t0}
        s_add_u32 {sFSP}, {sFSP}, {W_FS}
        s_lshr_b32 {t0}, {sS}, 1
        s_lshl_b32 {sFSG}, {t0}, 8
        s_lshl_b32 {t0}, {sH}, 3
        s_add_u32 {sFSG}, {sFSG}, {t0}
        s_add_u32 {sFSG}, {sFSG}, {W_FS}
        v_lshlrev_b32 v1, 2, v0
        v_min_u32 v1, 156, v1
        v_add_u32 v1, {L_ONES}, v1
        v_mov_b32 v2, 0x3f803f80
        v_mov_b32 v3, 0
        ds_write_b32 v1, v2
        ds_write_b32 v1, v3 offset:160
        """)
        self.q_pre('wq')
        self.emit(self.tr192_addr(42, 3))
        self.vwait('x')
        a(f'ds_write_b16 v55, v20\ns_waitcnt lgkmcnt(0)\ns_barrier\ns_add_u32 {sEP}, {sEP}, 1')
        for k in range(4):
            a(f's_lshl_b32 {u0}, {sW}, 1\ns_lshl_b32 {u1}, {sW}, 2\ns_sub_u32 {u1}, {u1}, 4\ns_cmp_lt_u32 {sW}, 2\ns_cselect_b32 {u0}, {u0}, {u1}\ns_add_u32 {u0}, {u0}, {k}')
            self.tile_addr(43, 42, u0, L_WO)
            b = int(self.WQB_[k][2:5])
            for u in range(4): a(f'ds_read_b64_tr_b16 a[{b+2*u}:{b+2*u+1}], v43 offset:{2*u*3072}')
            a(f'ds_read_b64_tr_b16 {self.WQT_[k]}, v43 offset:{8*3072}')
        self.emit(self.x_stats()[:6])
        a('s_waitcnt lgkmcnt(0)')

        a.label('L_top')
        self.stamp('top')
        self.stage_q('wq')
        self.stamp('q pub')
        with self.it0():
            a(f"""
            v_lshl_add_u32 v2, v0, 3, {sS}
            s_lshl_b32 {u0}, {sH}, 3
            v_and_b32 v3, 7, v0
            v_add_u32 v3, {u0}, v3
            v_cmp_gt_u32 vcc, 32, v0
            s_mov_b32 {t6}, {W_FL}
            v_cndmask_b32 v2, v3, v2, vcc
            v_lshlrev_b32 v2, 7, v2
            """)
            self.row192_addr(self.SR, self.SR + 1, 1, sRING)
            flag = False
            for s_ in range(cfg.c2 + 1):
                if s_ == 8: self.v_raddr(1)
                self.kv_step(s_)
                if not flag and 'st' not in self.vm['3']:
                    flag = True
                    with self.skip(f's_cmp_lg_u32 {sW}, 3'):
                        a(f"""
                        v_mov_b32 v1, {sEP}
                        s_lshl_b32 {u0}, {sCU}, 7
                        v_mov_b32 v3, {u0}
                        s_mov_b64 exec, {ML0}
                        buffer_store_dword v1, v3, {SRDW}, {t6} offen sc1
                        s_mov_b64 exec, -1
                        """)
                        self.vissue('fl', '3')
                if s_ == cfg.c1:
                    with self.skip(f's_cmp_eq_u32 {sW}, 3'):
                        a(f'buffer_load_dword v6, v2, {SRDW}, {t6} offen sc1'); self.vissue('cnt', 'g')
            lp, ld = a.newlabel('Lcnt'), a.newlabel('Lcntok')
            a(f's_cmp_eq_u32 {sW}, 3\ns_cbranch_scc1 {ld}')
            self.vwait('cnt', 'g')
            a(f's_mov_b32 {sCNT}, 0'); a.label(lp)
            a(f"""
            v_cmp_ne_u32 vcc, {sEP}, v6
            s_cbranch_vccz {ld}
            s_sleep 8
            buffer_load_dword v6, v2, {SRDW}, {t6} offen sc1
            s_add_u32 {sCNT}, {sCNT}, 1
            s_waitcnt vmcnt(0)
            s_cmp_lt_u32 {sCNT}, {sLIM}
            s_cbranch_scc1 {lp}
            s_mov_b32 {sLIM}, 0
            """)
            a.label(ld)
        def w3a():
            with self.skip(f's_cmp_lg_u32 {sIT}, 0'):
                for s_ in range(cfg.c2 + 1, cfg.c3 + 1): self.kv_step(s_, '3')
                if 'cs' not in cfg.skip and cfg.early < 1:
                    self.clear_boxes([B_QB, B_G, B_CB], 4)
                    self.clear_cross_small(4, [81920]); self.clear_EFS(4)
            self.att_pre0(); self.zero_S()
        self.split3(lambda: self.gather_a(vCSA, True, self.att_pre), w3a)
        self.stamp("a' done")
        self.att_qk()
        self.stamp('qk done')
        with self.it0(): a(f'v_readfirstlane_b32 {sFAST}, v14')
        def hook():
            def h0():
                self.SR = 4; self.SV = 8
                self.v_raddr(9); self.voff192(8, 9, 384)
                for s_ in range(cfg.c3 + 1, 16):
                    self.kv_step(s_); self.seg(f'v{s_}', 10, 11)
                a('s_waitcnt lgkmcnt(0)')
                assert 'clr' not in self.vm['3'] and 'dr' not in self.vm['3'] and 'dr' not in self.vm['g']
            with self.it0(): h0()
            self.stamp('v ready')
        self.att_pv(hook)
        self.stamp('b pub')
        if cfg.seg.get('b1'):
            with self.it0(): self.seg('b1', 12, 13)
        if cfg.lt:
            a('s_waitcnt vmcnt(0)\ns_barrier'); self.stamp('all'); a(f's_mov_b32 {sSTI}, {{NST}}\ns_branch L_exit')
        def gb():
            self.gather_b(lambda: self.o_pre(L_WO, True)); self.stamp('b done')
            assert 'wo' not in self.vm['g']
            self.o_g(True)
        def w3b():
            with self.skip(f's_cmp_lg_u32 {sIT}, 0'):
                self.seg('b2', 1, 2, '3', cap=False); self.vwait('wo', '3')
            self.o_pre(L_WO, True)
            with self.it1(): a('s_waitcnt vmcnt(2)')
            self.o_w3(True)
            with self.skip(f's_cmp_lg_u32 {sIT}, 0'):
                if not cfg.shadow0 and cfg.early < 2:
                    self.clr_regs(8); self.clear_P(8); self.clear_F(8)
                if cfg.early < 1:
                    self.clear_boxes([IT_H + B_QA, IT_H + B_O, IT_H + B_QB, IT_H + B_G], 8, 'clrF')
                    self.clear_cross_small(8, [2 * 81920, 3 * 81920], 'clrF'); self.clear_EFS(8, 1, 'clrF')
                if cfg.big0:
                    self.vcap(36, '3'); self.clear_P(8, 1, 'clrF'); self.clear_F(8, 1)
            with self.it1(): self.touch([B_QB, B_G], 8, True)
        self.split3(gb, w3b)
        self.vissue('st', 'g')
        self.stamp('c pub')
        if cfg.seg.get('c1'):
            with self.it0(): self.seg('c1', 14, 15)
        self.q_pre('wqb')
        with self.it1(): self.q_reads()
        def w3c():
            def f0():
                self.seg('c2', 6, 7, '3', cap=False); self.vwait('clr', '3'); self.vwait('wqb', '3'); self.touch([B_QB, B_CB], 8, True)
            with self.it0(): f0()
        self.split3(lambda: self.gather_c('c2'), w3c)
        assert 'wqb' not in self.vm['g']
        a(f's_add_u32 {sYP}, {sYP}, 81920\ns_add_u32 {sYG}, {sYG}, 81920\ns_waitcnt lgkmcnt(0)\ns_barrier')
        self.stamp('c done')
        with self.it0(): self.q_reads()
        self.stage_q('wqb')
        self.stamp('qb pub')
        if cfg.seg.get('a1'):
            with self.it0(): self.seg('a1', 6, 7)
        def w3a2():
            self.abs_pre(); a('s_waitcnt vmcnt(0)'); self.vdrain('3')
        self.split3(lambda: self.gather_a(vCSB, False, self.abs_pre), w3a2)
        assert not self.vm['g']
        self.stamp("a'b done")
        self.stage_abs()
        self.stamp('e pub')
        self.stage_sc()
        self.stamp('p pub')
        self.stage_ctx()
        self.stamp('f pub')
        self.uv_pre()
        def w3f():
            with self.skip(f's_cmp_lg_u32 {sIT}, 0'):
                self.touch([B_G, IT_H + B_QA, IT_H + B_O], 16, False)
                a('s_waitcnt vmcnt(0)')
            a('s_waitcnt lgkmcnt(0)')
            self.uv_wread(8, 60)
        self.split3(self.gather_f, w3f)
        self.stage_uv()
        self.stamp('g pub')
        def gg():
            self.gather_g(lambda: self.o_pre(L_WOB, False)); self.stamp('g done'); self.o_g(False)
        def w3g():
            self.o_pre(L_WOB, False); self.o_w3(False)
        self.split3(gg, w3g)
        self.stamp('c2 pub')
        with self.skip(f's_cmp_eq_u32 {sIT}, 0'):
            a(f's_add_u32 {u0}, {sW3O}, {sH}\ns_cmp_lg_u32 {u0}, 0\ns_cbranch_scc1 L_exit')
        a(f"""
        s_add_u32 {sHB}, {sHB}, {IT_H}
        s_add_u32 {sEPB}, {sEPB}, 65536
        s_add_u32 {sEG}, {sEG}, 65536
        s_add_u32 {sPO}, {sPO}, {2*MiB}
        s_add_u32 {sFP}, {sFP}, {3*MiB}
        s_add_u32 {sFG}, {sFG}, {3*MiB}
        s_add_u32 {sFSP}, {sFSP}, 65536
        s_add_u32 {sFSG}, {sFSG}, 65536
        """)
        self.q_pre('wq')
        self.srd('out')
        self.split3(lambda: self.gather_c(None), lambda: None)
        a(f"""
        s_cmp_lg_u32 {sIT}, 0
        s_cbranch_scc1 L_out
        s_add_u32 {sYP}, {sYP}, 81920
        s_add_u32 {sYG}, {sYG}, 81920
        s_mov_b32 {sIT}, 1
        s_mov_b32 {sSTI}, {{NST}}
        s_waitcnt lgkmcnt(0)
        s_barrier
        s_branch L_top
        """)
        a.label('L_out')
        a(f"""
        s_mul_i32 {t0}, {sS}, 160
        buffer_store_short v20, v60, {SRDT}, {t0} offen
        s_add_u32 {t0}, {sCU}, {sW}
        s_cmp_lg_u32 {t0}, 0
        s_cbranch_scc1 L_exit
        v_mov_b32 v1, {sEP}
        v_mov_b32 v2, {W_EP}
        s_mov_b64 exec, {ML0}
        buffer_store_dword v1, v2, {SRDW}, 0 offen
        s_mov_b64 exec, -1
        """)
        a.label('L_exit')
        if cfg.stamps:
            self.stamp('end')
            a(f"""
            s_cmp_lg_u32 {sW}, 0
            s_cbranch_scc1 L_end
            s_lshl_b32 {t0}, s2, 8
            s_add_u32 {t0}, {t0}, 0x8000000
            v_lshl_add_u32 v1, v0, 2, {t0}
            global_store_dword v1, v63, s[90:91]
            """)
        a('s_branch L_end')
        for blk in self.side: a.items += blk
        a.label('L_last'); a.label('L_end')
        txt = a.finalize().replace('{NST}', str(self.nstamp - 2))
        if 'st' in cfg.skip:
            txt = '\n'.join(('    s_nop 0' if l.strip().startswith('buffer_store') else l) for l in txt.split('\n'))
        def fix(l):
            if l.strip().startswith('buffer_load') and ' nt' in l:
                kv = SRDK in l or SRDV in l
                if (kv and not cfg.ntkv) or (not kv and not cfg.ntw): return l.replace(' nt', '')
            return l
        txt = '\n'.join(fix(l) for l in txt.split('\n'))
        if 'nt' in cfg.skip:
            txt = '\n'.join((l + ' nt' if l.strip().startswith('buffer_store') and l.endswith('sc1') else l) for l in txt.split('\n'))
        if 'ld' in cfg.skip:
            txt = '\n'.join(('    s_nop 0' if l.strip().startswith('buffer_load') and ' sc1' in l else l) for l in txt.split('\n'))
            txt = txt.replace('s_cbranch_vccnz', 's_cbranch_execz').replace('s_cbranch_vccz', 's_cbranch_execnz')
        return wrap(txt, 256, 256, LDS_BYTES)

if __name__ == '__main__':
    import argparse, json
    ap = argparse.ArgumentParser()
    ap.add_argument('-o', default='cdna_kernels/' + NAME + '.s')
    ap.add_argument('--stamps', action='store_true')
    ap.add_argument('--slow', action='store_true')
    ap.add_argument('--set', action='append', default=[])
    args = ap.parse_args()
    cfg = Cfg(); cfg.stamps = args.stamps; cfg.force_slow = args.slow
    for kv in args.set:
        k, v = kv.split('=', 1)
        if '.' in k:
            d, kk = k.split('.'); dd = dict(getattr(cfg, d)); dd[kk] = eval(v); setattr(cfg, d, dd)
        else: setattr(cfg, k, eval(v))
    g = Gen(cfg); txt = g.build()
    open(args.o, 'w').write(txt)
    if cfg.stamps: json.dump(g.names, open(args.o + '.names.json', 'w'))
    print('wrote', args.o, len(txt), 'bytes')
```

```python
import sys, math, struct
sys.path.insert(0, 'dev')
from gasm import *

def f2u(x): return struct.unpack('<I', struct.pack('<f', x))[0]

class Cfg:
    stamps = False
    force_slow = False
    dly = dict(a=1, b=1, c=9, e=10, p=1, f=20, g=1)
    warm_code = True
    cap = 7
    capfrom = 2
    clrF = 'c'
    cap2 = 7
    seg = dict(v13=[('wo', 0, 4)], v14=[('wo', 4, 8)], b1=[('wqb', 0, 8)], b2=[('ckv', 0, 6)], c1=[('wuk', 0, 0), ('wuv', 0, 3)], c2=[('wuv', 3, 9)], a1=[('wob', 0, 8)])
    cupto = 'wob'
    early = 16
    early_at = 13
    cap3 = 24
    lim = 0x100000
    n0 = 2
    depth = 2
    hmap = 'block'
    backoff = 0
    bo_after = 2
    ukd = 'c'
    c1 = 6
    c2 = 8
    c3 = 11
    fine = False
    noperm = False
    noatom = False
    vorder = 'BA'
    win = dict(b=[('wqb', 0, 30), ('ckv', 0, 12)], c=[('ckv', 12, 12), ('wuv', 0, 36)], a=[('wob', 0, 32)])

sFAST = 's3'
sCU, sH, sS, sKB, sCB, sW, sIT, sKV = 's4', 's5', 's6', 's7', 's8', 's9', 's10', 's11'
SRDK, SRDV, SRDW, SRDT = 's[12:15]', 's[16:19]', 's[20:23]', 's[24:27]'
t0, t1, t2, t3, t4, t5, t6, t7 = 's28', 's29', 's30', 's31', 's32', 's33', 's34', 's35'
M48, M16, ML0, M60, M32 = 's[36:37]', 's[38:39]', 's[40:41]', 's[42:43]', 's[50:51]'
sC, sPLO, sPHI, sLIM, sCNT, sSTI = 's44', 's45', 's46', 's47', 's48', 's49'
sL, sACC, u0, u1, u2 = 's52', 's53', 's54', 's55', 's56'
P = {n: 64 + 2 * i for i, n in enumerate(['x', 'k', 'v', 'wq', 'wo', 'bx', 'ckv', 'wqb', 'wuk', 'wuv', 'wob', 'out', 'dbg', 'ws'])}
SZ = dict(x=1280, k=50331648, v=50331648, wq=7864320, wo=7864320, ckv=6291456, wqb=7864320, wuk=9437184, wuv=9437184, wob=7864320, out=1280, dbg=256)

L_WO, L_WQB, L_WOB, L_WUV, L_CKV, L_SCR = 0, 30720, 61440, 92160, 129024, 153600
L_SX = L_SCR; L_OW = L_SCR; L_PB = L_SCR + 4096; L_ML = L_SCR + 5120
L_XS = L_SCR + 8192; L_ONES = L_XS + 192; L_ZERO = L_ONES + 160
L_QS = L_ZERO + 160; L_US = L_QS + 384; L_SCAL = L_US + 192; L_JUNK = L_SCAL + 32; L_FLAG = L_SCAL + 16
LDS_BYTES = 163840
assert L_JUNK + 64 <= LDS_BYTES

MiB = 1 << 20
W_Q, W_O, W_G, W_Y, W_E, W_P, W_F = 0, 2 * MiB, 5 * MiB // 2, 3 * MiB, 7 * MiB // 2, 4 * MiB, 8 * MiB
WS_BYTES = 16 * MiB
W_EP = W_E + 3 * 65536
sEP = 's62'
sIDX, sNEED, sMAX, sFLG = 's63', 's100', 's101', 's59'
OOB = 64 * MiB
SCALE = 192 ** -0.5 * math.log2(math.e)
DP = 'row_mask:0xf bank_mask:0xf'
vCSA, vCSB = 61, 62
sRING = 's57'
SK = 44

MAP_TR_SA = {5: 6, 3: 5, 1: 4, 2: 3, 4: 2, 0: 1, 6: 7, 7: 8}
MAP_TR_DN = {5: 6, 3: 5, 2: 4, 4: 3, 1: 2, 0: 1}
MAP_NAT_SA = {7: 8, 6: 7, 5: 6, 4: 5, 1: 4, 3: 3, 2: 2, 0: 1}

class Gen:
    def __init__(self, cfg):
        self.cfg = cfg
        self.a = Asm()
        self.vm = {'g': [], '3': []}
        self.nstamp = 0
        self.names = []
        self.cold = []
        self.dyn = False
        self.nflag = 0

    def vissue(self, tag, who='g3'):
        for w in who: self.vm[w].append(tag)
    def vwait(self, tag, who='g3'):
        n = 63; found = False
        for w in who:
            idx = [i for i, t in enumerate(self.vm[w]) if t == tag]
            if idx:
                found = True
                n = min(n, len(self.vm[w]) - 1 - idx[-1])
        if not found: return
        self.a(f's_waitcnt vmcnt({n})')
        for w in who:
            self.vm[w] = self.vm[w][max(0, len(self.vm[w]) - n):] if n else []
    def vdrain(self, who='g'):
        for w in who: self.vm[w] = []
    def vcap(self, n, who='g3'):
        if max(len(self.vm[w]) for w in who) > n:
            self.a(f's_waitcnt vmcnt({n})')
            for w in who: self.vm[w] = self.vm[w][max(0, len(self.vm[w]) - n):]

    def stamp(self, name=''):
        if not self.cfg.stamps: return
        self.a(f"""
        ; stamp {self.nstamp} {name}
        s_memrealtime s[96:97]
        s_add_u32 m0, {sSTI}, {self.nstamp}
        s_waitcnt lgkmcnt(0)
        v_writelane_b32 v63, s96, m0
        """)
        self.names.append(name)
        self.nstamp += 1

    def srd(self, name, dst=24, nbytes=None):
        p = P[name]
        self.a(f"""
        s_mov_b32 s{dst}, s{p}
        s_mov_b32 s{dst+1}, s{p+1}
        s_mov_b32 s{dst+2}, {nbytes if nbytes is not None else SZ[name]}
        s_mov_b32 s{dst+3}, 0x00020000
        """)

    def cond(self, skip_if):
        g = self
        class C:
            def __enter__(s):
                s.l = g.a.newlabel('Lskip')
                g.a(f'{skip_if}\ns_cbranch_scc1 {s.l}')
            def __exit__(s, *e):
                g.a.label(s.l)
        return C()
    def it0(self): return self.cond(f's_cmp_lg_u32 {sIT}, 0')
    def it1(self): return self.cond(f's_cmp_eq_u32 {sIT}, 0')
    def w3only(self): return self.cond(f's_cmp_lg_u32 {sW}, 3')

    def split3(self, gather_fn, w3_fn):
        a = self.a
        l3, le = a.newlabel('Lw3'), a.newlabel('Lj')
        a(f's_cmp_eq_u32 {sW}, 3\ns_cbranch_scc1 {l3}')
        gather_fn()
        a(f's_branch {le}')
        a.label(l3)
        w3_fn()
        a.label(le)

    def bitperm(self, dst, src, mp, tmp, add=None):
        a = self.a
        groups = {}
        for sb, db in mp.items(): groups.setdefault(db - sb, []).append(sb)
        first = True
        for sh, bits in sorted(groups.items()):
            mask = sum(1 << b for b in bits)
            tgt = dst if first else tmp
            a(f'v_and_b32 v{tgt}, {mask}, v{src}')
            if first:
                if sh > 0: a(f'v_lshlrev_b32 v{dst}, {sh}, v{dst}')
                elif sh < 0: a(f'v_lshrrev_b32 v{dst}, {-sh}, v{dst}')
            else:
                if sh >= 0: a(f'v_lshl_or_b32 v{dst}, v{tmp}, {sh}, v{dst}')
                else: a(f'v_lshrrev_b32 v{tmp}, {-sh}, v{tmp}\nv_or_b32 v{dst}, v{tmp}, v{dst}')
            first = False
        if add is not None: a(f'v_add_u32 v{dst}, {add}, v{dst}')

    def store_intra(self, lines):
        a = self.a
        ls, le = a.newlabel('Lslow'), a.newlabel('Lsd')
        a(f's_cmp_eq_u32 {sFAST}, 0\ns_cbranch_scc1 {ls}')
        for l in lines: a(l.format(sc=''))
        a(f's_branch {le}')
        a.label(ls)
        for l in lines: a(l.format(sc=' sc1'))
        a.label(le)
        for l in lines:
            if l.startswith('buffer'): self.vissue('st')

    def tree(self, regs, tmp):
        out = []
        r = list(regs)
        out.append(f'v_max3_u32 v{tmp}, v{r[0]}, v{r[1]}, v{r[2]}'); r = r[3:]
        while r:
            if len(r) >= 2: out.append(f'v_max3_u32 v{tmp}, v{tmp}, v{r[0]}, v{r[1]}'); r = r[2:]
            else: out.append(f'v_max_u32 v{tmp}, v{tmp}, v{r[0]}'); r = r[1:]
        return out

    def exact_poll(self, loads, regs, tmp):
        a = self.a
        lp, ld = a.newlabel('Lpoll'), a.newlabel('Lgot')
        a(f's_mov_b32 {sCNT}, 0')
        a.label(lp)
        for l in loads: a(l)
        a('s_waitcnt vmcnt(0)')
        for l in self.tree(regs, tmp): a(l)
        a(f"""
        v_cmp_eq_u32 vcc, -1, v{tmp}
        s_cbranch_vccz {ld}
        s_add_u32 {sCNT}, {sCNT}, 1
        """)
        if self.cfg.backoff:
            with self.cond(f's_cmp_le_u32 {sCNT}, {self.cfg.bo_after}'): a(f's_sleep {self.cfg.backoff}')
        a(f"""
        s_cmp_lt_u32 {sCNT}, {sLIM}
        s_cbranch_scc1 {lp}
        s_mov_b32 {sLIM}, 0
        """)
        a.label(ld)

    def spec_poll(self, loads, regs, tmp, delay, compute, chk, mid=None, redo=None, all_loads=None, undo=None, flag=None):
        a = self.a
        lc, lok, lcold = a.newlabel('Lc'), a.newlabel('Lok'), a.newlabel('Lcold')
        pid = len(self.cold)
        a(f's_mov_b32 {sACC}, 0')
        if delay: a(f's_sleep {delay}')
        for l in loads: a(l)
        if mid is not None: mid(lc)
        a('s_waitcnt vmcnt(0)')
        a.label(lc)
        compute()
        a(f'v_cmp_u_f32 vcc, v{chk[0]}, v{chk[1]}\ns_cbranch_vccnz {lcold}')
        a.label(lok)

        def cold():
            a.label(lcold)
            a(f's_cmp_lg_u32 {sACC}, 0\ns_cbranch_scc1 {lok}\ns_waitcnt lgkmcnt(0)')
            if undo: undo()
            self.exact_poll(all_loads or loads, regs, tmp)
            if self.cfg.stamps:
                a(f's_add_u32 {sCNT}, {sCNT}, 1\ns_mul_i32 {sCNT}, {sCNT}, {sIT}\nv_writelane_b32 v63, {sCNT}, {50+pid}')
            if redo: redo()
            a(f's_mov_b32 {sACC}, 1\ns_branch {lc}')
        self.cold.append(cold)
        if mid is None: self.vdrain('g')

    def allrows(self, op, r, t):
        return [f'v_mov_b32 v{t}, v{r}', f'v_permlane16_swap_b32 v{r}, v{t}', f'{op} v{r}, v{r}, v{t}',
                f'v_mov_b32 v{t}, v{r}', f'v_permlane32_swap_b32 v{r}, v{t}', f'{op} v{r}, v{r}, v{t}']

    def emit(self, lines):
        for l in lines: self.a(l)

    def idx(self, dst, tmp):
        self.a(f"""
        v_and_b32 v{tmp}, 1, v0
        v_mul_u32_u24 v{tmp}, 0xaaaa, v{tmp}
        v_or_b32 v{dst}, 0x4444, v{tmp}
        """)

    def merge(self, dst, accs, lo=0):
        return [f'v_add_f32_dpp v{dst}, v{r+lo}, v{r+lo+1} quad_perm:[0,1,2,3] row_mask:{1<<g:#x} bank_mask:0xf' for g, r in enumerate(accs)]

    G192 = dict(wq=(L_WO, 12288), wqb=(L_WQB, 12288), wuv=(L_WUV, 12288), wuk=(L_WUV, 12288), ckv=(L_CKV, 1536))
    def base192(self, name, dst):
        if name in ('wq', 'wqb'): return f's_mul_i32 {dst}, {sS}, {80*12288}\ns_mul_i32 {u1}, {sH}, 384\ns_add_u32 {dst}, {dst}, {u1}'
        if name in ('wuv', 'wuk'): return f's_mul_i32 {dst}, {sS}, {96*12288}\ns_mul_i32 {u1}, {sH}, 384\ns_add_u32 {dst}, {dst}, {u1}'
        return f's_mul_i32 {dst}, {sKB}, {64*1536}\ns_mul_i32 {u1}, {sCB}, 384\ns_add_u32 {dst}, {dst}, {u1}'
    def voff192(self, dst, tmp, rstride):
        self.a(f"""
        v_lshrrev_b32 v{dst}, 3, v0
        v_and_b32 v{tmp}, 6, v{dst}
        v_xor_b32 v{tmp}, v{tmp}, v0
        v_and_b32 v{tmp}, 7, v{tmp}
        v_mul_u32_u24 v{dst}, {rstride}, v{dst}
        v_lshl_add_u32 v{dst}, v{tmp}, 4, v{dst}
        """)
    def voff_wo(self, dst, tmp):
        self.a(f"""
        v_mul_u32_u24 v{dst}, 205, v0
        v_lshrrev_b32 v{dst}, 11, v{dst}
        v_mul_u32_u24 v{tmp}, 1120, v{dst}
        v_lshl_add_u32 v{dst}, v0, 4, v{tmp}
        """)

    NBLK = dict(wq=30, wqb=30, wuv=36, ckv=24)
    def dma_all192(self, name, i0, i1, va, vb, who='g3', cap=None):
        a = self.a
        lds, rs = self.G192[name]; nblk = self.NBLK[name]
        self.srd(name); a(self.base192(name, u0)); self.voff192(va, vb, rs)
        for i in range(i0, i1):
            a(f's_add_u32 {u1}, {sW}, {4*i}' if 4 * i + 3 < nblk else f's_and_b32 {u1}, {sW}, 1\ns_add_u32 {u1}, {u1}, {4*i}')
            a(f"""
            s_lshl_b32 {u2}, {u1}, 10
            s_add_u32 m0, {u2}, {lds}
            s_mul_i32 {u2}, {u1}, 43
            s_lshr_b32 {u2}, {u2}, 7
            s_mul_i32 {u2}, {u2}, {8*rs - 384}
            s_lshl_b32 {u1}, {u1}, 7
            s_add_u32 {u2}, {u2}, {u1}
            s_add_u32 {u2}, {u2}, {u0}
            """)
            if cap: self.vcap(cap, who)
            a(f'buffer_load_dwordx4 v{va}, {SRDT}, {u2} offen nt lds')
            self.vissue(name, who)

    def dma_allwo(self, name, i0, i1, va, vb, who='g3', cap=None):
        a = self.a
        self.srd(name); self.voff_wo(va, vb)
        a(f"""
        s_mul_i32 {u0}, {sH}, {192*1280}
        s_mul_i32 {u1}, {sS}, 160
        s_add_u32 {u0}, {u0}, {u1}
        s_mul_i32 {u1}, {sW}, {48*1280}
        s_add_u32 {u0}, {u0}, {u1}
        s_mul_i32 {u1}, {sW}, {48*160}
        s_mov_b64 exec, {M60}
        """)
        for i in range(i0, i1):
            if cap: self.vcap(cap, who)
            a(f"""
            s_add_u32 m0, {u1}, {(L_WO if name == 'wo' else L_WOB) + i*960}
            s_add_u32 {u2}, {u0}, {i*6*1280}
            buffer_load_dwordx4 v{va}, {SRDT}, {u2} offen nt lds
            """)
            self.vissue(name, who)
        a('s_mov_b64 exec, -1')

    def seg(self, key, va, vb, who='g3', cap=True):
        cp = self.cfg.cap2 if cap else None
        for (name, i0, i1) in self.cfg.seg.get(key, []):
            if name == 'wuk': self.uk_direct(va, vb, who, cp)
            elif name in ('wo', 'wob'): self.dma_allwo(name, i0, i1, va, vb, who, cp)
            else: self.dma_all192(name, i0, i1, va, vb, who, cp)

    def seg0(self, key, va, vb, who='g3'):
        if self.cfg.seg.get(key):
            with self.it0(): self.seg(key, va, vb, who)

    def behind(self, key, nloads, va, vb, who='g'):
        def mid(lc):
            for _ in range(nloads): self.vissue('pl', who)
            if self.cfg.seg.get(key):
                with self.it0():
                    self.seg(key, va, vb, who, cap=False)
                    self.vwait('pl', who)
                    self.a(f's_branch {lc}')
            else:
                self.vdrain(who)
        return mid

    def landed(self, name, who='g3'):
        if any(name in self.vm[w] for w in who):
            with self.it0():
                if who == 'g3': self.vwait_split(name)
                else: self.vwait(name, who)

    SR = 46
    SV = 45
    def kv_addr(self):
        a = self.a
        self.voff192(self.SV, 1, 384)
        self.bitperm(1, 0, {3: 4, 4: 2, 5: 1}, 2)
        a(f"""
        v_mul_u32_u24 v1, 384, v1
        v_and_b32 v2, 0x70, v{self.SV}
        v_add_u32 v{SK}, v1, v2
        s_mul_i32 {sRING}, {sW}, 18432
        s_add_u32 {sRING}, {sRING}, {L_SCR - 4*18432}
        """)
    def k_raddr(self):
        self.row192_addr(self.SR, self.SR + 1, 1, sRING)
    def v_raddr(self, tmp):
        self.tr192_addr(self.SR, tmp)
        self.a(f'v_add_u32 v{self.SR}, {sRING}, v{self.SR}')
        for t in range(1, 4): self.a(f'v_xor_b32 v{self.SR+t}, {32*t}, v{self.SR}')
    def kv_issue(self, U, who='g3'):
        a = self.a
        slot = U % 3
        for b in range(6):
            beta, sig = divmod(b, 3)
            if U < 8: off = (32 * (U >> 1) + 8 * beta + (U & 1)) * 384 + sig * 128
            else: off = (16 * (U - 8) + 8 * beta) * 384 + sig * 128
            if self.cfg.cap and U >= self.cfg.capfrom: self.vcap(self.cfg.cap, who)
            a(f"""
            s_add_u32 m0, {sRING}, {slot*6144 + b*1024}
            s_add_u32 {t7}, {sKV}, {off}
            buffer_load_dwordx4 v{SK if U < 8 else self.SV}, {SRDK if U < 8 else SRDV}, {t7} offen nt lds
            """)
            self.vissue(f'U{U}', who)
    def kv_read(self, U):
        a = self.a
        slot = U % 3
        if U < 8:
            for u in range(6):
                r = 24 * U + 4 * u
                a(f'ds_read_b128 a[{r}:{r+3}], v{self.SR + (u & 1)} offset:{slot*6144 + (u//2)*1024}')
        else:
            q = U - 8
            for t in range(12):
                r = 64 + 96 * (q >> 2) + 8 * t + 2 * (q & 3)
                a(f'ds_read_b64_tr_b16 v[{r}:{r+1}], v{self.SR + (t & 3)} offset:{slot*6144 + (t>>2)*1024}')
    def kv_step(self, s_, who='g3'):
        if who == 'g3': self.vwait_split(f'U{s_}') if self.vm['g'] != self.vm['3'] else self.vwait(f'U{s_}')
        else: self.vwait(f'U{s_}', who)
        self.a('s_waitcnt lgkmcnt(0)')
        self.kv_read(s_)
        if s_ + self.cfg.depth < 16: self.kv_issue(s_ + self.cfg.depth, who)

    def tr192_addr(self, dst, tmp, pairmode=False):
        a = self.a
        a(f"""
        v_bfe_u32 v{dst}, v0, 2, 3
        v_and_b32 v{tmp}, 6, v{dst}
        v_lshlrev_b32 v{dst}, 7, v{dst}
        v_lshl_add_u32 v{dst}, v{tmp}, 4, v{dst}
        v_and_b32 v{tmp}, 3, v0
        """)
        if not pairmode: a(f'v_lshl_add_u32 v{dst}, v{tmp}, 3, v{dst}')
        else: a(f'v_lshlrev_b32 v{tmp}, 4, v{tmp}\nv_xor_b32 v{dst}, v{dst}, v{tmp}')
        a(f"""
        v_lshrrev_b32 v{tmp}, 5, v0
        v_mul_u32_u24 v{tmp}, 3072, v{tmp}
        v_add_u32 v{dst}, v{dst}, v{tmp}
        """)
    def tile_addr(self, dst, base, stile, lds_base):
        self.a(f"""
        s_and_b32 {u1}, {stile}, 3
        s_lshl_b32 {u1}, {u1}, 5
        s_lshr_b32 {u2}, {stile}, 2
        s_lshl_b32 {u2}, {u2}, 10
        s_add_u32 {u2}, {u2}, {lds_base}
        v_xor_b32 v{dst}, {u1}, v{base}
        v_add_u32 v{dst}, {u2}, v{dst}
        """)
    def row192_addr(self, dst, dst2, tmp, sbase):
        self.a(f"""
        v_and_b32 v{dst}, 7, v0
        v_and_b32 v{dst2}, 6, v0
        v_lshrrev_b32 v{tmp}, 4, v0
        v_xor_b32 v{dst2}, v{dst2}, v{tmp}
        v_lshlrev_b32 v{dst}, 7, v{dst}
        v_lshl_add_u32 v{dst}, v{dst2}, 4, v{dst}
        v_bfe_u32 v{dst2}, v0, 3, 1
        v_mul_u32_u24 v{dst2}, 3072, v{dst2}
        v_add3_u32 v{dst}, v{dst}, v{dst2}, {sbase}
        v_xor_b32 v{dst2}, 64, v{dst}
        """)
    def sa_read_addr(self, dst, tmp, base):
        self.a(f"""
        v_and_b32 v{tmp}, 1, v0
        v_lshlrev_b32 v{tmp}, 4, v{tmp}
        v_lshrrev_b32 v{dst}, 4, v0
        v_lshl_add_u32 v{dst}, v{dst}, 5, v{tmp}
        """)
        if base is not None: self.a(f'v_add_u32 v{dst}, {base}, v{dst}')


    WQB_ = ['a[240:247]', 'a[248:255]', 'a[216:223]', 'a[224:231]']
    WQT_ = ['v[56:57]', 'v[58:59]', 'a[232:233]', 'a[234:235]']

    def q_pre(self, which):
        a = self.a
        self.sa_read_addr(1, 6, None)
        a(f"""
        v_and_b32 v6, 2, v0
        v_mul_u32_u24 v6, {(L_ONES - L_XS) // 2}, v6
        v_add_u32 v6, {L_XS}, v6
        v_add_u32 v1, v1, v6
        v_lshrrev_b32 v3, 4, v0
        v_lshl_add_u32 v2, v3, 3, v6
        v_add_u32 v2, 128, v2
        v_and_b32 v6, 1, v0
        v_cmp_eq_u32 vcc, 1, v6
        v_mov_b32 v6, {L_ZERO}
        v_lshlrev_b32 v5, 2, v0
        v_cndmask_b32 v2, v2, v6, vcc
        """)
        self.idx(4, 6)
        if which == 'wqb':
            with self.it1(): self.q_reads()

    def q_reads(self):
        a = self.a
        self.tr192_addr(7, 6)
        for k in range(3):
            a(f's_mul_i32 {u0}, {sW}, 3\ns_add_u32 {u0}, {u0}, {k}')
            self.tile_addr(6, 7, u0, L_WQB)
            b = 24 + 10 * k
            for u in range(5):
                a(f'ds_read_b64_tr_b16 v[{b+2*u}:{b+2*u+1}], v6 offset:{2*u*3072}')
            if k == 1: a('s_waitcnt lgkmcnt(4)')

    def x_lane_consts(self):
        a = self.a
        a(f"""
        s_mul_i32 {u0}, {sW}, 7
        s_add_u32 {u1}, {u0}, 6
        s_min_u32 {u1}, {u1}, 19
        v_and_b32 v60, 7, v0
        v_add_u32 v60, {u0}, v60
        v_cmp_ge_u32 s[58:59], {u1}, v60
        v_min_u32 v60, {u1}, v60
        v_lshrrev_b32 v54, 3, v0
        v_mul_u32_u24 v54, 320, v54
        v_lshl_add_u32 v54, v60, 4, v54
        v_lshrrev_b32 v55, 4, v0
        v_lshl_add_u32 v60, v60, 2, v55
        """)
        self.bitperm(55, 60, {k: v for k, v in MAP_TR_SA.items() if k < 6}, 3)
        a(f"""
        v_cmp_gt_u32 vcc, 64, v60
        v_lshlrev_b32 v60, 1, v60
        v_cndmask_b32 v55, v60, v55, vcc
        v_add_u32 v55, {L_XS}, v55
        """)

    def x_stats(self, xr, r, t):
        ops = [f'v_lshlrev_b32 v{r}, 16, v{xr}',
               f'v_cndmask_b32 v{r}, 0, v{r}, s[58:59]',
               f'v_mul_f32_dpp v{r}, v{r}, v{r} quad_perm:[0,1,2,3] row_mask:0xf bank_mask:0x3',
               f'v_add_f32_dpp v{r}, v{r}, v{r} quad_perm:[1,0,3,2] {DP}',
               f'v_add_f32_dpp v{r}, v{r}, v{r} quad_perm:[2,3,0,1] {DP}',
               f'v_add_f32_dpp v{r}, v{r}, v{r} row_half_mirror {DP}'] + self.allrows('v_add_f32', r, t)
        return ops

    def stage_q(self, which):
        a = self.a
        a(f"""
        ds_read_b64 v[10:11], v2
        ds_read_b128 v[6:9], v1
        s_lshl_b32 {t0}, {sL}, 19
        s_lshl_b32 {t1}, {sCU}, 11
        s_add_u32 {t0}, {t0}, {t1}
        s_lshl_b32 {t2}, {sW}, 2
        s_add_u32 {t2}, {t2}, {t0}
        s_cmp_eq_u32 {sW}, 3
        s_cselect_b32 {t2}, {OOB}, {t2}
        """)
        ops = self.x_stats(20, 3, 1)
        if which == 'wq':
            nt = 4; WB = self.WQB_; WT = self.WQT_
            D = [24, 28, 32, 36]
            a(f"""
            s_lshl_b32 {t1}, {sW}, 7
            s_lshl_b32 {t3}, {sW}, 8
            s_sub_u32 {t3}, {t3}, 256
            s_mov_b32 s60, -1
            s_cmp_lt_u32 {sW}, 2
            s_cselect_b32 {t1}, {t1}, {t3}
            s_cselect_b32 s61, 0, -1
            s_add_u32 {t1}, {t1}, {t0}
            """)
            mask = 's[60:61]'
        else:
            nt = 3
            WB = [f'v[{24+10*k}:{24+10*k+7}]' for k in range(3)]
            WT = [f'v[{24+10*k+8}:{24+10*k+9}]' for k in range(3)]
            D = [12, 16, 20]
            a(f's_mul_i32 {t1}, {sW}, 192\ns_add_u32 {t1}, {t1}, {t0}')
            mask = M48
        for _ in range(5): a(ops.pop(0))
        a('s_waitcnt lgkmcnt(1)')
        for k in range(nt):
            a(f'v_mfma_f32_16x16x16_bf16 v[{D[k]}:{D[k]+3}], v[10:11], {WT[k]}, 0')
            if ops: a(ops.pop(0))
            if ops: a(ops.pop(0))
        a('s_waitcnt lgkmcnt(0)')
        while ops: a(ops.pop(0))
        for k in range(nt):
            a(f'v_smfmac_f32_16x16x64_bf16 v[{D[k]}:{D[k]+3}], v[6:9], {WB[k]}, v4')
        a(f"""
        v_and_b32 v1, 8, v0
        v_lshlrev_b32 v1, 1, v1
        v_sub_u32 v1, 784, v1
        """)
        self.emit(self.merge(2, D, 0))
        lines = [f's_mov_b64 exec, {mask}',
                 f'buffer_store_dword v2, v5, {SRDW}, {t1} offen{{sc}}',
                 's_mov_b64 exec, 0x101',
                 f'buffer_store_dword v3, v1, {SRDW}, {t2} offen{{sc}}',
                 's_mov_b64 exec, -1']
        if which == 'wq':
            l0, le = a.newlabel('Lq0'), a.newlabel('Lqe')
            a(f's_cmp_eq_u32 {sIT}, 0\ns_cbranch_scc1 {l0}')
            sv = {k: list(v) for k, v in self.vm.items()}
            self.store_intra(lines)
            self.vm = sv
            a(f's_branch {le}')
            a.label(l0)
            self.emit(self.merge(6, D, 2))
            a(f"""
            s_sub_u32 {t1}, {t1}, {t0}
            s_add_u32 {t1}, {t1}, {L_SX}
            v_add_u32 v5, {t1}, v5
            s_lshl_b32 {t2}, {sW}, 2
            s_add_u32 {t2}, {t2}, {L_SX}
            v_add_u32 v1, {t2}, v1
            s_getreg_b32 {t1}, hwreg(HW_REG_XCC_ID, 0, 4)
            s_cmp_eq_u32 {sW}, 3
            s_cselect_b64 vcc, -1, 0
            v_mov_b32 v7, {t1}
            v_cndmask_b32 v3, v3, v7, vcc
            s_mov_b64 exec, {mask}
            ds_write_b32 v5, v2
            ds_write_b32 v5, v6 offset:1024
            s_mov_b64 exec, 0x101
            ds_write_b32 v1, v3
            s_mov_b64 exec, -1
            s_waitcnt lgkmcnt(0)
            s_barrier
            """)
            with self.w3only():
                a(f"""
                v_lshlrev_b32 v1, 4, v0
                v_add_u32 v2, {L_SX}, v1
                ds_read_b128 v[8:11], v2
                ds_read_b128 v[12:15], v2 offset:1024
                v_mov_b32 v4, -1
                v_mov_b32 v5, -1
                v_mov_b32 v6, -1
                v_mov_b32 v7, -1
                s_lshl_b32 {t1}, {sCU}, 10
                s_add_u32 {t1}, {t1}, {W_O}
                s_mul_i32 {t2}, {sS}, 10240
                s_mul_i32 {t3}, {sH}, 320
                s_add_u32 {t2}, {t2}, {t3}
                s_add_u32 {t2}, {t2}, {W_Y}
                s_mov_b64 exec, 0xfffff
                buffer_store_dwordx4 v[4:7], v1, {SRDW}, {t2} offen sc1
                s_mov_b32 exec_lo, -1
                s_mov_b32 exec_hi, 0x3ffff
                buffer_store_dwordx4 v[4:7], v1, {SRDW}, {t1} offen sc1
                s_waitcnt lgkmcnt(0)
                buffer_store_dwordx4 v[8:11], v1, {SRDW}, {t0} offen sc1
                s_mov_b64 exec, {M48}
                buffer_store_dwordx4 v[12:15], v1, {SRDW}, {t0} offen offset:1024 sc1
                s_mov_b64 exec, -1
                """)
                for _ in range(4): self.vissue('st', '3')
            a.label(le)
        else:
            self.store_intra(lines)
            with self.it0():
                self.emit(self.merge(2, D, 2))
                self.store_intra([f's_mov_b64 exec, {mask}', f'buffer_store_dword v2, v5, {SRDW}, {t1} offen offset:1024{{sc}}', 's_mov_b64 exec, -1'])

    def g8_pre(self, mp, stride):
        a = self.a
        a(f's_lshl_b32 {u0}, {sW}, 6\nv_add_u32 v1, {u0}, v0')
        self.bitperm(2, 1, mp, 3, add=L_QS)
        a(f'v_lshlrev_b32 v1, 2, v1\nv_and_b32 v3, 7, v0\nv_mul_u32_u24 v3, {stride}, v3')

    def sum8(self, r):
        return [f'v_pk_add_f32 v[{r}:{r+1}], v[{r}:{r+1}], v[{r+2}:{r+3}]', f'v_pk_add_f32 v[{r+4}:{r+5}], v[{r+4}:{r+5}], v[{r+6}:{r+7}]',
                f'v_pk_add_f32 v[{r}:{r+1}], v[{r}:{r+1}], v[{r+4}:{r+5}]', f'v_add_f32 v{r}, v{r}, v{r+1}']

    def gather_a(self, cs, first=False):
        a = self.a
        self.g8_pre(MAP_NAT_SA, 2048)
        a(f"""
        s_lshl_b32 {t0}, {sL}, 19
        s_lshl_b32 {t1}, {sH}, 14
        s_add_u32 {t0}, {t0}, {t1}
        s_add_u32 {t1}, {t0}, 4096
        s_add_u32 {t2}, {t0}, 8192
        s_add_u32 {t3}, {t0}, 12288
        """)
        so = [t0, t1, t2, t3]
        loads = [f'buffer_load_dwordx3 v[12:14], v3, {SRDW}, {t0} offen offset:768 sc1',
                 f'buffer_load_dwordx3 v[16:18], v3, {SRDW}, {t0} offen offset:784 sc1']
        loads += [f'buffer_load_dword v{4+p}, v1, {SRDW}, {so[p>>1]} offen offset:{2048*(p&1)} sc1' for p in range(8)]
        cl = [f'buffer_load_dword v{20+p}, v1, {SRDW}, {so[p>>1]} offen offset:{2048*(p&1)+1024} sc1' for p in range(8)]
        def cs_done():
            self.emit(self.sum8(20)); a(f'v_mul_f32 v{cs}, {f2u(1/640.)}, v20')
        def mid2(lc):
            with self.it0():
                self.exact_poll(cl + loads, list(range(4, 15)) + [16, 17, 18] + list(range(20, 28)), 15)
                cs_done()
                a(f's_branch {lc}')
            for x in loads: a(x)
        def mid(lc):
            for _ in loads: self.vissue('ga', 'g')
            l = a.newlabel('Lmid')
            a(f's_cmp_lg_u32 {sIT}, 0\ns_cbranch_scc1 {l}')
            for x in cl: a(x); self.vissue('ga', 'g')
            a(f'buffer_load_dword v28, v3, {SRDW}, {t0} offen offset:780 sc1'); self.vissue('ga', 'g')
            for s_ in range(self.cfg.c2 + 1, self.cfg.c3 + 1): self.kv_step(s_, 'g')
            self.vwait('ga', 'g')
            cs_done()
            a(f"""
            s_getreg_b32 {u0}, hwreg(HW_REG_XCC_ID, 0, 4)
            v_cmp_ne_u32 vcc, {u0}, v28
            v_mov_b32 v29, {L_SCAL}
            s_cmp_eq_u64 vcc, 0
            s_cselect_b32 {u0}, {0 if self.cfg.force_slow else 1}, 0
            v_mov_b32 v28, {u0}
            ds_write_b32 v29, v28 offset:8
            s_branch {lc}
            """)
            a.label(l)
        def compute():
            s8 = self.sum8(4)
            a(f"""
            v_add_f32 v12, v12, v13
            {s8[0]}
            v_add_f32 v12, v12, v14
            {s8[1]}
            v_add_f32 v16, v16, v17
            v_add_f32_dpp v12, v12, v12 quad_perm:[1,0,3,2] {DP}
            {s8[2]}
            v_add_f32 v16, v16, v18
            v_add_f32_dpp v12, v12, v12 quad_perm:[2,3,0,1] {DP}
            {s8[3]}
            v_add_f32_dpp v12, v12, v12 row_half_mirror {DP}
            v_fma_f32 v4, -v12, v{cs}, v4
            v_cvt_pk_bf16_f32 v5, v4, v4
            ds_write_b16 v2, v5
            """)
        self.spec_poll(loads if first else [], list(range(4, 15)) + [16, 17, 18], 15, self.cfg.dly['a'], compute, (4, 16), mid=mid if first else mid2, all_loads=loads)
        if not first: self.vdrain('g')

    def rstd_ops(self):
        return [f'v_add_f32_dpp v16, v16, v16 quad_perm:[1,0,3,2] {DP}',
                f'v_mul_f32 v12, {f2u(1/640.)}, v12',
                f'v_mov_b32 v13, {L_SCAL}',
                f'v_add_f32_dpp v16, v16, v16 quad_perm:[2,3,0,1] {DP}',
                'v_mul_f32 v12, v12, v12',
                f's_cmp_eq_u32 {sW}, 0',
                f'v_add_f32_dpp v16, v16, v16 row_half_mirror {DP}',
                f's_cselect_b32 {u0}, 0, 32',
                f'v_mul_f32 v16, {f2u(1/640.)}, v16',
                'v_sub_f32 v16, v16, v12',
                'v_max_f32 v16, 0, v16',
                f'v_add_f32 v16, {f2u(1e-5)}, v16',
                'v_rsq_f32 v16, v16',
                f'v_add_u32 v13, {u0}, v13',
                f'v_mul_f32 v16, {sC}, v16',
                'ds_write_b32 v13, v16']

    def att_pre(self):
        self.sa_read_addr(52, 55, L_QS)
        self.idx(53, 55)

    def clr_regs(self):
        self.a('v_lshlrev_b32 v8, 4, v0\nv_mov_b32 v4, -1\nv_mov_b32 v5, -1\nv_mov_b32 v6, -1\nv_mov_b32 v7, -1')

    def intra3(self, lines):
        n = len(self.vm['g'])
        self.store_intra(lines)
        self.vm['g'] = self.vm['g'][:n]
        self.vm['3'] = [('clr' if t == 'st' and i >= len(self.vm['3']) - len(lines) else t) for i, t in enumerate(self.vm['3'])]

    def clear_small(self):
        a = self.a
        self.clr_regs()
        a(f"""
        s_add_u32 {t0}, {sL}, 1
        s_lshl_b32 {t1}, {t0}, 19
        s_lshl_b32 {t2}, {sCU}, 11
        s_add_u32 {t1}, {t1}, {t2}
        s_lshl_b32 {t2}, {sIT}, 18
        s_lshl_b32 {t3}, {sCU}, 10
        s_add_u32 {t2}, {t2}, {t3}
        s_add_u32 {t2}, {t2}, {W_G}
        s_add_u32 {t3}, {t3}, {W_O + (1<<18)}
        s_add_u32 {t4}, {t1}, {1<<19}
        s_cmp_eq_u32 {sIT}, 0
        s_cselect_b32 {t3}, {t3}, {OOB}
        s_cselect_b32 {t4}, {t4}, {OOB}
        s_cselect_b32 {t5}, {t1}, {OOB}
        """)
        self.intra3([f'buffer_store_dwordx4 v[4:7], v8, {SRDW}, {t1} offen{{sc}}',
                     f'buffer_store_dwordx4 v[4:7], v8, {SRDW}, {t5} offen offset:1024{{sc}}',
                     f'buffer_store_dwordx4 v[4:7], v8, {SRDW}, {t2} offen{{sc}}',
                     f'buffer_store_dwordx4 v[4:7], v8, {SRDW}, {t3} offen{{sc}}',
                     f'buffer_store_dwordx4 v[4:7], v8, {SRDW}, {t4} offen{{sc}}'])
        a(f"""
        s_mul_i32 {t0}, {t0}, 81920
        s_mul_i32 {t1}, {sS}, 10240
        s_add_u32 {t0}, {t0}, {t1}
        s_mul_i32 {t1}, {sH}, 320
        s_add_u32 {t0}, {t0}, {t1}
        s_add_u32 {t0}, {t0}, {W_Y}
        s_add_u32 {t2}, {t0}, 81920
        s_cmp_eq_u32 {sIT}, 0
        s_cselect_b32 {t2}, {t2}, {OOB}
        s_lshl_b32 {t1}, {sIT}, 16
        s_mul_i32 {t3}, {sCU}, 192
        s_add_u32 {t1}, {t1}, {t3}
        s_add_u32 {t1}, {t1}, {W_E}
        s_mov_b64 exec, 0xfffff
        buffer_store_dwordx4 v[4:7], v8, {SRDW}, {t0} offen sc1
        buffer_store_dwordx4 v[4:7], v8, {SRDW}, {t2} offen sc1
        s_mov_b64 exec, 0xfff
        buffer_store_dwordx4 v[4:7], v8, {SRDW}, {t1} offen sc1
        s_mov_b64 exec, -1
        """)
        for _ in range(3): self.vissue('clr', '3')

    def clear_P(self):
        a = self.a
        self.clr_regs()
        a(f"""
        s_lshl_b32 {t1}, {sCU}, 13
        s_lshl_b32 {t2}, {sIT}, 21
        s_add_u32 {t1}, {t1}, {t2}
        s_add_u32 {t1}, {t1}, {W_P}
        s_add_u32 {t2}, {t1}, 4096
        """)
        self.intra3([f'buffer_store_dwordx4 v[4:7], v8, {SRDW}, {[t1,t2][i>>2]} offen offset:{(i&3)*1024}{{sc}}' for i in range(8)])

    def clear_F(self, r=4):
        a = self.a
        a(f"""
        v_lshlrev_b32 v{r+4}, 4, v0
        v_mov_b32 v{r}, -1
        v_mov_b32 v{r+1}, -1
        v_mov_b32 v{r+2}, -1
        v_mov_b32 v{r+3}, -1
        s_lshl_b32 {t0}, {sCU}, 14
        s_lshl_b32 {t1}, {sIT}, 22
        s_add_u32 {t0}, {t0}, {t1}
        s_add_u32 {t0}, {t0}, {W_F}
        """)
        for i in range(16):
            a(f'buffer_store_dwordx4 v[{r}:{r+3}], v{r+4}, {SRDW}, {t0} offen offset:{(i&3)*1024} sc1'); self.vissue('clrF', '3')
            if i & 3 == 3: a(f's_add_u32 {t0}, {t0}, 4096')

    def clr_ack(self, tag, n1=0):
        a = self.a
        l1, l2 = a.newlabel('Lca'), a.newlabel('Lcb')
        a(f's_cmp_lg_u32 {sIT}, 0\ns_cbranch_scc1 {l1}')
        self.vwait(tag, '3')
        a(f's_branch {l2}')
        a.label(l1); a(f's_waitcnt vmcnt({n1})'); a.label(l2)

    def att_qk(self):
        a = self.a
        S = [20 + 4 * n for n in range(8)]
        for n in range(8): a(f'v_mov_b64 v[{S[n]}:{S[n]+1}], 0')
        a(f"""
        s_waitcnt lgkmcnt(0)
        s_barrier
        ds_read_b128 v[4:7], v52
        ds_read_b128 v[8:11], v52 offset:128
        """)
        ops = self.rstd_ops()
        for _ in range(6): a(ops.pop(0))
        Q = [4, 8, 4]
        for tau in range(3):
            if tau == 0: a('s_waitcnt lgkmcnt(1)')
            if tau == 1: a('s_waitcnt lgkmcnt(1)')
            if tau == 2: a('s_waitcnt lgkmcnt(1)')
            for n in range(8):
                i = 24 * n + 8 * tau
                a(f'v_smfmac_f32_16x16x64_bf16 v[{S[n]}:{S[n]+3}], v[{Q[tau]}:{Q[tau]+3}], a[{i}:{i+7}], v53')
                if tau == 0:
                    for _ in range(2):
                        if ops: a(ops.pop(0))
                if tau == 1 and n == 0:
                    a(f's_barrier\nv_mov_b32 v13, {L_SCAL}\nds_read_b96 v[12:14], v13')
                if tau == 1 and n == 2:
                    a(f"""
                    s_lshl_b32 {u0}, {sW}, 8
                    s_add_u32 {u0}, {u0}, {L_PB}
                    v_lshl_add_u32 v54, v0, 2, {u0}
                    """)
                if tau == 1 and n == 4:
                    a(f"""
                    s_sub_u32 {u0}, {u0}, {L_QS}
                    v_add_u32 v52, {u0}, v52
                    """)
                if tau == 1 and n == 5:
                    a(f'v_and_b32 v15, 2, v0\nv_cmp_eq_u32 vcc, 0, v15')
                if tau == 1 and n == 6:
                    a(f'v_mov_b32 v15, {L_ZERO}')
                if tau == 1 and n == 7:
                    a('v_cndmask_b32 v55, v52, v15, vcc\nv_cndmask_b32 v52, v15, v52, vcc')
            if tau == 0:
                assert not ops
                a('ds_read_b128 v[4:7], v52 offset:256')
        self.emit([x for pr in zip(self.merge(1, S[0::2]), self.merge(2, S[1::2])) for x in pr])
        a(f"""
        v_max_f32 v3, v1, v2
        s_waitcnt lgkmcnt(0)
        v_max_f32_dpp v3, v3, v3 quad_perm:[1,0,3,2] {DP}
        v_mov_b64 v[20:21], 0
        v_mov_b64 v[22:23], 0
        v_max_f32_dpp v3, v3, v3 quad_perm:[2,3,0,1] {DP}
        v_mov_b64 v[24:25], 0
        v_mov_b64 v[26:27], 0
        v_max_f32_dpp v3, v3, v3 row_half_mirror {DP}
        v_mov_b64 v[28:29], 0
        v_mov_b64 v[30:31], 0
        v_max_f32_dpp v3, v3, v3 row_mirror {DP}
        """)
        self.emit(self.allrows('v_max_f32', 3, 15))
        a(f"""
        v_mul_f32 v3, v3, v12
        v_fma_f32 v1, v1, v12, -v3
        v_fma_f32 v2, v2, v12, -v3
        v_exp_f32 v1, v1
        v_exp_f32 v2, v2
        v_cvt_pk_bf16_f32 v15, v1, v2
        ds_write_b32 v54, v15
        v_add_f32 v1, v1, v2
        v_mov_b64 v[32:33], 0
        v_mov_b64 v[34:35], 0
        v_mov_b64 v[36:37], 0
        v_mov_b64 v[38:39], 0
        v_mov_b64 v[40:41], 0
        v_mov_b64 v[42:43], 0
        s_waitcnt lgkmcnt(0)
        ds_read_b128 v[4:7], v52
        ds_read_b128 v[8:11], v55
        ds_read_b128 v[44:47], v52 offset:128
        ds_read_b128 v[48:51], v55 offset:128
        """)

    def att_pv(self, hook):
        a = self.a
        PL = [4, 44]; PH = [8, 48]
        side = [f'v_add_f32_dpp v1, v1, v1 quad_perm:[1,0,3,2] {DP}',
                f's_lshl_b32 {u0}, {sW}, 2', f's_add_u32 {u0}, {u0}, {L_ML}',
                f'v_add_f32_dpp v1, v1, v1 quad_perm:[2,3,0,1] {DP}',
                f'v_mov_b32 v2, {u0}', f'v_mov_b32 v52, {L_ML}',
                f'v_add_f32_dpp v1, v1, v1 row_half_mirror {DP}',
                'ds_write_b32 v2, v3', 's_nop 0',
                f'v_add_f32_dpp v1, v1, v1 row_mirror {DP}'] + self.allrows('v_add_f32', 1, 15) + \
               ['ds_write_b32 v2, v1 offset:16']
        for _ in range(7): a(side.pop(0))
        a('s_waitcnt lgkmcnt(0)')
        def mm(c, kap):
            b = 64 + 96 * kap + 8 * c
            d = 20 + 4 * (c >> 1)
            pr = (PL if c % 2 == 0 else PH)[kap]
            a(f'v_smfmac_f32_16x16x64_bf16 v[{d}:{d+3}], v[{pr}:{pr+3}], v[{b}:{b+7}], v53')
        order = [(c, kap) for kap in range(2) for c in range(12)]
        addr = [f's_mul_i32 {u0}, {sW}, 768', f's_add_u32 {u0}, {u0}, {L_OW}', f'v_lshl_add_u32 v54, v0, 2, {u0}', 's_nop 0']
        stage2 = ['s_waitcnt lgkmcnt(0)', 's_barrier', 'ds_read_b128 v[12:15], v52', 'ds_read_b128 v[16:19], v52 offset:16']
        stage3 = ['s_waitcnt lgkmcnt(0)',
                  'v_max3_f32 v2, v12, v13, v14', 'v_max_f32 v2, v2, v15',
                  'v_sub_f32 v3, v3, v2', 'v_sub_f32 v12, v12, v2', 'v_sub_f32 v13, v13, v2', 'v_sub_f32 v14, v14, v2', 'v_sub_f32 v15, v15, v2',
                  'v_exp_f32 v1, v3', 'v_exp_f32 v12, v12', 'v_exp_f32 v13, v13', 'v_exp_f32 v14, v14', 'v_exp_f32 v15, v15',
                  'v_mul_f32 v3, v12, v16', 'v_fmac_f32 v3, v13, v17', 'v_fmac_f32 v3, v14, v18', 'v_fmac_f32 v3, v15, v19']
        work = side + addr[:4] + stage2 + addr[4:] + stage3
        for n, (c, kap) in enumerate(order):
            if n == 12: hook()
            mm(c, kap)
            for _ in range(2):
                if work: a(work.pop(0))
        while work: a(work.pop(0))
        def mrg(dst, mu):
            k = 20 + 8 * mu
            return [f'v_add_f32_dpp v{dst}, v{r}, v{r+1} quad_perm:[0,1,2,3] row_mask:{1<<g:#x} bank_mask:0xf' for g, r in enumerate([k, k + 2, k + 4, k + 6])]
        a(f"""
        s_lshl_b32 {t0}, {sIT}, 18
        s_lshl_b32 {t1}, {sCU}, 10
        s_add_u32 {t0}, {t0}, {t1}
        s_add_u32 {t0}, {t0}, {W_O}
        s_cmp_lt_u32 {sW}, 3
        s_cselect_b32 {t1}, {t0}, {OOB}
        s_cselect_b32 {t2}, {OOB}, {t0}
        """)
        self.emit(mrg(12, 0)); self.emit(mrg(13, 1)); self.emit(mrg(14, 2))
        a(f"""
        v_mul_f32 v12, v12, v1
        v_mul_f32 v13, v13, v1
        v_mul_f32 v14, v14, v1
        ds_write_b32 v54, v12
        ds_write_b32 v54, v13 offset:256
        ds_write_b32 v54, v14 offset:512
        s_lshl_b32 {u0}, {sW}, 8
        v_lshl_add_u32 v4, v0, 2, {u0}
        v_add_u32 v5, {L_OW}, v4
        v_mov_b32 v7, 0
        """)
        assert 'clr' not in self.vm['3']
        with self.w3only():
            with self.it1(): a('s_waitcnt vmcnt(0)')
        a(f"""
        s_waitcnt lgkmcnt(0)
        s_barrier
        ds_read2st64_b32 v[8:9], v5 offset0:0 offset1:3
        ds_read2st64_b32 v[10:11], v5 offset0:6 offset1:9
        """)
        self.store_intra([f's_mov_b64 exec, {ML0}',
                          f'buffer_store_dwordx2 v[2:3], v7, {SRDW}, {t2} offen offset:768{{sc}}',
                          's_mov_b64 exec, -1',
                          's_waitcnt lgkmcnt(0)',
                          'v_pk_add_f32 v[8:9], v[8:9], v[10:11]',
                          'v_add_f32 v8, v8, v9',
                          f'buffer_store_dword v8, v4, {SRDW}, {t1} offen{{sc}}'])

    def o_reads(self):
        for u in range(12):
            self.a(f'ds_read_b64_tr_b16 v[{30+2*u}:{31+2*u}], v54 offset:{16*u*160}')

    def o_pre(self, lds_base, late=False):
        a = self.a
        a(f"""
        v_lshrrev_b32 v54, 2, v0
        v_mul_u32_u24 v54, 160, v54
        v_and_b32 v55, 3, v0
        v_lshl_add_u32 v54, v55, 3, v54
        s_lshl_b32 {u0}, {sW}, 5
        s_add_u32 {u0}, {u0}, {lds_base}
        v_add_u32 v54, {u0}, v54
        """)
        self.late = late
        if late:
            with self.it1(): self.o_reads()
        else: self.o_reads()
        self.sa_read_addr(55, 29, L_QS)
        self.idx(29, 28)
        a(f"""
        v_lshlrev_b32 v28, 2, v0
        v_mov_b64 v[24:25], 0
        s_mul_i32 {t4}, {sL}, 81920
        s_mul_i32 {u1}, {sS}, 10240
        s_add_u32 {t4}, {t4}, {u1}
        s_mul_i32 {u1}, {sH}, 320
        s_add_u32 {t4}, {t4}, {u1}
        s_lshl_b32 {u1}, {sW}, 6
        s_add_u32 {t4}, {t4}, {u1}
        s_add_u32 {t4}, {t4}, {W_Y}
        """)

    def o_g(self):
        a = self.a
        a('s_waitcnt lgkmcnt(0)\ns_barrier')
        if self.late:
            with self.it0(): self.o_reads()
        a(f"""
        ds_read_b128 v[4:7], v55
        ds_read_b128 v[8:11], v55 offset:128
        ds_read_b128 v[12:15], v55 offset:256
        """)
        for tau in range(3):
            a(f's_waitcnt lgkmcnt({2-tau})')
            a(f'v_smfmac_f32_16x16x64_bf16 v[24:27], v[{4+4*tau}:{7+4*tau}], v[{30+8*tau}:{37+8*tau}], v29')
        a(f"""
        s_mov_b64 exec, {M16}
        v_add_f32 v24, v24, v25
        buffer_store_dword v24, v28, {SRDW}, {t4} offen sc1
        s_mov_b64 exec, -1
        """)

    def o_w3(self, key):
        a = self.a
        if key == 'b':
            self.seg0('b2', 1, 2, '3')
            self.landed('wo', '3')
        a('v_mov_b32 v1, v29\nv_mov_b64 v[2:3], 0\nv_mov_b64 v[60:61], 0')
        def r4():
            for u in range(8):
                a(f'ds_read_b64_tr_b16 v[{14+2*u}:{15+2*u}], v54 offset:{16*u*160+32}')
        r4()
        a('s_waitcnt lgkmcnt(0)\ns_barrier')
        if self.late:
            with self.it0():
                self.o_reads(); r4(); a('s_waitcnt lgkmcnt(0)')
        a(f"""
        ds_read_b128 v[6:9], v55
        ds_read_b128 v[10:13], v55 offset:128
        ds_read_b128 a[236:239], v55 offset:256
        s_waitcnt lgkmcnt(2)
        v_smfmac_f32_16x16x64_bf16 v[60:63], v[6:9], v[30:37], v1
        """)
        for u in range(8, 12):
            a(f'ds_read_b64_tr_b16 v[{30+2*(u-8)}:{31+2*(u-8)}], v54 offset:{16*u*160+32}')
        a(f"""
        v_smfmac_f32_16x16x64_bf16 v[2:5], v[6:9], v[14:21], v1
        s_waitcnt lgkmcnt(5)
        v_smfmac_f32_16x16x64_bf16 v[60:63], v[10:13], v[38:45], v1
        v_lshlrev_b32 v6, 2, v0
        v_smfmac_f32_16x16x64_bf16 v[2:5], v[10:13], v[22:29], v1
        s_waitcnt lgkmcnt(4)
        v_smfmac_f32_16x16x64_bf16 v[60:63], a[236:239], v[46:53], v1
        s_waitcnt lgkmcnt(0)
        v_smfmac_f32_16x16x64_bf16 v[2:5], a[236:239], v[30:37], v1
        """)
        self.emit(self.merge(7, [60, 2]))
        a(f"""
        s_mov_b64 exec, {M32}
        buffer_store_dword v7, v6, {SRDW}, {t4} offen sc1
        s_mov_b64 exec, -1
        """)

    def gather_b(self):
        a = self.a
        self.g8_pre(MAP_TR_SA, 1024)
        a(f"""
        s_lshl_b32 {t0}, {sIT}, 18
        s_lshl_b32 {t1}, {sH}, 13
        s_add_u32 {t0}, {t0}, {t1}
        s_add_u32 {t0}, {t0}, {W_O}
        s_add_u32 {t1}, {t0}, 4096
        """)
        loads = [f'buffer_load_dwordx2 v[12:13], v3, {SRDW}, {t0} offen offset:768 sc1']
        loads += [f'buffer_load_dword v{4+p}, v1, {SRDW}, {[t0,t1][p>>2]} offen offset:{1024*(p&3)} sc1' for p in range(8)]
        def compute():
            a(f"""
            v_max_f32_dpp v14, v12, v12 quad_perm:[1,0,3,2] {DP}
            v_max_f32_dpp v14, v14, v14 quad_perm:[2,3,0,1] {DP}
            v_max_f32_dpp v14, v14, v14 row_half_mirror {DP}
            v_sub_f32 v12, v12, v14
            v_exp_f32 v12, v12
            v_mul_f32 v13, v13, v12
            v_mul_f32_dpp v4, v12, v4 row_newbcast:0 {DP}
            v_add_f32_dpp v13, v13, v13 quad_perm:[1,0,3,2] {DP}
            v_mul_f32_dpp v5, v12, v5 row_newbcast:1 {DP}
            v_fmac_f32_dpp v4, v12, v6 row_newbcast:2 {DP}
            v_add_f32_dpp v13, v13, v13 quad_perm:[2,3,0,1] {DP}
            v_fmac_f32_dpp v5, v12, v7 row_newbcast:3 {DP}
            v_fmac_f32_dpp v4, v12, v8 row_newbcast:4 {DP}
            v_add_f32_dpp v13, v13, v13 row_half_mirror {DP}
            v_fmac_f32_dpp v5, v12, v9 row_newbcast:5 {DP}
            v_fmac_f32_dpp v4, v12, v10 row_newbcast:6 {DP}
            v_rcp_f32 v13, v13
            v_fmac_f32_dpp v5, v12, v11 row_newbcast:7 {DP}
            v_add_f32 v4, v4, v5
            v_mul_f32 v4, v4, v13
            v_cvt_pk_bf16_f32 v5, v4, v4
            ds_write_b16 v2, v5
            """)
        self.spec_poll(loads, range(4, 14), 15, self.cfg.dly['b'], compute, (4, 4), mid=self.behind('b2', len(loads), 16, 17))
        assert 'wo' not in self.vm['g']

    def gather_g(self):
        a = self.a
        self.g8_pre(MAP_TR_SA, 1024)
        a(f"""
        s_lshl_b32 {t0}, {sIT}, 18
        s_lshl_b32 {t1}, {sH}, 13
        s_add_u32 {t0}, {t0}, {t1}
        s_add_u32 {t0}, {t0}, {W_G}
        s_add_u32 {t1}, {t0}, 4096
        """)
        loads = [f'buffer_load_dword v{4+p}, v1, {SRDW}, {[t0,t1][p>>2]} offen offset:{1024*(p&3)} sc1' for p in range(8)]
        def compute():
            self.emit(self.sum8(4))
            a('v_cvt_pk_bf16_f32 v5, v4, v4\nds_write_b16 v2, v5')
        self.spec_poll(loads, range(4, 12), 15, self.cfg.dly['g'], compute, (4, 4))

    def gather_c(self, key=None):
        a = self.a
        self.x_lane_consts()
        a(f"""
        ds_read_u16 v22, v55
        s_mul_i32 {t0}, {sL}, 81920
        s_mul_i32 {t1}, {sS}, 10240
        s_add_u32 {t0}, {t0}, {t1}
        s_add_u32 {t0}, {t0}, {W_Y}
        s_add_u32 {t1}, {t0}, 5120
        s_waitcnt lgkmcnt(0)
        v_lshlrev_b32 v22, 16, v22
        """)
        loads = [f'buffer_load_dwordx4 v[6:9], v54, {SRDW}, {t0} offen sc1',
                 f'buffer_load_dwordx4 v[10:13], v54, {SRDW}, {t0} offen offset:2560 sc1',
                 f'buffer_load_dwordx4 v[14:17], v54, {SRDW}, {t1} offen sc1',
                 f'buffer_load_dwordx4 v[18:21], v54, {SRDW}, {t1} offen offset:2560 sc1']
        def compute():
            a(f"""
            v_pk_add_f32 v[6:7], v[6:7], v[10:11]
            v_pk_add_f32 v[14:15], v[14:15], v[18:19]
            v_pk_add_f32 v[8:9], v[8:9], v[12:13]
            v_pk_add_f32 v[16:17], v[16:17], v[20:21]
            v_pk_add_f32 v[6:7], v[6:7], v[14:15]
            v_pk_add_f32 v[8:9], v[8:9], v[16:17]
            v_permlane16_swap_b32 v6, v7
            v_permlane16_swap_b32 v8, v9
            v_add_f32 v6, v6, v7
            v_add_f32 v8, v8, v9
            v_permlane32_swap_b32 v6, v8
            v_add_f32 v6, v6, v8
            v_add_f32_dpp v6, v6, v6 row_ror:8 {DP}
            v_cvt_pk_bf16_f32 v7, v6, v6
            v_lshlrev_b32 v7, 16, v7
            v_add_f32 v7, v7, v22
            v_cvt_pk_bf16_f32 v20, v7, v7
            """)
        self.spec_poll(loads, range(6, 22), 3, self.cfg.dly['c'], compute, (6, 6), mid=self.behind(key, len(loads), 3, 23))
        a('ds_write_b16 v55, v20')

    def uk_direct(self, va, vb, who='g3', cap=None):
        a = self.a
        self.srd('wuk')
        a(f"""
        v_and_b32 v{va}, 15, v0
        v_lshrrev_b32 v{vb}, 4, v0
        v_mul_u32_u24 v{va}, 12288, v{va}
        v_lshl_add_u32 v{va}, v{vb}, 4, v{va}
        s_lshl_b32 {u1}, {sW}, 1
        s_min_u32 {u1}, {u1}, 5
        s_mul_i32 {u0}, {sS}, 6
        s_add_u32 {u0}, {u0}, {u1}
        s_mul_i32 {u0}, {u0}, {16*12288}
        s_mul_i32 {u1}, {sH}, 384
        s_add_u32 {u0}, {u0}, {u1}
        """)
        for u in range(6):
            pass
        if 'g' in who:
            with self.cond(f's_cmp_ge_u32 {sW}, 2'):
                a(f's_add_u32 {u1}, {u0}, {16*12288}')
                for u in range(6):
                    if cap: a(f's_waitcnt vmcnt({cap})')
                    a(f'buffer_load_dwordx4 a[{216+4*u}:{219+4*u}], v{va}, {SRDT}, {u1} offen offset:{64*u} nt')
        for u in range(6):
            if cap:
                a(f's_waitcnt vmcnt({cap})')
                for w in who: self.vm[w] = self.vm[w][max(0, len(self.vm[w]) - cap):]
            a(f'buffer_load_dwordx4 a[{192+4*u}:{195+4*u}], v{va}, {SRDT}, {u0} offen offset:{64*u} nt')
            self.vissue('wuk', who)

    def uk_copy(self):
        a = self.a
        with self.it0():
            a(f"""
            s_lshl_b32 {u0}, {sW}, 1
            s_min_u32 {u0}, {u0}, 5
            s_mul_i32 {u0}, {u0}, {2*3072}
            s_add_u32 {u0}, {u0}, {L_WUV}
            """)
            self.row192_addr(1, 2, 3, u0)
            for u in range(6):
                a(f'ds_read_b128 a[{192+4*u}:{195+4*u}], v{1 + (u & 1)} offset:{(u//2)*1024}')
            with self.cond(f's_cmp_ge_u32 {sW}, 2'):
                for u in range(6):
                    a(f'ds_read_b128 a[{216+4*u}:{219+4*u}], v{1 + (u & 1)} offset:{2*3072 + (u//2)*1024}')

    def abs_pre(self):
        a = self.a
        self.sa_read_addr(52, 55, L_QS)
        self.idx(53, 55)
        a(f"""
        v_lshlrev_b32 v54, 1, v0
        v_mov_b64 v[40:41], 0
        v_mov_b64 v[44:45], 0
        s_lshl_b32 {t4}, {sIT}, 16
        s_mul_i32 {u1}, {sCU}, 192
        s_add_u32 {t4}, {t4}, {u1}
        s_add_u32 {t4}, {t4}, {W_E}
        s_lshl_b32 {u1}, {sW}, 1
        s_min_u32 {u1}, {u1}, 5
        s_lshl_b32 {u1}, {u1}, 5
        s_add_u32 {t4}, {t4}, {u1}
        s_mov_b32 s61, 0
        s_mov_b32 s60, 0x55555555
        s_cmp_lt_u32 {sW}, 2
        s_cselect_b32 s60, s60, 0x5555
        """)

    def stage_abs(self):
        a = self.a
        a('s_waitcnt lgkmcnt(0)\ns_barrier')
        a(f"""
        ds_read_b128 v[28:31], v52
        ds_read_b128 v[32:35], v52 offset:128
        ds_read_b128 v[36:39], v52 offset:256
        """)
        for tau in range(3):
            a(f's_waitcnt lgkmcnt({2-tau})')
            a(f'v_smfmac_f32_16x16x64_bf16 v[40:43], v[{28+4*tau}:{31+4*tau}], a[{192+8*tau}:{199+8*tau}], v53')
            a(f'v_smfmac_f32_16x16x64_bf16 v[44:47], v[{28+4*tau}:{31+4*tau}], a[{216+8*tau}:{223+8*tau}], v53')
        self.emit(self.merge(48, [40, 44]))
        a(f"""
        v_mov_b32_dpp v49, v48 quad_perm:[1,1,3,3] {DP}
        s_mov_b64 exec, s[60:61]
        v_cvt_pk_bf16_f32 v48, v48, v49
        buffer_store_dword v48, v54, {SRDW}, {t4} offen sc1
        s_mov_b64 exec, -1
        """)
        self.vissue('st')
        self.emit(self.rstd_ops())

    def stage_sc(self):
        a = self.a
        a(f"""
        s_lshr_b32 {u0}, {sW}, 1
        s_mul_i32 {u0}, {u0}, {4*3072}
        s_add_u32 {u0}, {u0}, {L_CKV}
        """)
        self.row192_addr(1, 3, 2, u0)
        seq = [(n, u) for n in range(2) for u in range(6)]
        def aread(k):
            n, u = seq[k]; r = 28 + 4 * (k % 5)
            a(f'ds_read_b128 v[{r}:{r+3}], v{1 if u % 2 == 0 else 3} offset:{n*2*3072 + (u//2)*1024}')
        def pre():
            for k in range(5): aread(k)
        pre()
        a(f"""
        v_and_b32 v60, 15, v0
        v_mul_u32_u24 v60, 1536, v60
        v_lshl_add_u32 v2, v2, 4, v60
        s_lshl_b32 {t1}, {sIT}, 16
        s_and_b32 {u1}, {sW}, 1
        s_mul_i32 {u1}, {u1}, {16*1536}
        s_add_u32 {t1}, {t1}, {u1}
        s_mul_i32 {u1}, {sCB}, 384
        s_add_u32 {t1}, {t1}, {u1}
        s_add_u32 {t1}, {t1}, {W_E}
        s_lshl_b32 {t0}, {sIT}, 21
        s_lshl_b32 {u1}, {sCU}, 13
        s_add_u32 {t0}, {t0}, {u1}
        s_lshl_b32 {u1}, {sW}, 11
        s_add_u32 {t0}, {t0}, {u1}
        s_add_u32 {t0}, {t0}, {W_P}
        """)
        loads = [f'buffer_load_dwordx4 v[{4+4*u}:{7+4*u}], v2, {SRDW}, {t1} offen offset:{64*u} sc1' for u in range(6)]
        def compute():
            self.stamp('e got')
            for k in range(12):
                n, u = seq[k]; r = 28 + 4 * (k % 5); d = 52 if n == 0 else 48
                a(f's_waitcnt lgkmcnt({min(4, 11-k)})')
                a(f'v_mfma_f32_16x16x32_bf16 v[{d}:{d+3}], v[{r}:{r+3}], v[{4+4*u}:{7+4*u}], ' + ('0' if u == 0 else f'v[{d}:{d+3}]'))
                if k + 5 < 12: aread(k + 5)
            a('v_lshlrev_b32 v60, 4, v0')
        self.spec_poll(loads, range(4, 28), 60, self.cfg.dly['e'], compute, (52, 52),
                       redo=pre)
        self.vdrain('g')
        self.store_intra([f'buffer_store_dwordx4 v[52:55], v60, {SRDW}, {t0} offen{{sc}}',
                          f'buffer_store_dwordx4 v[48:51], v60, {SRDW}, {t0} offen offset:1024{{sc}}'])

    def stage_ctx(self):
        a = self.a
        a(f"""
        s_xor_b32 {t1}, {t0}, {1<<13}
        s_xor_b32 {t2}, {t0}, {2<<13}
        s_xor_b32 {t3}, {t0}, {3<<13}
        """)
        loads = []
        for k, s_ in enumerate([t1, t2, t3]):
            loads.append(f'buffer_load_dwordx4 v[{4+8*k}:{7+8*k}], v60, {SRDW}, {s_} offen sc1')
            loads.append(f'buffer_load_dwordx4 v[{8+8*k}:{11+8*k}], v60, {SRDW}, {s_} offen offset:1024 sc1')
        self.tr192_addr(1, 3, pairmode=True)
        a(f"""
        s_lshr_b32 {t4}, {sW}, 1
        s_mul_i32 {u0}, {t4}, {4*3072 + 1024}
        s_add_u32 {u0}, {u0}, {L_CKV}
        s_lshl_b32 {u1}, {t4}, 6
        s_lshl_b32 {u2}, {t4}, 10
        v_xor_b32 v1, {u1}, v1
        v_add_u32 v1, {u0}, v1
        v_xor_b32 v2, 64, v1
        v_add_u32 v2, {u2}, v2
        s_mov_b32 {t5}, {4*3072}
        s_cmp_eq_u32 {t4}, 0
        s_cselect_b32 {t5}, {t5}, {(-4*3072) & 0xffffffff}
        s_lshl_b32 {t6}, {sW}, 11
        s_add_u32 {t6}, {t6}, {L_SX}
        s_xor_b32 {t7}, {sW}, 2
        s_lshl_b32 {t7}, {t7}, 11
        s_add_u32 {t7}, {t7}, {L_SX}
        """)
        def cread(tile, r):
            k, hf = divmod(tile, 2)
            ar = 2 if k == 1 else 1; off = 8 * hf + (1024 if k == 2 else 0)
            a(f'ds_read_b64_tr_b16 v[{r}:{r+1}], v{ar} offset:{off}')
            a(f'ds_read_b64_tr_b16 v[{r+2}:{r+3}], v{ar} offset:{off + 2*3072}')
        for tl in range(4): cread(tl, 28 + 4 * tl)
        def compute():
            self.stamp('p got')
            for i in (0, 2):
                a(f'v_pk_add_f32 v[{4+i}:{5+i}], v[{4+i}:{5+i}], v[{52+i}:{53+i}]\nv_pk_add_f32 v[{8+i}:{9+i}], v[{8+i}:{9+i}], v[{48+i}:{49+i}]')
                a(f'v_pk_add_f32 v[{12+i}:{13+i}], v[{12+i}:{13+i}], v[{20+i}:{21+i}]\nv_pk_add_f32 v[{16+i}:{17+i}], v[{16+i}:{17+i}], v[{24+i}:{25+i}]')
            a(f'v_add_u32 v3, {t6}, v60')
            for i in (0, 2): a(f'v_pk_add_f32 v[{4+i}:{5+i}], v[{4+i}:{5+i}], v[{12+i}:{13+i}]')
            a('ds_write_b128 v3, v[4:7]')
            for i in (0, 2): a(f'v_pk_add_f32 v[{8+i}:{9+i}], v[{8+i}:{9+i}], v[{16+i}:{17+i}]')
            a(f"""
            ds_write_b128 v3, v[8:11] offset:1024
            v_pk_add_f32 v[12:13], v[4:5], v[6:7]
            v_pk_add_f32 v[14:15], v[8:9], v[10:11]
            v_pk_add_f32 v[12:13], v[12:13], v[14:15]
            """)
        self.spec_poll(loads, range(4, 28), 3, self.cfg.dly['p'], compute, (12, 13))
        self.vdrain('g')
        cread(4, 44); cread(5, 48)
        a(f"""
        v_add_u32 v3, {t7}, v60
        v_mov_b32 v27, {L_SCAL}
        v_max3_f32 v60, v4, v5, v6
        v_max3_f32 v60, v60, v7, v8
        s_waitcnt lgkmcnt(4)
        s_barrier
        ds_read_b128 v[12:15], v3
        ds_read_b128 v[16:19], v3 offset:1024
        ds_read_b32 v26, v27
        v_max3_f32 v60, v60, v9, v10
        v_max_f32 v60, v60, v11
        v_add_u32 v1, {t5}, v1
        v_add_u32 v2, {t5}, v2
        s_waitcnt lgkmcnt(1)
        v_max3_f32 v60, v60, v12, v13
        v_max3_f32 v60, v60, v14, v15
        v_max3_f32 v60, v60, v16, v17
        v_max3_f32 v60, v60, v18, v19
        """)
        self.emit(self.allrows('v_max_f32', 60, 3))
        a(f"""
        s_waitcnt lgkmcnt(0)
        v_mul_f32 v60, v60, v26
        v_ceil_f32 v60, v60
        v_sub_f32 v24, 0, v60
        """)
        pk = lambda k: f'v_pk_fma_f32 v[{k}:{k+1}], v[{k}:{k+1}], v[26:27], v[24:25] op_sel_hi:[1,0,0]'
        for k in range(4, 12, 2): a(pk(k))
        for k in range(4, 12): a(f'v_exp_f32 v{k}, v{k}')
        for k in range(4): a(f'v_cvt_pk_bf16_f32 v{20+k}, v{4+2*k}, v{5+2*k}')
        A_own = [28, 32, 36, 40, 44, 48]
        acc = [52, 28, 32, 36, 40, 44]
        valu = [pk(k) for k in range(12, 20, 2)]
        valu += ['v_pk_add_f32 v[4:5], v[4:5], v[6:7]', 'v_pk_add_f32 v[8:9], v[8:9], v[10:11]', 'v_pk_add_f32 v[4:5], v[4:5], v[8:9]', 'v_add_f32 v3, v4, v5']
        valu += ['CR0', 'CR1']
        valu += [f'v_exp_f32 v{k}, v{k}' for k in range(12, 20)]
        def dov(x):
            if x == 'CR0': cread(0, 4)
            elif x == 'CR1': cread(1, 8)
            else: a(x)
        for tl in range(6):
            a(f'v_mfma_f32_16x16x32_bf16 v[{acc[tl]}:{acc[tl]+3}], v[{A_own[tl]}:{A_own[tl]+3}], v[20:23], 0')
            for _ in range(2):
                if valu: dov(valu.pop(0))
        cread(2, 48); cread(3, 20)
        while valu: dov(valu.pop(0))
        for k in range(4): a(f'v_cvt_pk_bf16_f32 v{24+k}, v{12+2*k}, v{13+2*k}')
        a(f"""
        v_pk_add_f32 v[12:13], v[12:13], v[14:15]
        v_pk_add_f32 v[16:17], v[16:17], v[18:19]
        s_waitcnt lgkmcnt(6)
        v_mfma_f32_16x16x32_bf16 v[52:55], v[4:7], v[24:27], v[52:55]
        v_pk_add_f32 v[12:13], v[12:13], v[16:17]
        """)
        cread(4, 16)
        a(f"""
        s_waitcnt lgkmcnt(6)
        v_mfma_f32_16x16x32_bf16 v[28:31], v[8:11], v[24:27], v[28:31]
        v_add_f32 v3, v3, v12
        v_add_f32 v3, v3, v13
        """)
        cread(5, 12)
        side = self.allrows('v_add_f32', 3, 2) + ['v_mov_b32 v2, v60',
                'v_and_b32 v1, 15, v0', 'v_lshlrev_b32 v1, 17, v1', 'v_lshrrev_b32 v60, 4, v0', 'v_lshl_add_u32 v1, v60, 4, v1']
        a(f"""
        s_and_b32 {t0}, {sW}, 1
        s_lshl_b32 {t0}, {t0}, 7
        s_lshl_b32 {t1}, {sCB}, 1
        s_add_u32 {t0}, {t0}, {t1}
        """)
        A_oth = [4, 8, 48, 20, 16, 12]
        for tl in range(2, 6):
            a(f's_waitcnt lgkmcnt({2*(5-tl)})')
            a(f'v_mfma_f32_16x16x32_bf16 v[{acc[tl]}:{acc[tl]+3}], v[{A_oth[tl]}:{A_oth[tl]+3}], v[24:27], v[{acc[tl]}:{acc[tl]+3}]')
            for _ in range(3):
                if side: a(side.pop(0))
        assert not side
        a(f"""
        s_add_u32 {t0}, {t0}, {t4}
        s_lshl_b32 {t0}, {t0}, 14
        s_lshl_b32 {t1}, {sKB}, 8
        s_add_u32 {t0}, {t0}, {t1}
        s_lshl_b32 {t1}, {sIT}, 22
        s_add_u32 {t0}, {t0}, {t1}
        s_add_u32 {t0}, {t0}, {W_F}
        """)
        for k in range(3):
            x, y = acc[2 * k], acc[2 * k + 1]
            o = [4, 8, 48][k]
            a(f"""
            v_cvt_pk_bf16_f32 v{o}, v{x}, v{x+1}
            v_cvt_pk_bf16_f32 v{o+1}, v{x+2}, v{x+3}
            v_cvt_pk_bf16_f32 v{o+2}, v{y}, v{y+1}
            v_cvt_pk_bf16_f32 v{o+3}, v{y+2}, v{y+3}
            buffer_store_dwordx4 v[{o}:{o+3}], v1, {SRDW}, {t0} offen offset:{64*k} sc1
            """)
            self.vissue('st')
            if k == 0:
                a(f"""
                s_mov_b64 exec, {M16}
                buffer_store_dwordx2 v[2:3], v1, {SRDW}, {t0} offen offset:192 sc1
                s_mov_b64 exec, -1
                """)
                self.vissue('st')

    def uv_wread(self, r, areg):
        for u in range(6):
            self.a(f'ds_read_b64_tr_b16 v[{r+2*u}:{r+2*u+1}], v{areg} offset:{2*u*3072}')

    def uv_pre(self, full=False):
        a = self.a
        self.tr192_addr(55, 3)
        for k in range(3):
            a(f's_mul_i32 {u0}, {sW}, 3\ns_add_u32 {u0}, {u0}, {k}')
            self.tile_addr(60, 55, u0, L_WUV)
            if k < 2 or full: self.uv_wread([28, 40, 8][k], 60)

    def gather_f(self):
        a = self.a
        def addrs():
            a(f"""
            v_lshrrev_b32 v2, 2, v0
            v_lshlrev_b32 v2, 8, v2
            v_and_b32 v3, 3, v0
            v_lshl_add_u32 v1, v3, 4, v2
            s_lshl_b32 {u0}, {sW}, 6
            v_add_u32 v1, {u0}, v1
            """)
        addrs()
        a(f"""
        s_lshl_b32 {t0}, {sIT}, 22
        s_lshl_b32 {t1}, {sCU}, 14
        s_add_u32 {t0}, {t0}, {t1}
        s_add_u32 {t0}, {t0}, {W_F}
        s_add_u32 {t1}, {t0}, 4096
        s_add_u32 {t2}, {t0}, 8192
        s_add_u32 {t3}, {t0}, 12288
        s_cmp_eq_u32 {sW}, 2
        s_cselect_b32 {t5}, 0.5, 1.0
        """)
        so = [t0, t1, t2, t3]
        loads = [f'buffer_load_dwordx2 v[{20+2*i}:{21+2*i}], v2, {SRDW}, {so[i]} offen offset:192 sc1' for i in range(4)]
        loads += [f'buffer_load_dwordx4 v[{4+4*i}:{7+4*i}], v1, {SRDW}, {so[i]} offen sc1' for i in range(4)]
        lo = [52, 53, 54, 55]
        def ldsaddr(lc=None):
            self.bitperm(2, 0, {0: 5, 4: 4, 5: 3, 1: 2}, 3)
            self.bitperm(1, 0, {0: 5, 5: 4, 1: 3, 4: 2}, 3)
            a(f"""
            s_cmp_eq_u32 {sW}, 2
            s_cselect_b64 vcc, -1, 0
            s_lshl_b32 {u0}, {sW}, 6
            s_add_u32 {u0}, {u0}, {L_US}
            v_cndmask_b32 v2, v2, v1, vcc
            v_add_u32 v2, {u0}, v2
            v_mov_b64 v[52:53], 0
            v_mov_b64 v[54:55], 0
            """)
        def compute():
            self.stamp('f got')
            a(f"""
            v_max3_f32 v3, v20, v22, v24
            v_max_f32 v3, v3, v26
            v_max_f32_dpp v3, v3, v3 row_ror:4 {DP}
            v_max_f32_dpp v3, v3, v3 row_ror:8 {DP}
            """)
            self.emit(self.allrows('v_max_f32', 3, 1))
            for i in range(4): a(f'v_sub_f32 v{20+2*i}, v{20+2*i}, v3')
            for i in range(4): a(f'v_exp_f32 v{20+2*i}, v{20+2*i}')
            a('v_mul_f32 v3, v20, v21')
            for i in range(1, 4): a(f'v_fmac_f32 v3, v{20+2*i}, v{21+2*i}')
            for i in range(4): a(f'v_lshrrev_b32 v{21+2*i}, 16, v{20+2*i}')
            side = [f'v_add_f32_dpp v3, v3, v3 row_ror:4 {DP}', f'v_add_f32_dpp v3, v3, v3 row_ror:8 {DP}'] + \
                   self.allrows('v_add_f32', 3, 1) + ['v_rcp_f32 v3, v3', f'v_mul_f32 v3, {t5}, v3']
            for i in range(4):
                for c in range(4):
                    a(f'v_dot2c_f32_bf16 v{lo[c]}, v{4+4*i+c}, v{21+2*i}')
                    if side and c % 2 == 1: a(side.pop(0))
            for c in range(4):
                a(f'v_dot2_f32_bf16 v{4+c}, v{4+c}, v20, 0')
                if side and c % 2 == 1: a(side.pop(0))
            assert not side
            sw = ['v_permlane16_swap_b32 v52, v53', 'v_permlane16_swap_b32 v54, v55', 'v_add_f32 v52, v52, v53', 'v_add_f32 v54, v54, v55',
                  'v_permlane32_swap_b32 v52, v54', 'v_add_f32 v52, v52, v54']
            for i in range(1, 4):
                for c in range(4):
                    a(f'v_dot2_f32_bf16 v{4+c}, v{4+4*i+c}, v{20+2*i}, v{4+c}')
                    if sw and c % 2 == 1: a(sw.pop(0))
            self.uv_wread(8, 60)
            a(f"""
            v_permlane16_swap_b32 v4, v5
            v_permlane16_swap_b32 v6, v7
            v_add_f32_dpp v52, v52, v52 row_ror:4 {DP}
            v_add_f32 v4, v4, v5
            v_add_f32 v6, v6, v7
            v_add_f32_dpp v52, v52, v52 row_ror:8 {DP}
            v_permlane32_swap_b32 v4, v6
            v_add_f32 v4, v4, v6
            v_mul_f32 v52, v52, v3
            v_add_f32_dpp v4, v4, v4 row_ror:4 {DP}
            v_add_f32_dpp v4, v4, v4 row_ror:8 {DP}
            v_mul_f32 v4, v4, v3
            v_cvt_pk_bf16_f32 v5, v52, v4
            ds_write_b32 v2, v5
            """)
        self.spec_poll(loads, range(4, 28), 3, self.cfg.dly['f'], compute, (52, 4), mid=ldsaddr, redo=ldsaddr, undo=addrs)
        self.vdrain('g')

    def stage_uv(self):
        a = self.a
        self.sa_read_addr(1, 3, L_US)
        a(f"""
        v_and_b32 v2, 48, v0
        v_add_u32 v2, {L_US + 128}, v2
        s_waitcnt lgkmcnt(0)
        s_barrier
        """)
        a(f"""
        ds_read_b128 v[24:27], v2
        ds_read_b128 v[20:23], v1
        """)
        self.idx(3, 60)
        a(f"""
        v_lshlrev_b32 v60, 2, v0
        s_lshl_b32 {t0}, {sIT}, 18
        s_lshl_b32 {t1}, {sCU}, 10
        s_add_u32 {t0}, {t0}, {t1}
        s_mul_i32 {t1}, {sW}, 192
        s_add_u32 {t0}, {t0}, {t1}
        s_add_u32 {t0}, {t0}, {W_G}
        s_waitcnt lgkmcnt(1)
        """)
        Wb = [28, 40, 8]; D = [52, 4, 36]
        for k in range(3):
            a(f'v_mfma_f32_16x16x32_bf16 v[{D[k]}:{D[k]+3}], v[24:27], v[{Wb[k]+8}:{Wb[k]+11}], 0')
        a('s_waitcnt lgkmcnt(0)')
        for k in range(3):
            a(f'v_smfmac_f32_16x16x64_bf16 v[{D[k]}:{D[k]+3}], v[20:23], v[{Wb[k]}:{Wb[k]+7}], v3')
        self.emit(self.merge(2, D))
        self.store_intra([f's_mov_b64 exec, {M48}', f'buffer_store_dword v2, v60, {SRDW}, {t0} offen{{sc}}', 's_mov_b64 exec, -1'])

    def build(self):
        a = self.a; cfg = self.cfg
        a(f"""
        s_cmp_ge_u32 s2, 256
        s_cbranch_scc1 L_end
        s_load_dwordx16 s[64:79], s[0:1], 0
        s_load_dwordx8 s[80:87], s[0:1], 64
        s_load_dwordx4 s[88:91], s[0:1], 96
        v_lshrrev_b32 v1, 6, v0
        v_mov_b32 v51, v0
        v_and_b32 v0, 63, v0
        v_readfirstlane_b32 {sW}, v1
        {self.cumap()}
        s_lshr_b32 {sH}, {sCU}, 3
        s_and_b32 {sS}, {sCU}, 7
        s_lshr_b32 {sKB}, {sCU}, 2
        s_and_b32 {sCB}, {sCU}, 3
        s_mov_b32 {sIT}, 0
        s_mov_b32 {sL}, 0
        s_mov_b32 {sFAST}, 0
        s_mov_b32 {sSTI}, 0
        s_mov_b32 {sIDX}, 0
        s_mul_i32 {sKV}, {sCU}, 196608
        s_mul_i32 {t0}, {sW}, 49152
        s_add_u32 {sKV}, {sKV}, {t0}
        s_mov_b32 s36, -1
        s_mov_b32 s37, 0xffff
        s_mov_b32 s38, 0xffff
        s_mov_b32 s39, 0
        s_mov_b64 {ML0}, 1
        s_mov_b32 s42, -1
        s_mov_b32 s43, 0x0fffffff
        s_mov_b32 s50, -1
        s_mov_b32 s51, 0
        s_mov_b32 {sC}, {f2u(SCALE)}
        s_mov_b32 {sPLO}, 0x05040100
        s_mov_b32 {sPHI}, 0x07060302
        s_mov_b32 {sLIM}, {cfg.lim}
        """)
        if cfg.stamps: a('v_mov_b32 v63, 0')
        self.kv_addr()
        a('s_waitcnt lgkmcnt(0)')
        self.stamp('start')
        self.srd('k', 12); self.srd('v', 16); self.srd('ws', 20, WS_BYTES)
        a(f's_add_u32 s94, s90, {W_EP}\ns_addc_u32 s95, s91, 0\ns_load_dword {sEP}, s[94:95], 0')
        self.dma_all192('wq', 0, 8, 1, 2)
        self.x_lane_consts()
        self.srd('x')
        a(f's_mul_i32 {t0}, {sS}, 160\nbuffer_load_ushort v20, v60, {SRDT}, {t0} offen')
        self.vissue('x')
        D = cfg.depth
        n0 = min(D, cfg.n0)
        for U in range(n0): self.kv_issue(U)
        a(f"""
        v_lshlrev_b32 v1, 2, v0
        v_min_u32 v1, 156, v1
        v_add_u32 v1, {L_ONES}, v1
        v_mov_b32 v2, 0x3f803f80
        v_mov_b32 v3, 0
        ds_write_b32 v1, v2
        ds_write_b32 v1, v3 offset:160
        v_mov_b32 v1, {L_FLAG}
        ds_write_b32 v1, v3
        """)
        self.vwait('x')
        a(f"""
        ds_write_b16 v55, v20
        s_waitcnt lgkmcnt(0)
        s_barrier
        s_add_u32 {sEP}, {sEP}, 1
        """)
        self.tr192_addr(42, 3)
        for k in range(4):
            a(f"""
            s_lshl_b32 {u0}, {sW}, 1
            s_lshl_b32 {t4}, {sW}, 2
            s_sub_u32 {t4}, {t4}, 4
            s_cmp_lt_u32 {sW}, 2
            s_cselect_b32 {u0}, {u0}, {t4}
            s_add_u32 {u0}, {u0}, {k}
            """)
            self.tile_addr(43, 42, u0, L_WO)
            b = int(self.WQB_[k][2:5])
            for u in range(4):
                a(f'ds_read_b64_tr_b16 a[{b+2*u}:{b+2*u+1}], v43 offset:{2*u*3072}')
            a(f'ds_read_b64_tr_b16 {self.WQT_[k]}, v43 offset:{8*3072}')
        self.q_pre('wq')
        a('s_waitcnt lgkmcnt(0)')

        a.label('L_top')
        self.stamp('top')
        self.stage_q('wq')
        self.stamp('q pub')
        with self.it0():
            a(f"""
            v_lshl_add_u32 v2, v0, 3, {sS}
            s_lshl_b32 {t0}, {sH}, 3
            v_and_b32 v3, 7, v0
            v_add_u32 v3, {t0}, v3
            v_cmp_gt_u32 vcc, 32, v0
            v_cndmask_b32 v2, v3, v2, vcc
            v_lshlrev_b32 v2, 11, v2
            """)
            if cfg.warm_code:
                a(f"""
                s_getpc_b64 s[92:93]
                L_pc:
                v_lshlrev_b32 v1, 7, v51
                v_min_u32 v1, L_last-L_pc, v1
                global_load_dword v6, v1, s[92:93]
                """)
                self.vissue('warm')
            for U in range(n0, D): self.kv_issue(U)
            self.k_raddr()
            atom = False
            for s_ in range(cfg.c2 + 1):
                if s_ == 8: self.v_raddr(1)
                self.kv_step(s_)
                if not atom and 'st' not in self.vm['3']:
                    atom = True
                    with self.w3only():
                        a(f"""
                        v_mov_b32 v1, {sEP}
                        v_mov_b32 v3, 0
                        s_lshl_b32 {t0}, {sCU}, 11
                        s_mov_b64 exec, {ML0}
                        buffer_store_dword v1, v3, {SRDW}, {t0} offen offset:800 sc1
                        s_mov_b64 exec, -1
                        """)
                        self.vissue('atom', '3')
                if cfg.fine and s_ % 2: self.stamp(f'U{s_}')
                if s_ == cfg.c1:
                    with self.cond(f's_cmp_eq_u32 {sW}, 3'):
                        a(f'buffer_load_dword v6, v2, {SRDW}, 0 offen offset:800 sc1')
                        self.vissue('cnt', 'g')
            assert cfg.c2 >= 8 and cfg.c3 >= 11 and cfg.c3 + D < 15
            lp, ld = a.newlabel('Lcnt'), a.newlabel('Lcntok')
            a(f's_cmp_eq_u32 {sW}, 3\ns_cbranch_scc1 {ld}')
            self.vwait('cnt', 'g')
            a(f's_mov_b32 {sCNT}, 0')
            a.label(lp)
            a(f"""
            v_cmp_ne_u32 vcc, {sEP}, v6
            s_cbranch_vccz {ld}
            s_sleep 8
            buffer_load_dword v6, v2, {SRDW}, 0 offen offset:800 sc1
            s_add_u32 {sCNT}, {sCNT}, 1
            s_waitcnt vmcnt(0)
            s_cmp_lt_u32 {sCNT}, {sLIM}
            s_cbranch_scc1 {lp}
            s_mov_b32 {sLIM}, 0
            """)
            a.label(ld)
            if cfg.fine: self.stamp('cnt ok')
        self.att_pre()
        def w3a():
            with self.it0():
                for s_ in range(cfg.c2 + 1, cfg.c3 + 1): self.kv_step(s_, '3')
            self.clear_small()
        self.split3(lambda: self.gather_a(vCSA, first=True), w3a)
        self.stamp("a' done")
        self.att_qk()
        with self.it0():
            a(f'v_readfirstlane_b32 {sFAST}, v14')
        self.stamp('qk done')
        def hook():
            with self.it0():
                self.SR = 4; self.SV = 8
                self.v_raddr(9); self.voff192(8, 9, 384)
                for s_ in range(cfg.c3 + 1, 16):
                    self.kv_step(s_)
                    self.seg(f'v{s_}', 10, 11)
                a('s_waitcnt lgkmcnt(0)')
            self.stamp('v ready')
        self.att_pv(hook)
        self.stamp('b pub')
        with self.w3only(): self.clear_P()
        self.seg0('b1', 12, 13)
        self.o_pre(L_WO, late=True)
        def gb():
            self.gather_b(); self.stamp('b done'); self.o_g()
        self.split3(gb, lambda: self.o_w3('b'))
        self.vissue('st')
        self.stamp('c pub')
        with self.w3only(): self.clear_F(8)
        self.seg0('c1', 14, 15)
        self.q_pre('wqb')
        def w3c():
            self.seg0('c2', 6, 7, '3'); self.clr_ack('clr', 16); self.landed('wqb', '3')
        self.split3(lambda: self.gather_c('c2'), w3c)
        assert 'wqb' not in self.vm['g']
        a(f"""
        s_add_u32 {sL}, {sL}, 1
        s_waitcnt lgkmcnt(0)
        s_barrier
        """)
        self.stamp('c done')
        with self.it0(): self.q_reads()
        self.stage_q('wqb')
        self.stamp('qb pub')
        self.seg0('a1', 6, 7)
        self.abs_pre()
        def w3a2():
            a('s_waitcnt vmcnt(0)'); self.vdrain('3')
        self.split3(lambda: self.gather_a(vCSB), w3a2)
        self.stamp("a'b done")
        self.stage_abs()
        self.stamp('e pub')
        self.stage_sc()
        self.stamp('p pub')
        self.stage_ctx()
        self.stamp('f pub')
        self.uv_pre()
        def w3f():
            self.uv_wread(8, 60)
        self.split3(self.gather_f, w3f)
        self.stage_uv()
        self.stamp('g pub')
        self.o_pre(L_WOB)
        def gg():
            self.gather_g(); self.stamp('g done'); self.o_g()
        self.split3(gg, lambda: self.o_w3('g'))
        self.stamp('c2 pub')
        lfin = a.newlabel('Lcont')
        a(f"""
        s_cmp_eq_u32 {sIT}, 0
        s_cbranch_scc1 {lfin}
        s_cmp_lg_u32 {sH}, 0
        s_cbranch_scc1 L_exit
        s_cmp_eq_u32 {sW}, 3
        s_cbranch_scc1 L_exit
        """)
        a.label(lfin)
        self.q_pre('wq')
        self.split3(self.gather_c, lambda: None)
        a(f"""
        s_cmp_lg_u32 {sIT}, 0
        s_cbranch_scc1 L_out
        s_add_u32 {sL}, {sL}, 1
        s_mov_b32 {sIT}, 1
        s_mov_b32 {sSTI}, {{NST}}
        s_waitcnt lgkmcnt(0)
        s_barrier
        s_branch L_top
        """)
        for c in self.cold: c()
        a.label('L_out')
        self.srd('out')
        a(f"""
        s_mul_i32 {t0}, {sS}, 160
        buffer_store_short v20, v60, {SRDT}, {t0} offen
        s_add_u32 {t0}, {sCU}, {sW}
        s_cmp_lg_u32 {t0}, 0
        s_cbranch_scc1 L_exit
        v_mov_b32 v1, {sEP}
        v_mov_b32 v2, {W_EP}
        s_mov_b64 exec, {ML0}
        buffer_store_dword v1, v2, {SRDW}, 0 offen
        s_mov_b64 exec, -1
        """)
        a.label('L_exit')
        if cfg.stamps:
            self.stamp('end')
            a(f"""
            s_cmp_lg_u32 {sW}, 0
            s_cbranch_scc1 L_end
            s_lshl_b32 {t0}, s2, 8
            s_add_u32 {t0}, {t0}, 0x8000000
            v_lshl_add_u32 v1, v0, 2, {t0}
            global_store_dword v1, v63, s[90:91]
            s_cmp_lg_u32 s2, 0
            s_cbranch_scc1 L_end
            v_add_u32 v1, 1, v0
            v_mul_u32_u24 v2, 43, v1
            v_lshrrev_b32 v2, 7, v2
            v_mul_u32_u24 v3, 3, v2
            v_cmp_eq_u32 vcc, v3, v1
            v_lshlrev_b32 v2, 2, v2
            v_readlane_b32 {t0}, v63, 0
            s_or_b32 vcc_lo, vcc_lo, 1
            s_and_b32 vcc_hi, vcc_hi, 0xfff
            v_subrev_u32 v63, {t0}, v63
            s_mov_b64 exec, vcc
            global_store_dword v2, v63, s[88:89] offset:4
            """)
        a.label('L_last')
        a.label('L_end')
        txt = a.finalize().replace('{NST}', str(self.nstamp - 2))
        return wrap(txt, 256, 256, LDS_BYTES)

    def cumap(self):
        if self.cfg.hmap == 'block':
            return f's_and_b32 {t0}, s2, 7\ns_lshl_b32 {t0}, {t0}, 5\ns_lshr_b32 {t1}, s2, 3\ns_add_u32 {sCU}, {t0}, {t1}'
        return f's_and_b32 {t0}, s2, 7\ns_lshl_b32 {t0}, {t0}, 3\ns_bfe_u32 {t1}, s2, 0x30003\ns_add_u32 {t0}, {t0}, {t1}\ns_and_b32 {t1}, s2, 0xc0\ns_add_u32 {sCU}, {t0}, {t1}'

    def vwait_split(self, tag):
        ng = tag in self.vm['g']; n3 = tag in self.vm['3']
        if not (ng or n3): return
        self.split3(lambda: self.vwait(tag, 'g'), lambda: self.vwait(tag, '3'))

if __name__ == '__main__':
    import argparse, json
    ap = argparse.ArgumentParser()
    ap.add_argument('-o', default='cdna_kernels/' + NAME + '.s')
    ap.add_argument('--stamps', action='store_true')
    ap.add_argument('--slow', action='store_true')
    ap.add_argument('--set', action='append', default=[])
    args = ap.parse_args()
    cfg = Cfg()
    cfg.stamps = args.stamps; cfg.force_slow = args.slow
    for kv in args.set:
        k, v = kv.split('=', 1)
        if '.' in k:
            d, kk = k.split('.'); dd = dict(getattr(cfg, d)); dd[kk] = eval(v); setattr(cfg, d, dd)
        else:
            setattr(cfg, k, eval(v))
    g = Gen(cfg)
    txt = g.build()
    open(args.o, 'w').write(txt)
    if cfg.stamps:
        json.dump(g.names, open(args.o + '.names.json', 'w'))
    print('wrote', args.o, len(txt), 'bytes')
```

```python
import sys
sys.path.insert(0, 'dev')
from gen import *

class LT(Gen):
    def build(self, uk='direct', pause=0):
        a = self.a; cfg = self.cfg
        a(f"""
        s_cmp_ge_u32 s2, 256
        s_cbranch_scc1 L_end
        s_load_dwordx16 s[64:79], s[0:1], 0
        s_load_dwordx8 s[80:87], s[0:1], 64
        s_load_dwordx4 s[88:91], s[0:1], 96
        v_lshrrev_b32 v1, 6, v0
        v_and_b32 v0, 63, v0
        v_readfirstlane_b32 {sW}, v1
        {self.cumap()}
        s_lshr_b32 {sH}, {sCU}, 3
        s_and_b32 {sS}, {sCU}, 7
        s_lshr_b32 {sKB}, {sCU}, 2
        s_and_b32 {sCB}, {sCU}, 3
        s_mov_b32 {sSTI}, 0
        s_mov_b32 {sIT}, 0
        s_mul_i32 {sKV}, {sCU}, 196608
        s_mul_i32 {t0}, {sW}, 49152
        s_add_u32 {sKV}, {sKV}, {t0}
        s_mov_b32 s42, -1
        s_mov_b32 s43, 0x0fffffff
        v_mov_b32 v63, 0
        """)
        self.kv_addr()
        a('s_waitcnt lgkmcnt(0)')
        self.stamp('start')
        self.srd('k', 12); self.srd('v', 16); self.srd('ws', 20, WS_BYTES)
        self.dma_all192('wq', 0, 8, 1, 2)
        for U in range(2): self.kv_issue(U)
        self.vwait('wq'); a('s_barrier')
        self.k_raddr()
        for s_ in range(16):
            if s_ == 8: self.v_raddr(1)
            self.kv_step(s_)
            if s_ == 11 and pause: a(f's_barrier\ns_sleep {pause}')
            if s_ == 13: self.dma_allwo('wo', 0, 4, 1, 2, cap=cfg.cap2)
            if s_ == 14: self.dma_allwo('wo', 4, 8, 1, 2, cap=cfg.cap2)
        self.stamp('v')
        self.dma_all192('wqb', 0, 8, 1, 2, cap=cfg.cap2)
        a('s_barrier')
        if uk == 'direct': self.uk_direct(1, 2, cap=cfg.cap2)
        else:
            self.NBLK['wuk'] = 36
            self.dma_all192('wuk', 0, 9, 1, 2, cap=cfg.cap2)
        self.stamp('uk')
        self.dma_all192('ckv', 0, 6, 1, 2, cap=cfg.cap2)
        self.dma_all192('wuv', 0, 9, 1, 2, cap=cfg.cap2)
        self.dma_allwo('wob', 0, 8, 1, 2, cap=cfg.cap2)
        a('s_waitcnt vmcnt(0) lgkmcnt(0)\ns_barrier')
        self.stamp('end')
        a(f"""
        s_cmp_lg_u32 {sW}, 0
        s_cbranch_scc1 L_end
        s_lshl_b32 {t0}, s2, 8
        s_add_u32 {t0}, {t0}, 0x8000000
        v_lshl_add_u32 v1, v0, 2, {t0}
        global_store_dword v1, v63, s[90:91]
        """)
        a.label('L_end')
        return wrap(a.finalize(), 256, 256, LDS_BYTES)

T = []
for cap in [6, 7, 8, 10, 12]:
    T.append((f'c{cap:02d}', dict(), dict(cap=cap, cap2=cap)))
T.append(('c08_lds', dict(uk='lds'), dict(cap=8, cap2=8)))
T.append(('c08_16', dict(), dict(cap=8, cap2=16)))
T.append(('c08_lds_16', dict(uk='lds'), dict(cap=8, cap2=16)))
T.append(('c08_pause', dict(pause=30), dict(cap=8, cap2=8)))
for nm, kw, cf in T:
    cfg = Cfg(); cfg.stamps = True
    for k, v in cf.items(): setattr(cfg, k, v)
    open(f'lv_{nm}.s', 'w').write(LT(cfg).build(**kw))
```

```python
import sys, math, struct
sys.path.insert(0, 'dev')
from gasm import *

def f2u(x): return struct.unpack('<I', struct.pack('<f', x))[0]

class Cfg:
    stamps = False
    force_slow = False
    dly = dict(a=4, b=5, g=5, p=7, c=8, c2=11, e=10, f=17, f2=1)
    warm_code = False
    cap = 8
    cap2 = 8
    lim = 0x100000
    noclr1 = False
    fine = ()
    touch = True
    big0 = False
    ntkv = True
    ntw = True
    ride = 16
    cap3x = 1
    depth = 4
    early = 1
    lt = False
    skip = ()
    shadow0 = False
    plain = ()
    dyn = False
    cap3 = 18
    bh = dict(e=6, p=6)
    pre3 = dict(e=6)
    early3 = 12
    nspec = 6
    only = ()
    c1 = 8; c2 = 10; c3 = 12; rB = 9; c4 = 13
    seg = dict(v0=[('wo', 0, 3)], v1=[('wo', 3, 8)], b1=[('wqb', 0, 8)], b2=[('wuk', 0, 6)], c1=[('wuk', 6, 9), ('ckv', 0, 6), ('wob', 0, 2)],
               c2=[('wob', 2, 8)], e1=[('wuv', 0, 9)])

sFAST = 's3'
sCU, sH, sS, sKB, sCB, sW, sIT, sKV = 's4', 's5', 's6', 's7', 's8', 's9', 's10', 's11'
SRDK, SRDV, SRDW, SRDT = 's[12:15]', 's[16:19]', 's[20:23]', 's[24:27]'
t0, t1, t2, t3, t4, t5, t6, t7 = 's28', 's29', 's30', 's31', 's32', 's33', 's34', 's35'
M48, M16, ML0, M60, M32, MXV, MQ, MABS = 's[36:37]', 's[38:39]', 's[40:41]', 's[42:43]', 's[50:51]', 's[58:59]', 's[60:61]', 's[92:93]'
sC, sYP, sYG, sLIM, sCNT, sSTI = 's44', 's45', 's46', 's47', 's48', 's49'
sHB, sACC, u0, u1, u2, sRING, sEP = 's52', 's53', 's54', 's55', 's56', 's57', 's62'
sEPB, sEG, sPO, sFP, sFG, sFSP, sFSG = 's63', 's94', 's95', 's98', 's99', 's100', 's101'
sYINC = 98304
sUH, sW3O = 's0', 's1'
P = {n: 64 + 2 * i for i, n in enumerate(['x', 'k', 'v', 'wq', 'wo', 'bx', 'ckv', 'wqb', 'wuk', 'wuv', 'wob', 'out', 'dbg', 'ws'])}
SZ = dict(x=1280, k=50331648, v=50331648, wq=7864320, wo=7864320, ckv=6291456, wqb=7864320, wuk=9437184, wuv=9437184, wob=7864320, out=1280)

L_WO, L_WQB, L_WOB, L_WUV, L_CKV, L_SCR = 0, 30720, 61440, 92160, 129024, 153600
L_SX = L_SCR; L_OW = L_SCR; L_PB = L_SCR + 4096; L_ML = L_SCR + 5120
L_XS = L_SCR + 8192; L_ONES = L_XS + 192; L_ZERO = L_ONES + 160
L_QS = L_ZERO + 160; L_US = L_QS + 384; L_SCAL = L_US + 192; L_JUNK = L_SCAL + 32; L_FLAG = L_SCAL + 16
LDS_BYTES = 163840

KiB, MiB = 1 << 10, 1 << 20
HSTR = 65536; B_QA, B_O, B_QB, B_G, B_CA, B_CB = 0, 8192, 16384, 24576, 32768, 40960
W_H = 0; IT_H = 2 * MiB
W_Y = 4 * MiB
W_E = W_Y + 512 * KiB
W_FS = W_E + 128 * KiB
W_FL = W_FS + 128 * KiB
W_EP = W_FL + 64 * KiB
W_P = 5 * MiB
W_F = 9 * MiB
WS_BYTES = 16 * MiB
OOB = 64 * MiB
SCALE = 192 ** -0.5 * math.log2(math.e)
DP = 'row_mask:0xf bank_mask:0xf'
vCSA, vCSB = 61, 62
SK = 44
MAP_TR_SA = {5: 6, 3: 5, 1: 4, 2: 3, 4: 2, 0: 1}
MAP_NAT_SA = {5: 6, 4: 5, 1: 4, 3: 3, 2: 2, 0: 1}

class Gen:
    def __init__(self, cfg):
        self.cfg = cfg
        self.a = Asm()
        self.vm = {'g': [], '3': []}
        self.nstamp = 0; self.names = []; self.side = []; self.npoll = 0; self.nflag = 0
        self.SR = 46; self.SV = 45; self.rd = 0; self.iss = 2

    def vissue(self, tag, who='g3'):
        for w in who: self.vm[w].append(tag)
    def vwait(self, tag, who='g3'):
        n = 63; found = False
        for w in who:
            idx = [i for i, t in enumerate(self.vm[w]) if t == tag]
            if idx: found = True; n = min(n, len(self.vm[w]) - 1 - idx[-1])
        if not found: return
        self.a(f's_waitcnt vmcnt({n})')
        for w in who: self.vm[w] = self.vm[w][max(0, len(self.vm[w]) - n):] if n else []
    def vdrain(self, who='g'):
        for w in who: self.vm[w] = []
    SLOW = ('st', 'clr', 'clrF', 'fl', 'cnt', 'pl')
    def capn(self, n, w):
        q = self.vm[w]
        if w == '3': n += self.cfg.cap3x
        for i in range(max(0, len(q) - self.cfg.ride), len(q)):
            if q[i] in self.SLOW:
                while i > 0 and q[i - 1] in self.SLOW: i -= 1
                return max(n, len(q) - i)
        return n
    def vcap(self, n, who='g3'):
        def one(w, m):
            if len(self.vm[w]) > m:
                self.a(f's_waitcnt vmcnt({m})'); self.vm[w] = self.vm[w][len(self.vm[w]) - m:]
        ns = {w: self.capn(n, w) for w in who}
        if len(who) == 1: return one(who, ns[who])
        hi, lo = max(ns.values()), min(ns.values())
        wl = 'g' if ns['g'] == lo else '3'
        if hi != lo and len(self.vm[wl]) > lo:
            with self.skip(f's_cmp_{"eq" if wl == "g" else "lg"}_u32 {sW}, 3'): one(wl, lo)
        if max(len(self.vm[w]) for w in who) > hi:
            self.a(f's_waitcnt vmcnt({hi})')
            for w in who: self.vm[w] = self.vm[w][max(0, len(self.vm[w]) - hi):]
    def vwait_split(self, tag):
        if tag in self.vm['g'] or tag in self.vm['3']:
            self.split3(lambda: self.vwait(tag, 'g'), lambda: self.vwait(tag, '3'))

    def stamp(self, name=''):
        if not self.cfg.stamps or (self.cfg.only and name not in self.cfg.only): return
        self.a(f's_memrealtime s[96:97]\ns_add_u32 m0, {sSTI}, {self.nstamp}\ns_waitcnt lgkmcnt(0)\nv_writelane_b32 v63, s96, m0')
        self.names.append(name); self.nstamp += 1

    def srd(self, name, dst=24, nbytes=None):
        p = P[name]
        self.a(f's_mov_b32 s{dst}, s{p}\ns_mov_b32 s{dst+1}, s{p+1}\ns_mov_b32 s{dst+2}, {nbytes if nbytes is not None else SZ[name]}\ns_mov_b32 s{dst+3}, 0x00020000')

    def aside(self, label, ret=None):
        g = self
        class C:
            def __enter__(s):
                s.save = g.a.items; g.a.items = []; g.a.label(label)
            def __exit__(s, *e):
                if ret: g.a(f's_branch {ret}')
                g.side.append(g.a.items); g.a.items = s.save
        return C()
    def ool(self, take_if):
        lx, lr = self.a.newlabel('Lx'), self.a.newlabel('Lr')
        self.a(f'{take_if}\ns_cbranch_scc1 {lx}'); self.a.label(lr)
        return self.aside(lx, lr)
    def it0(self): return self.ool(f's_cmp_eq_u32 {sIT}, 0')
    def w3only(self): return self.ool(f's_cmp_eq_u32 {sW}, 3')
    def skip(self, skip_if):
        g = self
        class C:
            def __enter__(s): s.l = g.a.newlabel('Ls'); g.a(f'{skip_if}\ns_cbranch_scc1 {s.l}')
            def __exit__(s, *e): g.a.label(s.l)
        return C()
    def it1(self): return self.skip(f's_cmp_eq_u32 {sIT}, 0')
    def either(self, take_if, main, alt):
        lx, lr = self.a.newlabel('Lx'), self.a.newlabel('Lr')
        self.a(f'{take_if}\ns_cbranch_scc1 {lx}')
        main()
        self.a.label(lr)
        with self.aside(lx, lr): alt()
    def split3(self, g, w3): self.either(f's_cmp_eq_u32 {sW}, 3', g, w3)
    def emit(self, lines):
        for l in lines: self.a(l)

    def bitperm(self, dst, src, mp, tmp, add=None):
        out = []; groups = {}
        for sb, db in mp.items(): groups.setdefault(db - sb, []).append(sb)
        first = True
        for sh, bits in sorted(groups.items()):
            mask = sum(1 << b for b in bits)
            out.append(f'v_and_b32 v{dst if first else tmp}, {mask}, v{src}')
            if first:
                if sh > 0: out.append(f'v_lshlrev_b32 v{dst}, {sh}, v{dst}')
                elif sh < 0: out.append(f'v_lshrrev_b32 v{dst}, {-sh}, v{dst}')
            elif sh >= 0: out.append(f'v_lshl_or_b32 v{dst}, v{tmp}, {sh}, v{dst}')
            else: out += [f'v_lshrrev_b32 v{tmp}, {-sh}, v{tmp}', f'v_or_b32 v{dst}, v{tmp}, v{dst}']
            first = False
        if add is not None: out.append(f'v_add_u32 v{dst}, {add}, v{dst}')
        return out

    def store_intra(self, lines, who='g3', tag='st', precmp=False):
        self.either('' if precmp else f's_cmp_eq_u32 {sFAST}, 0',
                    lambda: self.emit([l.format(sc='') for l in lines]), lambda: self.emit([l.format(sc=' sc1') for l in lines]))
        for l in lines:
            if l.startswith('buffer'): self.vissue(tag, who)

    def exact_poll(self, loads, regs, tmp):
        a = self.a
        lp, ld = a.newlabel('Lpoll'), a.newlabel('Lgot')
        a(f's_mov_b32 {sCNT}, 0'); a.label(lp)
        self.emit(loads); a('s_waitcnt vmcnt(0)')
        r = list(regs)
        a(f'v_max3_u32 v{tmp}, v{r[0]}, v{r[1]}, v{r[2]}'); r = r[3:]
        while r:
            if len(r) >= 2: a(f'v_max3_u32 v{tmp}, v{tmp}, v{r[0]}, v{r[1]}'); r = r[2:]
            else: a(f'v_max_u32 v{tmp}, v{tmp}, v{r[0]}'); r = r[1:]
        a(f"""
        v_cmp_eq_u32 vcc, -1, v{tmp}
        s_cbranch_vccz {ld}
        s_add_u32 {sCNT}, {sCNT}, 1
        s_cmp_lt_u32 {sCNT}, {sLIM}
        s_cbranch_scc1 {lp}
        s_mov_b32 {sLIM}, 0
        """)
        a.label(ld)

    def spec_poll(self, loads, regs, tmp, delay, compute, chk, mid=None, first0=None, redo=None, undo=None, who='g', redo_early=True, early=None):
        a = self.a
        lc, lok, lcold = a.newlabel('Lc'), a.newlabel('Lok'), a.newlabel('Lcold')
        pid = self.npoll; self.npoll += 1
        if delay: a(f's_sleep {delay}')
        fl = '' if pid in self.cfg.plain else ' sc1'
        self.emit([l.replace(' sc1', fl) for l in loads])
        loads = [l for l in loads if l.startswith('buffer')]
        for _ in loads: self.vissue('pl', who)
        a(f's_mov_b32 {sACC}, 0')
        if mid: mid()
        if first0:
            lx = a.newlabel('Lx')
            a(f's_cmp_eq_u32 {sIT}, 0\ns_cbranch_scc1 {lx}')
            with self.aside(lx, lc): first0(lc)
        else: self.vdrain(who)
        if pid in self.cfg.fine: self.stamp(f'mid{pid}')
        if early:
            lc2 = a.newlabel('Lc2')
            a(f's_waitcnt vmcnt({len(loads) - early[0]})')
            early[1]()
            a('s_waitcnt vmcnt(0)')
            with self.aside(lc, lc2): early[1]()
            a.label(lc2)
        else:
            a('s_waitcnt vmcnt(0)')
            if pid in self.cfg.fine: self.stamp(f'got{pid}')
            a.label(lc)
        compute()
        a(f'v_cmp_u_f32 vcc, v{chk[0]}, v{chk[1]}\ns_cbranch_vccnz {lcold}')
        a.label(lok)
        lex = a.newlabel('Lex')
        with self.aside(lcold, lc):
            a(f's_cmp_ge_u32 {sACC}, {self.cfg.nspec}\ns_cbranch_scc1 {lex}\ns_waitcnt lgkmcnt(0)')
            if undo: undo()
            self.emit(loads)
            a(f's_add_u32 {sACC}, {sACC}, 1')
            if self.cfg.stamps: a(f's_mul_i32 {sCNT}, {sACC}, {sIT}\nv_writelane_b32 v63, {sCNT}, {50+pid}')
            if redo_early and redo: redo()
            a('s_waitcnt vmcnt(0)')
            if redo and not redo_early: redo()
        with self.aside(lex, lc):
            a(f's_cmp_gt_u32 {sACC}, {self.cfg.nspec}\ns_cbranch_scc1 {lok}\ns_waitcnt lgkmcnt(0)')
            if undo: undo()
            self.exact_poll(loads, regs, tmp)
            if redo: redo()
            a(f's_add_u32 {sACC}, {sACC}, 1')

    def allrows(self, op, r, t):
        return [f'v_mov_b32 v{t}, v{r}', f'v_permlane16_swap_b32 v{r}, v{t}', f'{op} v{r}, v{r}, v{t}',
                f'v_mov_b32 v{t}, v{r}', f'v_permlane32_swap_b32 v{r}, v{t}', f'{op} v{r}, v{r}, v{t}']
    def idx(self, dst):
        return [f'v_and_b32 v{dst}, 1, v0', f'v_mul_u32_u24 v{dst}, 0xaaaa, v{dst}', f'v_or_b32 v{dst}, 0x4444, v{dst}']
    def merge(self, dst, accs, lo=0):
        return [f'v_add_f32_dpp v{dst}, v{r+lo}, v{r+lo+1} quad_perm:[0,1,2,3] row_mask:{1<<g:#x} bank_mask:0xf' for g, r in enumerate(accs)]
    def sa_addr(self, dst, tmp, base):
        o = [f'v_and_b32 v{tmp}, 1, v0', f'v_lshlrev_b32 v{tmp}, 4, v{tmp}', f'v_lshrrev_b32 v{dst}, 4, v0', f'v_lshl_add_u32 v{dst}, v{dst}, 5, v{tmp}']
        if base is not None: o.append(f'v_add_u32 v{dst}, {base}, v{dst}')
        return o
    def sum8(self, r):
        return [f'v_pk_add_f32 v[{r}:{r+1}], v[{r}:{r+1}], v[{r+2}:{r+3}]', f'v_pk_add_f32 v[{r+4}:{r+5}], v[{r+4}:{r+5}], v[{r+6}:{r+7}]',
                f'v_pk_add_f32 v[{r}:{r+1}], v[{r}:{r+1}], v[{r+4}:{r+5}]', f'v_add_f32 v{r}, v{r}, v{r+1}']
    def pub_voff(self, dst, tmp, scol):
        return [f'v_add_u32 v{dst}, {scol}, v0', f'v_lshrrev_b32 v{tmp}, 6, v{dst}', f'v_mul_u32_u24 v{tmp}, 448, v{tmp}',
                f's_lshl_b32 {u1}, {sS}, 8', f's_lshl_b32 {u2}, {sW}, 11', f's_sub_u32 {u1}, {u1}, {u2}', f's_add_u32 {u1}, {u1}, 8192',
                f'v_add_lshl_u32 v{dst}, v{dst}, v{tmp}, 2', f'v_add_u32 v{dst}, {u1}, v{dst}']

    G192 = dict(wq=(L_WO, 12288, 30), wqb=(L_WQB, 12288, 30), wuv=(L_WUV, 12288, 36), wuk=(L_WUV, 12288, 36), ckv=(L_CKV, 1536, 24))
    def base192(self, name, dst):
        if name in ('wq', 'wqb'): return f's_mul_i32 {dst}, {sS}, {80*12288}\ns_mul_i32 {u1}, {sH}, 384\ns_add_u32 {dst}, {dst}, {u1}'
        if name in ('wuv', 'wuk'): return f's_mul_i32 {dst}, {sS}, {96*12288}\ns_mul_i32 {u1}, {sH}, 384\ns_add_u32 {dst}, {dst}, {u1}'
        return f's_mul_i32 {dst}, {sKB}, {64*1536}\ns_mul_i32 {u1}, {sCB}, 384\ns_add_u32 {dst}, {dst}, {u1}'
    def voff192(self, dst, tmp, rstride):
        self.a(f"""
        v_lshrrev_b32 v{dst}, 3, v0
        v_and_b32 v{tmp}, 6, v{dst}
        v_xor_b32 v{tmp}, v{tmp}, v0
        v_and_b32 v{tmp}, 7, v{tmp}
        v_mul_u32_u24 v{dst}, {rstride}, v{dst}
        v_lshl_add_u32 v{dst}, v{tmp}, 4, v{dst}
        """)
    def dma192(self, name, i0, i1, va, vb, who, cap):
        a = self.a
        lds, rs, nblk = self.G192[name]
        self.srd(name); a(self.base192(name, u0)); self.voff192(va, vb, rs)
        if nblk % 12 == 0:
            q = nblk // 4
            a(f's_mul_i32 {u1}, {sW}, {q//3*8*rs}\ns_add_u32 {u0}, {u0}, {u1}\ns_mul_i32 {u1}, {sW}, {q*1024}')
            for i in range(i0, i1):
                if cap: self.vcap(cap, who)
                a(f's_add_u32 m0, {u1}, {lds + i*1024}\ns_add_u32 {u2}, {u0}, {(i//3)*8*rs + (i%3)*128}\nbuffer_load_dwordx4 v{va}, {SRDT}, {u2} offen nt lds')
                self.vissue(name, who)
            return
        for i in range(i0, i1):
            a(f's_add_u32 {u1}, {sW}, {4*i}' if 4 * i + 3 < nblk else f's_and_b32 {u1}, {sW}, 1\ns_add_u32 {u1}, {u1}, {4*i}')
            a(f"""
            s_lshl_b32 {u2}, {u1}, 10
            s_add_u32 m0, {u2}, {lds}
            s_mul_i32 {u2}, {u1}, 43
            s_lshr_b32 {u2}, {u2}, 7
            s_mul_i32 {u2}, {u2}, {8*rs - 384}
            s_lshl_b32 {u1}, {u1}, 7
            s_add_u32 {u2}, {u2}, {u1}
            s_add_u32 {u2}, {u2}, {u0}
            """)
            if cap: self.vcap(cap, who)
            a(f'buffer_load_dwordx4 v{va}, {SRDT}, {u2} offen nt lds'); self.vissue(name, who)
    def dmawo(self, name, i0, i1, va, vb, who, cap):
        a = self.a
        self.srd(name)
        a(f"""
        v_mul_u32_u24 v{va}, 205, v0
        v_lshrrev_b32 v{va}, 11, v{va}
        v_mul_u32_u24 v{vb}, 1120, v{va}
        v_lshl_add_u32 v{va}, v0, 4, v{vb}
        s_mul_i32 {u0}, {sH}, {192*1280}
        s_mul_i32 {u1}, {sS}, 160
        s_add_u32 {u0}, {u0}, {u1}
        s_mul_i32 {u1}, {sW}, {48*1280}
        s_add_u32 {u0}, {u0}, {u1}
        s_mul_i32 {u1}, {sW}, {48*160}
        s_mov_b64 exec, {M60}
        """)
        for i in range(i0, i1):
            if cap: self.vcap(cap, who)
            a(f's_add_u32 m0, {u1}, {(L_WO if name == "wo" else L_WOB) + i*960}\ns_add_u32 {u2}, {u0}, {i*6*1280}\nbuffer_load_dwordx4 v{va}, {SRDT}, {u2} offen nt lds')
            self.vissue(name, who)
        a('s_mov_b64 exec, -1')
    def uk_direct(self, va, vb, who, cap):
        a = self.a
        self.srd('wuk')
        a(f"""
        v_and_b32 v{va}, 15, v0
        v_lshrrev_b32 v{vb}, 4, v0
        v_mul_u32_u24 v{va}, 12288, v{va}
        v_lshl_add_u32 v{va}, v{vb}, 4, v{va}
        s_lshl_b32 {u1}, {sW}, 1
        s_min_u32 {u1}, {u1}, 5
        s_mul_i32 {u0}, {sS}, 6
        s_add_u32 {u0}, {u0}, {u1}
        s_mul_i32 {u0}, {u0}, {16*12288}
        s_mul_i32 {u1}, {sH}, 384
        s_add_u32 {u0}, {u0}, {u1}
        """)
        assert cap
        if 'g' in who:
            with self.skip(f's_cmp_ge_u32 {sW}, 2'):
                a(f's_add_u32 {u1}, {u0}, {16*12288}')
                for u in range(6):
                    a(f's_waitcnt vmcnt({cap})\nbuffer_load_dwordx4 a[{216+4*u}:{219+4*u}], v{va}, {SRDT}, {u1} offen offset:{64*u} nt')
        for u in range(6):
            a(f's_waitcnt vmcnt({cap})')
            for w in who: self.vm[w] = self.vm[w][max(0, len(self.vm[w]) - cap):]
            a(f'buffer_load_dwordx4 a[{192+4*u}:{195+4*u}], v{va}, {SRDT}, {u0} offen offset:{64*u} nt'); self.vissue('wuk', who)
    def seg(self, key, va, vb, who='g3', cap=True):
        cp = self.cfg.cap2 if cap else None
        for (name, i0, i1) in self.cfg.seg.get(key, []):
            if name == 'wuk' and i1 == 0: self.uk_direct(va, vb, who, cp)
            elif name == 'clr': self.clear_quarter(va, who)
            elif name in ('wo', 'wob'): self.dmawo(name, i0, i1, va, vb, who, cp)
            else: self.dma192(name, i0, i1, va, vb, who, cp)
    def uk_staged(self): return any(x[0] == 'wuk' and x[2] for v in self.cfg.seg.values() for x in v)
    def uk_copy(self, bar):
        a = self.a
        a(f's_lshl_b32 {u0}, {sW}, 1\ns_min_u32 {u0}, {u0}, 5\ns_mul_i32 {u0}, {u0}, {2*3072}\ns_add_u32 {u0}, {u0}, {L_WUV}')
        self.row192_addr(6, 7, 8, u0)
        for u in range(6): a(f'ds_read_b128 a[{192+4*u}:{195+4*u}], v{6 + (u & 1)} offset:{(u//2)*1024}')
        with self.skip(f's_cmp_ge_u32 {sW}, 2'):
            for u in range(6): a(f'ds_read_b128 a[{216+4*u}:{219+4*u}], v{6 + (u & 1)} offset:{2*3072 + (u//2)*1024}')
        if bar: a('s_waitcnt lgkmcnt(0)\ns_barrier')
    def clear_quarter(self, r, who):
        a = self.a
        self.clr_regs(16)
        a(f"""
        s_and_b32 {u1}, {sH}, 1
        s_mul_i32 {u0}, {u1}, {12288-64}
        s_mul_i32 {u1}, {sW}, {3072-128}
        s_add_u32 {u0}, {u0}, {u1}
        s_add_u32 {u0}, {sFG}, {u0}
        """)
        for i in range(2): a(f'buffer_store_dwordx4 v[16:19], v20, {SRDW}, {sPO} offen offset:{1024*i} sc1'); self.vissue('clr', who)
        for i in range(3): a(f'buffer_store_dwordx4 v[16:19], v20, {SRDW}, {u0} offen offset:{1024*i} sc1'); self.vissue('clr', who)
    def behind(self, key, va, vb):
        if not self.cfg.seg.get(key): return None
        def f(lc):
            self.seg(key, va, vb, 'g', cap=False); self.vwait('pl', 'g')
        return f

    SEQ = [('wqb', 30), ('wuk', 36), ('ckv', 24), ('wob', 32), ('wuv', 36)]
    sIDX, sNEED, sMAX, sFLG = 's12', 's13', 's14', 's15'
    def seq_end(self, name):
        n = 0
        for k, c in self.SEQ:
            n += c
            if k == name: return n
    def stream_sub(self):
        a = self.a; cap = self.cfg.cap3
        sIDX, sNEED, sMAX, sFLG = self.sIDX, self.sNEED, self.sMAX, self.sFLG
        a.label('L_stream')
        n0 = 0
        for name, cnt in self.SEQ:
            lskip, lloop, lc = a.newlabel('Lsn'), a.newlabel('Lsl'), a.newlabel('Lsc')
            a(f's_cmp_ge_u32 {sIDX}, {n0+cnt}\ns_cbranch_scc1 {lskip}')
            self.srd(name)
            wo = name in ('wo', 'wob')
            if wo:
                G, gs, ls = 4, 6 * 1280, 960
                a(f"""
                v_mul_u32_u24 v61, 205, v0
                v_lshrrev_b32 v61, 11, v61
                v_mul_u32_u24 v61, 70, v61
                v_add_lshl_u32 v61, v61, v0, 4
                s_mul_i32 {u0}, {sH}, {192*1280}
                s_mul_i32 {u1}, {sS}, 160
                s_add_u32 {u0}, {u0}, {u1}
                s_sub_u32 {u2}, {sIDX}, {n0}
                s_mul_i32 {u1}, {u2}, 960
                s_add_u32 {u1}, {u1}, {L_WOB if name == 'wob' else L_WO}
                s_mul_i32 {u2}, {u2}, {6*1280}
                s_add_u32 {u0}, {u0}, {u2}
                s_mov_b64 exec, {M60}
                """)
            else:
                G, gs, ls = 3, 128, 1024
                lds, rs, _ = self.G192[name]
                a(self.base192(name, u0)); self.voff192(61, 62, rs)
                a(f"""
                s_sub_u32 {u2}, {sIDX}, {n0}
                s_lshl_b32 {u1}, {u2}, 10
                s_add_u32 {u1}, {u1}, {lds}
                s_mul_i32 {u2}, {u2}, {8*rs//3}
                s_add_u32 {u0}, {u0}, {u2}
                """)
            a.label(lloop)
            a(f"""
            s_cmp_ge_u32 {sIDX}, {sMAX}
            s_cbranch_scc1 L_stream_full
            v_mov_b32 v62, {L_FLAG}
            s_mov_b32 m0, {u1}
            s_waitcnt vmcnt({cap-G})
            ds_read_b32 v62, v62
            buffer_load_dwordx4 v61, {SRDT}, {u0} offen nt lds
            """)
            for k in range(1, G):
                a(f's_add_u32 m0, {u1}, {k*ls}\ns_add_u32 {u2}, {u0}, {k*gs}\nbuffer_load_dwordx4 v61, {SRDT}, {u2} offen nt lds')
            a(f"""
            s_add_u32 {sIDX}, {sIDX}, {G}
            s_add_u32 {u1}, {u1}, {G*ls}
            s_add_u32 {u0}, {u0}, {G*gs if wo else 8*rs}
            s_waitcnt lgkmcnt(0)
            s_cmp_lt_u32 {sIDX}, {sNEED}
            s_cbranch_scc1 {lc}
            v_readfirstlane_b32 {u2}, v62
            s_cmp_ge_u32 {u2}, {sFLG}
            s_cbranch_scc1 L_stream_ret
            {lc}:
            s_cmp_lt_u32 {sIDX}, {n0+cnt}
            s_cbranch_scc1 {lloop}
            s_mov_b64 exec, -1
            """)
            a.label(lskip)
            n0 += cnt
        a.label('L_stream_full')
        a(f's_cmp_ge_u32 {sIDX}, {sNEED}\ns_cbranch_scc1 L_stream_ret\ns_waitcnt vmcnt(0)')
        a.label('L_stream_ret')
        a('s_mov_b64 exec, -1\ns_nop 3\ns_setpc_b64 s[64:65]')
    def stream(self, need=None, upto='wuv', flag=None, extra=None):
        a = self.a; cap = self.cfg.cap3
        a(f's_mov_b32 {self.sNEED}, {cap if need == "zero" else self.seq_end(need) + cap if need else 0}')
        if extra is not None: a(f's_add_u32 {self.sMAX}, {self.sIDX}, {extra}\ns_min_u32 {self.sMAX}, {self.sMAX}, {self.seq_end(upto)}')
        else: a(f's_mov_b32 {self.sMAX}, {self.seq_end(upto)}')
        a(f's_mov_b32 {self.sFLG}, {flag if flag is not None else 0x7fffffff if extra is not None else 0}')
        l = a.newlabel('Lcall')
        a(f's_getpc_b64 s[74:75]\n{l}:\ns_add_u32 s74, s74, L_stream-{l}\ns_addc_u32 s75, s75, 0\ns_nop 4\ns_swappc_b64 s[64:65], s[74:75]')
    def raise_flag(self, va, vb):
        if not self.cfg.dyn: return
        self.nflag += 1
        with self.it0(): self.a(f'v_mov_b32 v{va}, {L_FLAG}\nv_mov_b32 v{vb}, {self.nflag}\nds_write_b32 v{va}, v{vb}')

    def kv_addr(self):
        self.voff192(self.SV, 1, 384)
        self.emit(self.bitperm(1, 0, {3: 4, 4: 2, 5: 1}, 2))
        self.a(f"""
        v_mul_u32_u24 v1, 384, v1
        v_and_b32 v2, 0x70, v{self.SV}
        v_add_u32 v{SK}, v1, v2
        s_mul_i32 {sRING}, {sW}, {6144*(self.cfg.depth+1)}
        s_add_u32 {sRING}, {sRING}, {L_SCR - 4*6144*(self.cfg.depth+1)}
        """)
    def v_raddr(self, tmp):
        self.emit(self.tr192_addr(self.SR, tmp))
        self.a(f'v_add_u32 v{self.SR}, {sRING}, v{self.SR}')
        for t in range(1, 4): self.a(f'v_xor_b32 v{self.SR+t}, {32*t}, v{self.SR}')
    def kv_issue(self, U, who='g3'):
        for b in range(6):
            beta, sig = divmod(b, 3)
            off = ((32 * (U >> 1) + 8 * beta + (U & 1)) if U < 8 else (16 * (U - 8) + 8 * beta)) * 384 + sig * 128
            if U >= 2: self.vcap(self.cfg.cap, who)
            self.a(f's_add_u32 m0, {sRING}, {(U%(self.cfg.depth+1))*6144 + b*1024}\ns_add_u32 {t7}, {sKV}, {off}\n'
                   f'buffer_load_dwordx4 v{SK if U < 8 else self.SV}, {SRDK if U < 8 else SRDV}, {t7} offen nt lds')
            self.vissue(f'U{U}', who)
    def kv_read(self, s_):
        a = self.a
        if s_ == 8: self.v_raddr(1)
        sl = (s_ % (self.cfg.depth + 1)) * 6144
        a('s_waitcnt lgkmcnt(0)')
        if s_ < 8:
            for u in range(6): a(f'ds_read_b128 a[{24*s_+4*u}:{24*s_+4*u+3}], v{self.SR + (u & 1)} offset:{sl + (u//2)*1024}')
        else:
            q = s_ - 8
            for t in range(12):
                r = 64 + 96 * (q >> 2) + 8 * t + 2 * (q & 3)
                a(f'ds_read_b64_tr_b16 v[{r}:{r+1}], v{self.SR + (t & 3)} offset:{sl + (t>>2)*1024}')
    def kv_force(self, upto, who='g3'):
        while self.rd <= upto:
            tag = f'U{self.rd}'
            if who == 'g3' and self.vm['g'] != self.vm['3']: self.vwait_split(tag)
            else: self.vwait(tag, who)
            self.kv_read(self.rd); self.rd += 1
    def kv_flush(self, who='g3', lim=15):
        while self.rd < self.iss and self.rd <= lim and not any(f'U{self.rd}' in self.vm[w] for w in who):
            self.kv_read(self.rd); self.rd += 1
    def kv_pump(self, upto, who='g3', cb=None, lim=15):
        while self.iss <= upto:
            U = self.iss
            self.kv_force(U - self.cfg.depth - 1, who)
            if self.rd - 1 == U - self.cfg.depth - 1: self.a('s_waitcnt lgkmcnt(0)')
            self.kv_issue(U, who); self.iss += 1
            self.kv_flush(who, lim)
            if cb: cb(U)

    def tr192_addr(self, dst, tmp, pairmode=False):
        o = [f'v_bfe_u32 v{dst}, v0, 2, 3', f'v_and_b32 v{tmp}, 6, v{dst}', f'v_lshlrev_b32 v{dst}, 7, v{dst}',
             f'v_lshl_add_u32 v{dst}, v{tmp}, 4, v{dst}', f'v_and_b32 v{tmp}, 3, v0']
        o += [f'v_lshl_add_u32 v{dst}, v{tmp}, 3, v{dst}'] if not pairmode else [f'v_lshlrev_b32 v{tmp}, 4, v{tmp}', f'v_xor_b32 v{dst}, v{dst}, v{tmp}']
        return o + [f'v_lshrrev_b32 v{tmp}, 5, v0', f'v_mul_u32_u24 v{tmp}, 3072, v{tmp}', f'v_add_u32 v{dst}, v{dst}, v{tmp}']
    def tile_addr(self, dst, base, stile, lds_base):
        self.a(f"""
        s_and_b32 {u1}, {stile}, 3
        s_lshl_b32 {u1}, {u1}, 5
        s_lshr_b32 {u2}, {stile}, 2
        s_lshl_b32 {u2}, {u2}, 10
        s_add_u32 {u2}, {u2}, {lds_base}
        v_xor_b32 v{dst}, {u1}, v{base}
        v_add_u32 v{dst}, {u2}, v{dst}
        """)
    def row192_addr(self, dst, dst2, tmp, sbase):
        self.a(f"""
        v_and_b32 v{dst}, 7, v0
        v_and_b32 v{dst2}, 6, v0
        v_lshrrev_b32 v{tmp}, 4, v0
        v_xor_b32 v{dst2}, v{dst2}, v{tmp}
        v_lshlrev_b32 v{dst}, 7, v{dst}
        v_lshl_add_u32 v{dst}, v{dst2}, 4, v{dst}
        v_bfe_u32 v{dst2}, v0, 3, 1
        v_mul_u32_u24 v{dst2}, 3072, v{dst2}
        v_add3_u32 v{dst}, v{dst}, v{dst2}, {sbase}
        v_xor_b32 v{dst2}, 64, v{dst}
        """)

    WQB_ = ['a[240:247]', 'a[248:255]', 'a[216:223]', 'a[224:231]']
    WQT_ = ['v[56:57]', 'v[58:59]', 'a[232:233]', 'a[234:235]']

    def clr_regs(self, r):
        self.a(f'v_mov_b32 v{r}, -1\nv_mov_b32 v{r+1}, -1\nv_mov_b32 v{r+2}, -1\nv_mov_b32 v{r+3}, -1\nv_lshlrev_b32 v{r+4}, 4, v0')
    def box_voff(self, dst, tmp):
        self.a(f"""
        v_lshrrev_b32 v{tmp}, 4, v0
        v_mul_u32_u24 v{tmp}, 1792, v{tmp}
        v_lshl_add_u32 v{dst}, v0, 4, v{tmp}
        s_lshl_b32 {u1}, {sS}, 8
        s_mul_i32 {u2}, {sS}, 224
        v_add_u32 v{dst}, {u1}, v{dst}
        v_subrev_u32 v{tmp}, {u2}, v{dst}
        v_cmp_gt_u32 vcc, 48, v0
        s_sub_u32 {u0}, {sHB}, 6144
        v_cndmask_b32 v{dst}, v{tmp}, v{dst}, vcc
        """)
    def clear_boxes(self, offs, r, tag='clr'):
        a = self.a
        self.clr_regs(r); self.box_voff(r + 5, r + 6)
        ts = [t0, t1, t2, t3]
        for o, t in zip(offs, ts): a(f's_add_u32 {t}, {u0}, {o}')
        a('s_mov_b32 exec_hi, 0x3ffff')
        for o, t in zip(offs, ts):
            a(f'buffer_store_dwordx4 v[{r}:{r+3}], v{r+5}, {SRDW}, {t} offen sc1'); self.vissue(tag, '3')
        a('s_mov_b64 exec, -1')
    def touch(self, offs, r, withP):
        a = self.a
        with self.skip(f's_cmp_eq_u32 {sFAST}, 0'):
            self.box_voff(r + 5, r + 6)
            a('s_mov_b32 exec_hi, 0x3ffff')
            for o in offs:
                a(f's_add_u32 {t0}, {u0}, {o}\nbuffer_load_dword v63, v{r+5}, {SRDW}, {t0} offen sc1')
            a('s_mov_b64 exec, -1')
            if withP:
                a(f's_sub_u32 {t0}, {sPO}, 6144\nv_lshlrev_b32 v{r+5}, 7, v0\nbuffer_load_dword v63, v{r+5}, {SRDW}, {t0} offen sc1')

    def clear_cross_small(self, r, yoffs, tag='clr'):
        a = self.a
        a(f'v_lshrrev_b32 v{r+6}, 3, v0\nv_mul_u32_u24 v{r+6}, 3968, v{r+6}\nv_add_u32 v{r+6}, v{r+6}, v{r+4}\ns_mov_b64 exec, 0xffffff')
        for o in yoffs:
            a(f's_add_u32 {t0}, {sYP}, {(o - 4160) & 0xffffffff}\nbuffer_store_dwordx4 v[{r}:{r+3}], v{r+6}, {SRDW}, {t0} offen sc1'); self.vissue(tag, '3')
    def clear_EFS(self, r, it=0, tag='clr'):
        a = self.a
        a(f"""
        s_add_u32 {t0}, {sEPB}, {(65536*it - 2048 - 32) & 0xffffffff}
        s_mov_b64 exec, 0xfff
        v_lshrrev_b32 v{r+6}, 2, v0
        v_mul_u32_u24 v{r+6}, 960, v{r+6}
        v_add_u32 v{r+6}, v{r+6}, v{r+4}
        buffer_store_dwordx4 v[{r}:{r+3}], v{r+6}, {SRDW}, {t0} offen sc1
        s_lshl_b32 {t0}, {sCU}, 8
        s_add_u32 {t0}, {t0}, {W_FS + 65536*it}
        s_mov_b64 exec, {M16}
        buffer_store_dwordx4 v[{r}:{r+3}], v{r+4}, {SRDW}, {t0} offen sc1
        s_mov_b64 exec, -1
        """)
        self.vissue(tag, '3'); self.vissue(tag, '3')
    def clear_P(self, r, it=0, tag='clr'):
        self.a(f's_add_u32 {t1}, {sPO}, {(2*MiB*it - 6144) & 0xffffffff}\ns_add_u32 {t2}, {t1}, 4096')
        for i in range(8):
            self.a(f'buffer_store_dwordx4 v[{r}:{r+3}], v{r+4}, {SRDW}, {[t1,t2][i>>2]} offen offset:{(i&3)*1024} sc1'); self.vissue(tag, '3')
    def clear_F(self, r, it=0):
        a = self.a
        a(f's_and_b32 {t1}, {sH}, 1\ns_mul_i32 {t1}, {t1}, {12288-64}\ns_add_u32 {t0}, {sFG}, {t1}\ns_add_u32 {t0}, {t0}, {(3*MiB*it - 384) & 0xffffffff}')
        for i in range(12):
            a(f'buffer_store_dwordx4 v[{r}:{r+3}], v{r+4}, {SRDW}, {t0} offen offset:{(i&3)*1024} sc1'); self.vissue('clrF', '3')
            if i & 3 == 3: a(f's_add_u32 {t0}, {t0}, 4096')

    def q_pre(self, which):
        a = self.a
        self.emit(self.sa_addr(1, 3, None))
        a(f"""
        v_and_b32 v3, 2, v0
        v_mul_u32_u24 v3, {(L_ONES - L_XS) // 2}, v3
        v_add_u32 v3, {L_XS}, v3
        v_add_u32 v1, v1, v3
        v_lshrrev_b32 v2, 4, v0
        v_lshl_add_u32 v2, v2, 3, v3
        v_add_u32 v2, 128, v2
        v_and_b32 v3, 1, v0
        v_cmp_eq_u32 vcc, 1, v3
        v_mov_b32 v3, {L_ZERO}
        v_cndmask_b32 v2, v2, v3, vcc
        """)
        self.emit(self.idx(4))
        if which == 'wq':
            a(f's_lshl_b32 {u0}, {sW}, 5\ns_lshl_b32 {u1}, {sW}, 6\ns_sub_u32 {u1}, {u1}, 64\ns_cmp_lt_u32 {sW}, 2\ns_cselect_b32 {u0}, {u0}, {u1}')
        else: a(f's_mul_i32 {u0}, {sW}, 48')
        self.emit(self.pub_voff(5, 3, u0))
        box = B_QA if which == 'wq' else B_QB
        a(f"""
        s_add_u32 {t4}, {sHB}, {(box - 8192) & 0xffffffff}
        s_mul_i32 {t5}, {sW}, {(4 - 2048) & 0xffffffff}
        s_lshl_b32 {u1}, {sS}, 5
        s_add_u32 {t5}, {t5}, {u1}
        s_add_u32 {t5}, {t5}, {sHB}
        s_add_u32 {t5}, {t5}, {box + 6144}
        s_add_u32 {t5}, {t5}, {sW3O}
        """)
    def q_reads(self, va=6, vb=7):
        a = self.a
        self.emit(self.tr192_addr(vb, va))
        for k in range(3):
            a(f's_mul_i32 {u0}, {sW}, 3\ns_add_u32 {u0}, {u0}, {k}')
            self.tile_addr(va, vb, u0, L_WQB)
            for u in range(5): a(f'ds_read_b64_tr_b16 v[{24+10*k+2*u}:{25+10*k+2*u}], v{va} offset:{2*u*3072}')
    def x_gaddr(self):
        return [f's_cmp_lt_u32 {sW}, 2', f's_cselect_b32 {u1}, 63, 59', f's_min_u32 {u0}, {sW}, 2', f's_lshl_b32 {u0}, {u0}, 3',
                f'v_and_b32 v54, {u1}, v0', 'v_and_b32 v60, 7, v54', 'v_lshlrev_b32 v54, 4, v54', f'v_add_u32 v60, {u0}, v60']
    def x_laddr(self):
        return ['v_lshrrev_b32 v55, 4, v0', 'v_lshl_add_u32 v60, v60, 2, v55'] + self.bitperm(55, 60, MAP_TR_SA, 3) + \
               ['v_cmp_gt_u32 vcc, 64, v60', 'v_lshlrev_b32 v60, 1, v60', 'v_cndmask_b32 v55, v60, v55, vcc', f'v_add_u32 v55, {L_XS}, v55']
    def x_stats(self):
        return ['v_lshlrev_b32 v3, 16, v20', f'v_cndmask_b32 v3, 0, v3, {MXV}',
                'v_mul_f32_dpp v3, v3, v3 quad_perm:[0,1,2,3] row_mask:0xf bank_mask:0x3',
                f'v_add_f32_dpp v3, v3, v3 quad_perm:[1,0,3,2] {DP}', f'v_add_f32_dpp v3, v3, v3 quad_perm:[2,3,0,1] {DP}',
                f'v_add_f32_dpp v3, v3, v3 row_half_mirror {DP}'] + self.allrows('v_add_f32', 3, 22)
    def g8_gaddr(self, r):
        return [f'v_lshlrev_b32 v{r}, 2, v0', f'v_and_b32 v{r+1}, 7, v0', f's_lshl_b32 {u0}, {sW}, 11', f's_sub_u32 {u0}, 6144, {u0}',
                f'v_lshl_add_u32 v{r+1}, v{r+1}, 5, {u0}']
    def g8_laddr(self, dst, tmp, mp):
        return [f's_lshl_b32 {u0}, {sW}, 7', f's_add_u32 {u0}, {u0}, {L_QS}'] + self.bitperm(dst, 0, mp, tmp, add=u0)

    def stage_q(self, which):
        a = self.a
        a('ds_read_b64 v[10:11], v2\nds_read_b128 v[6:9], v1')
        if which == 'wqb':
            with self.it0():
                self.q_reads(12, 13); a('s_waitcnt lgkmcnt(0)')
        xs = [x.replace('v22', 'v2') for x in self.x_stats()[3:]]
        g8 = self.g8_gaddr(54)
        self.emit([xs[0], g8[0], g8[1], xs[1], g8[2], g8[3], xs[2], g8[4], xs[3]])
        if which == 'wq': nt = 4; WB = self.WQB_; WT = self.WQT_; D = [24, 28, 32, 36]; mask = MQ
        else:
            nt = 3; WB = [f'v[{24+10*k}:{31+10*k}]' for k in range(3)]; WT = [f'v[{32+10*k}:{33+10*k}]' for k in range(3)]
            D = [12, 16, 20]; mask = M48
        fill = [xs[4], xs[5], xs[6], 'v_and_b32 v1, 8, v0', xs[7], xs[8], 'v_lshlrev_b32 v1, 1, v1', 'v_sub_u32 v1, 16, v1', f's_add_u32 {t0}, {t4}, 8192',
                f's_add_u32 {sYP}, {sYP}, {sYINC}', f's_add_u32 {sYG}, {sYG}, {sYINC}']
        a('s_waitcnt lgkmcnt(1)')
        for k in range(nt):
            a(f'v_mfma_f32_16x16x16_bf16 v[{D[k]}:{D[k]+3}], v[10:11], {WT[k]}, 0')
            for _ in range(2):
                if fill: a(fill.pop(0))
        a('s_waitcnt lgkmcnt(0)')
        for k in range(nt):
            a(f'v_smfmac_f32_16x16x64_bf16 v[{D[k]}:{D[k]+3}], v[6:9], {WB[k]}, v4')
            for _ in range(2):
                if fill: a(fill.pop(0))
        lines = ['s_mov_b64 exec, 0x101', f'buffer_store_dword v3, v1, {SRDW}, {t5} offen{{sc}}', f's_mov_b64 exec, {mask}'] + \
                self.merge(2, D) + [f'buffer_store_dword v2, v5, {SRDW}, {t4} offen{{sc}}', 's_mov_b64 exec, -1']
        def colsum():
            cb = (B_CA - B_QA) if which == 'wq' else (B_CB - B_QB)
            a(f's_add_u32 {t1}, {t4}, {cb}')
            self.emit(self.merge(2, D, 2))
            self.store_intra([f's_mov_b64 exec, {mask}', f'buffer_store_dword v2, v5, {SRDW}, {t1} offen{{sc}}', 's_mov_b64 exec, -1'])
        if which == 'wq':
            sv = {k: list(v) for k, v in self.vm.items()}
            def hot():
                self.store_intra(lines); self.vm = sv
            self.either(f's_cmp_eq_u32 {sIT}, 0', hot, lambda: self.first_publish(D))
        else:
            self.store_intra(lines)
            with self.it0(): colsum()

    def first_publish(self, D):
        a = self.a
        self.emit(self.merge(2, D)); self.emit(self.merge(6, D, 2))
        a(f"""
        s_lshl_b32 {u0}, {sW}, 7
        s_lshl_b32 {u1}, {sW}, 8
        s_sub_u32 {u1}, {u1}, 256
        s_cmp_lt_u32 {sW}, 2
        s_cselect_b32 {u0}, {u0}, {u1}
        s_add_u32 {u0}, {u0}, {L_SX}
        v_lshl_add_u32 v5, v0, 2, {u0}
        s_lshl_b32 {u0}, {sW}, 2
        s_add_u32 {u0}, {u0}, {L_SX + 768}
        v_add_u32 v1, {u0}, v1
        s_getreg_b32 {u1}, hwreg(HW_REG_XCC_ID, 0, 4)
        s_cmp_eq_u32 {sW}, 3
        s_cselect_b64 vcc, -1, 0
        v_mov_b32 v7, {u1}
        v_cndmask_b32 v3, v3, v7, vcc
        s_mov_b64 exec, {MQ}
        ds_write_b32 v5, v2
        ds_write_b32 v5, v6 offset:1024
        s_mov_b64 exec, 0x101
        ds_write_b32 v1, v3
        s_mov_b64 exec, -1
        s_waitcnt lgkmcnt(0)
        s_barrier
        """)
        with self.skip(f's_cmp_lg_u32 {sW}, 3'):
            self.clr_regs(4); self.box_voff(9, 10)
            a(f"""
            v_add_u32 v2, {L_SX}, v8
            ds_read_b128 v[12:15], v2
            ds_read_b128 v[16:19], v2 offset:1024
            s_add_u32 {t1}, {u0}, {B_O}
            s_add_u32 {t2}, {u0}, {B_CA}
            s_mov_b32 exec_hi, 0x3ffff
            buffer_store_dwordx4 v[4:7], v9, {SRDW}, {t1} offen sc1
            s_waitcnt lgkmcnt(0)
            buffer_store_dwordx4 v[12:15], v9, {SRDW}, {u0} offen sc1
            s_mov_b64 exec, {M48}
            buffer_store_dwordx4 v[16:19], v9, {SRDW}, {t2} offen sc1
            s_mov_b64 exec, -1
            """)
            for _ in range(3): self.vissue('st', '3')
            self.clear_cross_small(4, [0], 'st'); a('s_mov_b64 exec, -1')
            if self.cfg.early >= 1:
                sk = self.cfg.skip
                if 'cB' not in sk: self.clear_boxes([B_QB, B_G, B_CB], 4)
                if 'cY' not in sk: self.clear_cross_small(4, [98304, 2 * 98304, 3 * 98304]); a('s_mov_b64 exec, -1')
                if 'cE' not in sk: self.clear_EFS(4); self.clear_EFS(4, 1)
                if 'cB' not in sk: self.clear_boxes([IT_H + B_QA, IT_H + B_O, IT_H + B_QB, IT_H + B_G], 4)
            if self.cfg.early >= 2:
                self.clear_P(4); self.clear_F(4)

    def gather_a(self, cs, first, pre):
        a = self.a
        loads = [f'buffer_load_dwordx3 v[12:14], v55, {SRDW}, {t0} offen sc1', f'buffer_load_dwordx3 v[16:18], v55, {SRDW}, {t0} offen offset:16 sc1']
        loads += [f'buffer_load_dword v{4+p}, v54, {SRDW}, {t0} offen offset:{256*p} sc1' for p in range(8)]
        cl = [f'buffer_load_dword v{20+p}, v54, {SRDW}, {t1} offen offset:{256*p} sc1' for p in range(8)]
        cb = (B_CA - B_QA) if first else (B_CB - B_QB)
        def cs_done():
            self.emit(self.sum8(20)); a(f'v_mul_f32 v{cs}, {f2u(1/640.)}, v20')
        def mid():
            self.emit(self.g8_laddr(2, 3, MAP_NAT_SA)); pre()
        def first0(lc):
            a(f's_add_u32 {t1}, {t0}, {cb}')
            self.emit(cl)
            for _ in cl: self.vissue('pl', 'g')
            if first:
                a(f'buffer_load_dword v28, v55, {SRDW}, {t0} offen offset:12 sc1'); self.vissue('pl', 'g')
                self.kvsave = (self.rd, self.iss)
                self.kv_pump(self.cfg.c3, 'g', lim=self.cfg.rB); self.kv_force(self.cfg.rB, 'g')
            self.vwait('pl', 'g')
            cs_done()
            if first:
                a(f"""
                s_getreg_b32 {u0}, hwreg(HW_REG_XCC_ID, 0, 4)
                v_cmp_ne_u32 vcc, {u0}, v28
                v_mov_b32 v29, {L_SCAL}
                s_cmp_eq_u64 vcc, 0
                s_cselect_b32 {u0}, {0 if self.cfg.force_slow else 1}, 0
                v_mov_b32 v28, {u0}
                ds_write_b32 v29, v28 offset:8
                """)
                self.zero_S()
        def undo():
            if not first:
                with self.skip(f's_cmp_lg_u32 {sIT}, 0'):
                    self.exact_poll(cl, range(20, 28), 15); cs_done()
        def early():
            a(f"""
            v_add_f32 v12, v12, v13
            v_add_f32 v12, v12, v14
            v_add_f32 v16, v16, v17
            v_add_f32 v16, v16, v18
            v_add_f32_dpp v12, v12, v12 quad_perm:[1,0,3,2] {DP}
            v_add_f32_dpp v12, v12, v12 quad_perm:[2,3,0,1] {DP}
            v_add_f32_dpp v12, v12, v12 row_half_mirror {DP}
            """)
        def compute():
            self.emit(self.sum8(4))
            a(f"""
            v_fma_f32 v4, -v12, v{cs}, v4
            v_cvt_pk_bf16_f32 v5, v4, v4
            ds_write_b16 v2, v5
            """)
        self.spec_poll(loads, list(range(4, 15)) + [16, 17, 18], 15, self.cfg.dly['a'], compute, (4, 16), mid=mid, first0=first0, undo=undo, early=(2, early))

    def rstd_ops(self):
        return [f'v_add_f32_dpp v16, v16, v16 quad_perm:[1,0,3,2] {DP}', f'v_mul_f32 v12, {f2u(1/640.)}, v12', f'v_mov_b32 v13, {L_SCAL}',
                f'v_add_f32_dpp v16, v16, v16 quad_perm:[2,3,0,1] {DP}', 'v_mul_f32 v12, v12, v12', f's_min_u32 {u0}, {sW}, 1',
                f'v_add_f32_dpp v16, v16, v16 row_half_mirror {DP}', f's_lshl_b32 {u0}, {u0}, 5', f'v_mul_f32 v16, {f2u(1/640.)}, v16',
                'v_sub_f32 v16, v16, v12', 'v_max_f32 v16, 0, v16', f'v_add_f32 v16, {f2u(1e-5)}, v16', 'v_rsq_f32 v16, v16',
                f'v_add_u32 v13, {u0}, v13', f'v_mul_f32 v16, {sC}, v16', 'ds_write_b32 v13, v16']

    S_ = [20 + 4 * n for n in range(8)]
    def zero_S(self):
        for r in self.S_: self.a(f'v_mov_b64 v[{r}:{r+1}], 0')
    def att_pre0(self):
        self.emit(self.sa_addr(52, 53, L_QS)); self.emit(self.idx(53))
        self.a(f"""
        v_lshlrev_b32 v60, 4, v0
        s_xor_b32 {u0}, {sIT}, 1
        s_mul_i32 {u0}, {u0}, {0 if self.cfg.shadow0 else OOB}
        s_add_u32 {t5}, {sPO}, {u0}
        s_and_b32 {u1}, {sH}, 1
        s_mul_i32 {u1}, {u1}, {12288-64}
        s_add_u32 {u0}, {u0}, {u1}
        s_mul_i32 {u1}, {sW}, {3072-128}
        s_add_u32 {u0}, {u0}, {u1}
        s_add_u32 {t4}, {sFG}, {u0}
        """)
    def att_pre(self):
        self.att_pre0()
        with self.it1(): self.zero_S()

    def shadow_clear(self, so, off):
        return '' if self.cfg.big0 else f'buffer_store_dwordx4 v[16:19], v60, {SRDW}, {so} offen offset:{off} sc1'

    def att_qk(self):
        a = self.a; S = self.S_
        a('s_waitcnt lgkmcnt(0)\ns_barrier\nds_read_b128 v[4:7], v52\nds_read_b128 v[8:11], v52 offset:128')
        ops = self.rstd_ops()
        for _ in range(8): a(ops.pop(0))
        Q = [4, 8, 4]
        extra = {(1, 0): ['s_barrier', f'v_mov_b32 v13, {L_SCAL}', 'ds_read_b96 v[12:14], v13'],
                 (1, 2): [f's_lshl_b32 {u0}, {sW}, 8', f's_add_u32 {u0}, {u0}, {L_PB}'],
                 (1, 3): [f'v_lshl_add_u32 v54, v0, 2, {u0}', f's_sub_u32 {u0}, {u0}, {L_QS}'],
                 (1, 4): [f'v_add_u32 v52, {u0}, v52', 'v_and_b32 v15, 2, v0'],
                 (1, 5): ['v_cmp_eq_u32 vcc, 0, v15', f'v_mov_b32 v15, {L_ZERO}'],
                 (1, 7): ['v_cndmask_b32 v55, v52, v15, vcc', 'v_cndmask_b32 v52, v15, v52, vcc']}
        mg = [x for pr in zip(self.merge(1, S[0::2]), self.merge(2, S[1::2])) for x in pr]
        cs_ = self.shadow_clear
        extra[(0, 6)] = ['v_mov_b64 v[18:19], -1']
        extra[(0, 7)] = ['v_mov_b64 v[16:17], -1']
        extra[(1, 1)] = [cs_(t5, 0)]
        extra[(1, 6)] = [cs_(t5, 1024)]
        extra[(2, 2)] = [cs_(t4, 0)]
        if not self.cfg.big0:
            for _ in range(4): self.vissue('dr')
        for tau in range(3):
            a('s_waitcnt lgkmcnt(1)')
            for n in range(8):
                i = 24 * n + 8 * tau
                a(f'v_smfmac_f32_16x16x64_bf16 v[{S[n]}:{S[n]+3}], v[{Q[tau]}:{Q[tau]+3}], a[{i}:{i+7}], v53')
                if tau == 0:
                    for _ in range(2):
                        if ops: a(ops.pop(0))
                self.emit(extra.get((tau, n), []))
                if tau == 2 and n >= 4: a('s_nop 0'); a(mg.pop(0))
                elif tau == 2: a('s_nop 1')
            if tau == 0: a('ds_read_b128 v[4:7], v52 offset:256')
        z = [f'v_mov_b64 v[{r}:{r+1}], 0' for r in range(20, 44, 2)]
        a(z.pop(0)); a(mg.pop(0)); a(z.pop(0)); a(mg.pop(0)); a(z.pop(0)); a(z.pop(0)); a(mg.pop(0)); a(z.pop(0)); a(z.pop(0)); a(mg.pop(0))
        a(f"""
        v_max_f32 v3, v1, v2
        s_waitcnt lgkmcnt(0)
        {z.pop(0)}
        v_max_f32_dpp v3, v3, v3 quad_perm:[1,0,3,2] {DP}
        {z.pop(0)}
        {z.pop(0)}
        v_max_f32_dpp v3, v3, v3 quad_perm:[2,3,0,1] {DP}
        {z.pop(0)}
        {z.pop(0)}
        v_max_f32_dpp v3, v3, v3 row_half_mirror {DP}
        {z.pop(0)}
        v_mul_f32 v1, v1, v12
        v_max_f32_dpp v3, v3, v3 row_mirror {DP}
        v_mov_b32 v15, v3
        v_mul_f32 v2, v2, v12
        v_permlane16_swap_b32 v3, v15
        v_max_f32 v3, v3, v15
        v_mov_b32 v15, v3
        v_permlane32_swap_b32 v3, v15
        v_max_f32 v3, v3, v15
        v_fma_f32 v1, -v3, v12, v1
        v_fma_f32 v2, -v3, v12, v2
        v_exp_f32 v1, v1
        v_exp_f32 v2, v2
        v_mul_f32 v3, v3, v12
        v_cvt_pk_bf16_f32 v15, v1, v2
        ds_write_b32 v54, v15
        ds_read_b128 v[4:7], v52
        ds_read_b128 v[8:11], v55
        ds_read_b128 v[44:47], v52 offset:128
        ds_read_b128 v[48:51], v55 offset:128
        v_add_f32 v1, v1, v2
        {cs_(t4, 1024)}
        """)
        assert not z and not mg

    def att_pv(self, hook):
        a = self.a
        PL = [4, 44]; PH = [8, 48]
        side = [f's_lshl_b32 {u0}, {sW}, 2', f's_add_u32 {u0}, {u0}, {L_ML}',
                f'v_add_f32_dpp v1, v1, v1 quad_perm:[1,0,3,2] {DP}', f'v_mov_b32 v2, {u0}', f'v_mov_b32 v52, {L_ML}',
                f'v_add_f32_dpp v1, v1, v1 quad_perm:[2,3,0,1] {DP}', 'ds_write_b32 v2, v3', f's_mul_i32 {u0}, {sW}, 768',
                f'v_add_f32_dpp v1, v1, v1 row_half_mirror {DP}', f's_add_u32 {u0}, {u0}, {L_OW}', f'v_lshl_add_u32 v54, v0, 2, {u0}',
                f'v_add_f32_dpp v1, v1, v1 row_mirror {DP}']
        self.emit(side)
        a('s_waitcnt lgkmcnt(3)')
        def mm(c, kap):
            b = 64 + 96 * kap + 8 * c; d = 20 + 4 * (c >> 1); pr = (PL if c % 2 == 0 else PH)[kap]
            a(f'v_smfmac_f32_16x16x64_bf16 v[{d}:{d+3}], v[{pr}:{pr+3}], v[{b}:{b+7}], v53')
        def mrg(dst, mu):
            k = 20 + 8 * mu
            return [f'v_add_f32_dpp v{dst}, v{r}, v{r+1} quad_perm:[0,1,2,3] row_mask:{1<<g:#x} bank_mask:0xf' for g, r in enumerate([k, k + 2, k + 4, k + 6])]
        w0 = self.allrows('v_add_f32', 1, 15) + ['ds_write_b32 v2, v1 offset:16', None, self.shadow_clear(t4, 2048), None, None, None, None,
              's_waitcnt lgkmcnt(0)', 's_barrier', 'ds_read_b128 v[12:15], v52', 'ds_read_b128 v[16:19], v52 offset:16',
              f's_add_u32 {t0}, {sHB}, {B_O}', f's_lshl_b32 {u0}, {sS}, 8', f's_add_u32 {t1}, {t0}, {u0}', f's_add_u32 {t1}, {t1}, {sW3O}',
              f's_lshl_b32 {u0}, {sS}, 5', f's_add_u32 {t2}, {t0}, {u0}', 's_waitcnt lgkmcnt(0)']
        for c in range(12):
            mm(c, 0)
            for _ in range(2):
                if w0:
                    x = w0.pop(0)
                    if x: a(x)
        assert not w0
        if not self.cfg.big0: self.vissue('dr')
        hook()
        w1 = ['v_max3_f32 v2, v12, v13, v14', 'v_max_f32 v2, v2, v15', 'v_sub_f32 v3, v3, v2', 'v_sub_f32 v12, v12, v2',
              'v_exp_f32 v1, v3', None, 'v_sub_f32 v13, v13, v2', 'v_sub_f32 v14, v14, v2', 'v_sub_f32 v15, v15, v2', f's_xor_b32 {u0}, {sW3O}, {OOB}',
              'v_exp_f32 v12, v12', None, 'v_exp_f32 v13, v13', None] + mrg(4, 0) + ['v_exp_f32 v14, v14', None, 'v_mul_f32 v4, v4, v1', 'ds_write_b32 v54, v4']
        for c in range(12):
            mm(c, 1)
            for _ in range(2):
                if w1:
                    x = w1.pop(0)
                    if x: a(x)
        assert not w1
        self.emit(mrg(5, 1))
        a(f"""
        v_mul_f32 v5, v5, v1
        ds_write_b32 v54, v5 offset:256
        v_exp_f32 v15, v15
        """)
        self.emit(mrg(6, 2))
        a(f"""
        v_mul_f32 v6, v6, v1
        ds_write_b32 v54, v6 offset:512
        v_mul_f32 v3, v12, v16
        v_fmac_f32 v3, v13, v17
        s_add_u32 {t2}, {t2}, {u0}
        s_lshl_b32 {u0}, {sW}, 8
        s_add_u32 {u0}, {u0}, {L_OW}
        v_lshl_add_u32 v5, v0, 2, {u0}
        v_fmac_f32 v3, v14, v18
        v_fmac_f32 v3, v15, v19
        s_waitcnt lgkmcnt(0)
        s_barrier
        ds_read2st64_b32 v[8:9], v5 offset0:0 offset1:3
        ds_read2st64_b32 v[10:11], v5 offset0:6 offset1:9
        """)
        self.emit(self.g8_gaddr(26))
        self.store_intra([f's_mov_b64 exec, {ML0}', f'buffer_store_dwordx2 v[2:3], v26, {SRDW}, {t2} offen{{sc}}', 's_mov_b64 exec, -1',
                          's_waitcnt lgkmcnt(0)', 'v_pk_add_f32 v[8:9], v[8:9], v[10:11]', 'v_add_f32 v8, v8, v9',
                          f'buffer_store_dword v8, v26, {SRDW}, {t1} offen{{sc}}'])

    def o_reads(self):
        for u in range(12): self.a(f'ds_read_b64_tr_b16 v[{30+2*u}:{31+2*u}], v28 offset:{16*u*160}')
    def o_pre(self, lds_base, late):
        a = self.a
        a(f"""
        v_lshrrev_b32 v28, 2, v0
        v_mul_u32_u24 v28, 160, v28
        v_and_b32 v29, 3, v0
        v_lshl_add_u32 v28, v29, 3, v28
        s_lshl_b32 {u0}, {sW}, 5
        s_add_u32 {u0}, {u0}, {lds_base}
        v_add_u32 v28, {u0}, v28
        """)
        self.o_reads()
        self.emit(self.sa_addr(55, 29, L_QS)); self.emit(self.idx(29))
        a('v_mov_b64 v[22:23], 0')
    def o_g(self, late):
        a = self.a
        a('s_waitcnt lgkmcnt(0)\ns_barrier')
        a('ds_read_b128 v[4:7], v55\nds_read_b128 v[8:11], v55 offset:128\nds_read_b128 v[12:15], v55 offset:256')
        if late:
            with self.it0():
                self.o_reads(); a('s_waitcnt lgkmcnt(0)')
        self.emit(self.x_gaddr())
        for tau in range(3):
            a(f's_waitcnt lgkmcnt({2-tau})')
            a(f'v_smfmac_f32_16x16x64_bf16 v[22:25], v[{4+4*tau}:{7+4*tau}], v[{30+8*tau}:{37+8*tau}], v29')
        a(f"""
        s_mov_b64 exec, {M16}
        v_add_f32 v22, v22, v23
        buffer_store_dword v22, v26, {SRDW}, {sYP} offen sc1
        s_mov_b64 exec, -1
        """)
    def o_w3(self, late):
        a = self.a
        a('v_mov_b32 v1, v29\nv_mov_b32 v54, v28\nv_mov_b64 v[2:3], 0\nv_mov_b64 v[60:61], 0')
        def r4():
            for u in range(8): a(f'ds_read_b64_tr_b16 v[{14+2*u}:{15+2*u}], v54 offset:{16*u*160+32}')
        if not late: r4()
        else:
            with self.it1(): r4()
        a('s_waitcnt lgkmcnt(0)\ns_barrier')
        a("""
        ds_read_b128 v[6:9], v55
        ds_read_b128 v[10:13], v55 offset:128
        ds_read_b128 a[236:239], v55 offset:256
        """)
        if late:
            with self.it0():
                self.o_reads(); r4(); a('s_waitcnt lgkmcnt(0)')
        a("""
        s_waitcnt lgkmcnt(2)
        v_smfmac_f32_16x16x64_bf16 v[60:63], v[6:9], v[30:37], v1
        """)
        for u in range(8, 12): a(f'ds_read_b64_tr_b16 v[{30+2*(u-8)}:{31+2*(u-8)}], v54 offset:{16*u*160+32}')
        a(f"""
        v_smfmac_f32_16x16x64_bf16 v[2:5], v[6:9], v[14:21], v1
        s_waitcnt lgkmcnt(5)
        v_smfmac_f32_16x16x64_bf16 v[60:63], v[10:13], v[38:45], v1
        v_lshrrev_b32 v6, 4, v0
        v_mul_u32_u24 v6, 3968, v6
        v_smfmac_f32_16x16x64_bf16 v[2:5], v[10:13], v[22:29], v1
        v_lshl_add_u32 v6, v0, 2, v6
        s_waitcnt lgkmcnt(4)
        v_smfmac_f32_16x16x64_bf16 v[60:63], a[236:239], v[46:53], v1
        s_waitcnt lgkmcnt(0)
        v_smfmac_f32_16x16x64_bf16 v[2:5], a[236:239], v[30:37], v1
        s_mov_b64 exec, {M32}
        """)
        self.emit(self.merge(7, [60, 2]))
        a(f'buffer_store_dword v7, v6, {SRDW}, {sYP} offen sc1\ns_mov_b64 exec, -1')

    def gather_b(self, pre):
        a = self.a
        loads = [f'buffer_load_dwordx2 v[12:13], v27, {SRDW}, {t0} offen sc1']
        loads += [f'buffer_load_dword v{4+p}, v26, {SRDW}, {t0} offen offset:{256*p} sc1' for p in range(8)]
        def mid():
            self.emit(self.g8_laddr(2, 3, MAP_TR_SA)); pre()
        def early():
            a(f"""
            v_max_f32_dpp v14, v12, v12 quad_perm:[1,0,3,2] {DP}
            v_max_f32_dpp v14, v14, v14 quad_perm:[2,3,0,1] {DP}
            v_max_f32_dpp v14, v14, v14 row_half_mirror {DP}
            v_sub_f32 v12, v12, v14
            v_exp_f32 v12, v12
            v_mul_f32 v13, v13, v12
            """)
        def compute():
            a(f"""
            v_mul_f32_dpp v4, v12, v4 row_newbcast:0 {DP}
            v_mul_f32_dpp v5, v12, v5 row_newbcast:1 {DP}
            v_add_f32_dpp v13, v13, v13 quad_perm:[1,0,3,2] {DP}
            v_fmac_f32_dpp v4, v12, v6 row_newbcast:2 {DP}
            v_fmac_f32_dpp v5, v12, v7 row_newbcast:3 {DP}
            v_add_f32_dpp v13, v13, v13 quad_perm:[2,3,0,1] {DP}
            v_fmac_f32_dpp v4, v12, v8 row_newbcast:4 {DP}
            v_fmac_f32_dpp v5, v12, v9 row_newbcast:5 {DP}
            v_add_f32_dpp v13, v13, v13 row_half_mirror {DP}
            v_fmac_f32_dpp v4, v12, v10 row_newbcast:6 {DP}
            v_fmac_f32_dpp v5, v12, v11 row_newbcast:7 {DP}
            v_rcp_f32 v13, v13
            v_add_f32 v4, v4, v5
            v_mul_f32 v4, v4, v13
            v_cvt_pk_bf16_f32 v5, v4, v4
            ds_write_b16 v2, v5
            """)
        self.spec_poll(loads, range(4, 14), 15, self.cfg.dly['b'], compute, (4, 4), mid=mid, first0=self.behind('b2', 16, 17), early=(1, early))

    def gather_g(self, pre):
        a = self.a
        loads = [f'buffer_load_dword v{4+p}, v26, {SRDW}, {t0} offen offset:{256*p} sc1' for p in range(8)]
        def mid():
            self.emit(self.g8_laddr(2, 3, MAP_TR_SA)); pre()
        def compute():
            self.emit(self.sum8(4)); a('v_cvt_pk_bf16_f32 v5, v4, v4\nds_write_b16 v2, v5')
        self.spec_poll(loads, range(4, 12), 15, self.cfg.dly['g'], compute, (4, 4), mid=mid)

    def gather_c(self, key):
        a = self.a
        self.emit(self.x_laddr())
        a('ds_read_u16 v22, v55')
        loads = [f'buffer_load_dwordx4 v[{6+4*i}:{9+4*i}], v54, {SRDW}, {sYG} offen offset:{1024*i} sc1' for i in range(4)]
        def mid(): a('s_waitcnt lgkmcnt(0)\nv_lshlrev_b32 v22, 16, v22')
        def compute():
            a(f"""
            v_pk_add_f32 v[6:7], v[6:7], v[10:11]
            v_pk_add_f32 v[14:15], v[14:15], v[18:19]
            v_pk_add_f32 v[8:9], v[8:9], v[12:13]
            v_pk_add_f32 v[6:7], v[6:7], v[14:15]
            v_pk_add_f32 v[16:17], v[16:17], v[20:21]
            v_pk_add_f32 v[8:9], v[8:9], v[16:17]
            v_permlane16_swap_b32 v6, v7
            v_add_f32 v6, v6, v7
            v_permlane16_swap_b32 v8, v9
            v_add_f32 v8, v8, v9
            v_permlane32_swap_b32 v6, v8
            v_add_f32 v6, v6, v8
            v_add_f32_dpp v6, v6, v6 row_ror:8 {DP}
            v_cvt_pk_bf16_f32 v7, v6, v6
            v_lshlrev_b32 v7, 16, v7
            v_add_f32 v7, v7, v22
            v_cvt_pk_bf16_f32 v20, v7, v7
            ds_write_b16 v55, v20
            """)
        bh = self.behind(key, 3, 53) if key else None
        self.spec_poll(loads, range(6, 22), 3, self.cfg.dly['c' if key else 'c2'], compute, (6, 6), mid=mid, first0=bh)
        self.emit(self.x_stats()[:3])

    def abs_pre(self):
        self.emit(self.sa_addr(52, 53, L_QS)); self.emit(self.idx(53))
        self.a('v_lshlrev_b32 v50, 1, v0\nv_mov_b64 v[40:41], 0\nv_mov_b64 v[44:45], 0')
    def stage_abs(self):
        a = self.a
        a('s_waitcnt lgkmcnt(0)\ns_barrier')
        if self.cfg.dyn:
            with self.it0(): self.uk_copy(False)
        a('ds_read_b128 v[28:31], v52\nds_read_b128 v[32:35], v52 offset:128\nds_read_b128 v[36:39], v52 offset:256')
        ops = self.rstd_ops()
        for _ in range(8): a(ops.pop(0))
        for tau in range(3):
            a(f's_waitcnt lgkmcnt({2-tau})')
            a(f'v_smfmac_f32_16x16x64_bf16 v[40:43], v[{28+4*tau}:{31+4*tau}], a[{192+8*tau}:{199+8*tau}], v53')
            a(f'v_smfmac_f32_16x16x64_bf16 v[44:47], v[{28+4*tau}:{31+4*tau}], a[{216+8*tau}:{223+8*tau}], v53')
        for _ in range(6): a(ops.pop(0))
        self.emit(self.merge(48, [40, 44]))
        self.emit(ops)
        a(f"""
        v_mov_b32_dpp v49, v48 quad_perm:[1,1,3,3] {DP}
        s_mov_b64 exec, {MABS}
        v_cvt_pk_bf16_f32 v48, v48, v49
        buffer_store_dword v48, v50, {SRDW}, {sEPB} offen sc1
        s_mov_b64 exec, -1
        """)
        self.vissue('st')

    def dyn_behind(self, key):
        n = self.cfg.bh.get(key) if self.cfg.dyn else 0
        if not n: return None
        def f(lc):
            a = self.a
            with self.skip(f's_cmp_lg_u32 {sW}, 3'):
                a(f's_add_u32 {sCNT}, {self.sIDX}, {n}')
                self.stream(extra=n)
                with self.skip(f's_cmp_lt_u32 {self.sIDX}, {sCNT}'): a(f's_waitcnt vmcnt({n})\ns_branch {lc}')
            a('s_waitcnt vmcnt(0)'); self.vdrain('g3')
        return f

    def stage_sc(self):
        a = self.a
        a(f's_lshr_b32 {u0}, {sW}, 1\ns_mul_i32 {u0}, {u0}, {4*3072}\ns_add_u32 {u0}, {u0}, {L_CKV}')
        self.row192_addr(1, 3, 2, u0)
        def w3it0(): return self.ool(f's_add_u32 {u0}, {sW3O}, {sIT}\ns_cmp_eq_u32 {u0}, {OOB}')
        self.w3it0 = w3it0
        if self.cfg.dyn:
            with w3it0(): self.stream(need='ckv', upto='wob')
        a('s_waitcnt lgkmcnt(0)\ns_barrier')
        if self.cfg.dyn and self.cfg.pre3.get('e'):
            with w3it0(): self.stream(extra=self.cfg.pre3['e'])
        seq = [(n, u) for n in range(2) for u in range(6)]
        def aread(k):
            n, u = seq[k]; r = 28 + 4 * (k % 5)
            a(f'ds_read_b128 v[{r}:{r+3}], v{1 if u % 2 == 0 else 3} offset:{n*2*3072 + (u//2)*1024}')
        def pre():
            for k in range(5): aread(k)
            a('v_lshlrev_b32 v60, 4, v0')
        a(f"""
        v_and_b32 v60, 15, v0
        v_lshlrev_b32 v60, 6, v60
        v_lshl_add_u32 v2, v2, 4, v60
        s_add_u32 {t0}, {sEG}, 4096
        s_xor_b32 {t1}, {sPO}, {1<<13}
        s_xor_b32 {t2}, {sPO}, {2<<13}
        s_xor_b32 {t3}, {sPO}, {3<<13}
        """)
        pre()
        loads = [f'buffer_load_dwordx4 v[{4+4*u}:{7+4*u}], v2, {SRDW}, {sEG if u < 4 else t0} offen offset:{1024*(u&3)} sc1' for u in range(6)]
        def mf(k):
            n, u = seq[k]; r = 28 + 4 * (k % 5); d = 52 if n == 0 else 48
            a(f's_waitcnt lgkmcnt({min(4, 11-k)})')
            a(f'v_mfma_f32_16x16x32_bf16 v[{d}:{d+3}], v[{r}:{r+3}], v[{4+4*u}:{7+4*u}], ' + ('0' if u == 0 else f'v[{d}:{d+3}]'))
            if k + 5 < 12: aread(k + 5)
        def compute():
            self.stamp('e got')
            for k in range(10): mf(k)
        self.spec_poll(loads, range(4, 28), 60, self.cfg.dly['e'], compute, (52, 52), redo=pre, who='g3', first0=self.dyn_behind('e'))
        a(f's_cmp_eq_u32 {sFAST}, 0')
        mf(10); mf(11)
        self.store_intra([f'buffer_store_dwordx4 v[52:55], v60, {SRDW}, {sPO} offen{{sc}}',
                          f'buffer_store_dwordx4 v[48:51], v60, {SRDW}, {sPO} offen offset:1024{{sc}}'], precmp=True)

    def stage_ctx(self):
        a = self.a
        loads = []
        for k, s_ in enumerate([t1, t2, t3]):
            loads.append(f'buffer_load_dwordx4 v[{4+8*k}:{7+8*k}], v60, {SRDW}, {s_} offen sc1')
            loads.append(f'buffer_load_dwordx4 v[{8+8*k}:{11+8*k}], v60, {SRDW}, {s_} offen offset:1024 sc1')
        def cread(tile, r):
            k, hf = divmod(tile, 2)
            ar = 2 if k == 1 else 1; off = 8 * hf + (1024 if k == 2 else 0)
            return [f'ds_read_b64_tr_b16 v[{r}:{r+1}], v{ar} offset:{off}', f'ds_read_b64_tr_b16 v[{r+2}:{r+3}], v{ar} offset:{off + 2*3072}']
        def mid():
            self.emit(self.tr192_addr(1, 3, pairmode=True))
            a(f"""
            s_lshr_b32 {t4}, {sW}, 1
            s_mul_i32 {u0}, {t4}, {4*3072 + 1024}
            s_add_u32 {u0}, {u0}, {L_CKV}
            s_lshl_b32 {u1}, {t4}, 6
            s_lshl_b32 {u2}, {t4}, 10
            v_xor_b32 v1, {u1}, v1
            v_add_u32 v1, {u0}, v1
            v_xor_b32 v2, 64, v1
            v_add_u32 v2, {u2}, v2
            v_mov_b32 v3, {L_SCAL}
            ds_read_b32 v3, v3
            """)
            for tl in range(5): self.emit(cread(tl, 28 + 4 * tl))
            a(f"""
            s_mul_i32 {t5}, {t4}, {(-8*3072) & 0xffffffff}
            s_add_u32 {t5}, {t5}, {4*3072}
            s_lshl_b32 {t6}, {sW}, 11
            s_xor_b32 {t7}, {t6}, 4096
            s_add_u32 {t6}, {t6}, {L_SX}
            s_add_u32 {t7}, {t7}, {L_SX}
            s_waitcnt lgkmcnt(10)
            v_readfirstlane_b32 {t4}, v3
            """)
        def compute():
            self.stamp('p got')
            a("""
            v_pk_add_f32 v[4:5], v[4:5], v[52:53]
            v_pk_add_f32 v[6:7], v[6:7], v[54:55]
            v_pk_add_f32 v[12:13], v[12:13], v[20:21]
            v_pk_add_f32 v[14:15], v[14:15], v[22:23]
            v_pk_add_f32 v[8:9], v[8:9], v[48:49]
            v_pk_add_f32 v[10:11], v[10:11], v[50:51]
            v_pk_add_f32 v[16:17], v[16:17], v[24:25]
            v_pk_add_f32 v[18:19], v[18:19], v[26:27]
            v_pk_add_f32 v[4:5], v[4:5], v[12:13]
            v_pk_add_f32 v[6:7], v[6:7], v[14:15]
            v_pk_add_f32 v[8:9], v[8:9], v[16:17]
            v_pk_add_f32 v[10:11], v[10:11], v[18:19]
            v_max3_f32 v12, v4, v5, v6
            v_max3_f32 v13, v7, v8, v9
            v_max3_f32 v12, v12, v10, v11
            v_max_f32 v12, v12, v13
            v_mov_b32 v13, v12
            v_pk_add_f32 v[14:15], v[4:5], v[6:7]
            v_pk_add_f32 v[16:17], v[8:9], v[10:11]
            v_permlane16_swap_b32 v12, v13
            v_max_f32 v12, v12, v13
            v_mov_b32 v13, v12
            v_pk_add_f32 v[14:15], v[14:15], v[16:17]
            """)
        self.spec_poll(loads, range(4, 28), 3, self.cfg.dly['p'], compute, (14, 15), mid=mid, who='g3', first0=self.dyn_behind('p'))
        a(f"""
        v_permlane32_swap_b32 v12, v13
        v_max_f32 v12, v12, v13
        v_mul_f32_e64 v14, -v12, {t4}
        v_mov_b32 v16, {t4}
        v_floor_f32 v14, v14
        """)
        self.emit(cread(5, 48))
        for k in range(4, 12, 2): a(f'v_pk_fma_f32 v[{k}:{k+1}], v[{k}:{k+1}], v[16:17], v[14:15] op_sel_hi:[1,0,0]')
        a(f'v_add_u32 v1, {t5}, v1\nv_add_u32 v2, {t5}, v2')
        for k in range(4, 12): a(f'v_exp_f32 v{k}, v{k}')
        a(f'v_add_u32 v3, {t6}, v60')
        for k in range(4): a(f'v_cvt_pk_bf16_f32 v{16+k}, v{4+2*k}, v{5+2*k}')
        a(f"""
        ds_write_b128 v3, v[16:19]
        v_pk_add_f32 v[4:5], v[4:5], v[6:7]
        v_pk_add_f32 v[8:9], v[8:9], v[10:11]
        v_pk_add_f32 v[4:5], v[4:5], v[8:9]
        v_add_f32 v15, v4, v5
        ds_write_b64 v3, v[14:15] offset:1024
        v_add_u32 v3, {t7}, v60
        """)
        self.emit(cread(0, 52) + cread(1, 20) + cread(2, 24))
        a(f"""
        s_waitcnt lgkmcnt(6)
        s_barrier
        ds_read_b64 v[12:13], v3 offset:1024
        ds_read_b128 v[8:11], v3
        """)
        self.emit(cread(3, 4))
        a(f"""
        v_bfe_u32 v60, v0, 1, 3
        v_mul_u32_u24 v60, 196608, v60
        v_and_b32 v3, 1, v0
        v_lshl_add_u32 v60, v3, 6, v60
        v_and_b32 v3, 48, v0
        v_add_u32 v60, v60, v3
        s_waitcnt lgkmcnt(3)
        v_min_f32 v2, v14, v12
        v_sub_f32 v14, v14, v2
        v_sub_f32 v12, v12, v2
        v_min_f32 v14, 0x437f0000, v14
        v_min_f32 v12, 0x437f0000, v12
        v_cvt_u32_f32 v3, v14
        v_mul_u32_u24 v3, 0x800080, v3
        v_pk_sub_u16 v16, v16, v3 clamp
        v_pk_sub_u16 v17, v17, v3 clamp
        v_pk_sub_u16 v18, v18, v3 clamp
        v_pk_sub_u16 v19, v19, v3 clamp
        v_cvt_u32_f32 v3, v12
        v_mul_u32_u24 v3, 0x800080, v3
        """)
        M = lambda d, A_, B_, c: f'v_mfma_f32_16x16x32_bf16 v[{d}:{d+3}], v[{A_}:{A_+3}], v[{B_}:{B_+3}], ' + (f'v[{d}:{d+3}]' if c else '0')
        def out(k, x, y, o):
            self.vissue('st')
            return [f'v_cvt_pk_bf16_f32 v{o}, v{x}, v{x+1}', f'v_cvt_pk_bf16_f32 v{o+1}, v{x+2}, v{x+3}',
                    f'v_cvt_pk_bf16_f32 v{o+2}, v{y}, v{y+1}', f'v_cvt_pk_bf16_f32 v{o+3}, v{y+2}, v{y+3}',
                    f'buffer_store_dwordx4 v[{o}:{o+3}], v60, {SRDW}, {sFP} offen offset:{128*k} sc1']
        a(f"""
        {M(28, 28, 16, 0)}
        s_waitcnt lgkmcnt(2)
        v_pk_sub_u16 v8, v8, v3 clamp
        v_pk_sub_u16 v9, v9, v3 clamp
        {M(32, 32, 16, 0)}
        v_pk_sub_u16 v10, v10, v3 clamp
        v_pk_sub_u16 v11, v11, v3 clamp
        {M(36, 36, 16, 0)}
        v_exp_f32_e64 v14, -v14
        {M(28, 52, 8, 1)}
        """)
        self.emit(cread(4, 52))
        a(f"""
        {M(32, 20, 8, 1)}
        """)
        self.emit(cread(5, 20))
        a(f"""
        {M(40, 40, 16, 0)}
        v_exp_f32_e64 v12, -v12
        {M(36, 24, 8, 1)}
        v_mul_f32 v3, v15, v14
        s_waitcnt lgkmcnt(4)
        {M(40, 4, 8, 1)}
        v_fmac_f32 v3, v13, v12
        v_sub_f32 v2, 0, v2
        {M(44, 44, 16, 0)}
        v_mov_b32 v1, v3
        """)
        o0 = out(0, 28, 32, 24)
        a(f"""
        {o0[0]}
        {M(48, 48, 16, 0)}
        {o0[1]}
        v_permlane16_swap_b32 v3, v1
        s_waitcnt lgkmcnt(2)
        {M(44, 52, 8, 1)}
        {o0[2]}
        {o0[3]}
        s_waitcnt lgkmcnt(0)
        {M(48, 20, 8, 1)}
        {o0[4]}
        v_add_f32 v3, v3, v1
        v_mov_b32 v1, v3
        """)
        o1 = out(1, 36, 40, 4)
        a(f"""
        {o1[0]}
        {o1[1]}
        v_permlane32_swap_b32 v3, v1
        {o1[2]}
        {o1[3]}
        {o1[4]}
        v_add_f32 v3, v3, v1
        v_lshlrev_b32 v1, 3, v0
        s_mov_b64 exec, {M16}
        buffer_store_dwordx2 v[2:3], v1, {SRDW}, {sFSP} offen sc1
        s_mov_b64 exec, -1
        """)
        self.vissue('st')
        self.emit(out(2, 44, 48, 8))

    def uv_wread(self, r, areg):
        for u in range(6): self.a(f'ds_read_b64_tr_b16 v[{r+2*u}:{r+2*u+1}], v{areg} offset:{2*u*3072}')
    def uv_pre(self, full=False):
        a = self.a
        self.emit(self.tr192_addr(55, 54))
        for k in range(3):
            a(f's_mul_i32 {u0}, {sW}, 3\ns_add_u32 {u0}, {u0}, {k}')
            self.tile_addr(60, 55, u0, L_WUV)
            if k < 2 or full: self.uv_wread([28, 40, 8][k], 60)

    def gather_f(self):
        a = self.a
        def addrs():
            a("""
            v_lshrrev_b32 v2, 2, v0
            v_mul_u32_u24 v1, 384, v2
            v_lshlrev_b32 v2, 10, v2
            v_and_b32 v3, 3, v0
            v_lshl_add_u32 v1, v3, 4, v1
            """)
        addrs()
        so = [sFG, t0, t1, t2]; ss = [sFSG, t3, t4, t5]
        for i in range(1, 4): a(f's_add_u32 {so[i]}, {sFG}, {6144*i}\ns_add_u32 {ss[i]}, {sFSG}, {16384*i}')
        loads = [f'buffer_load_dwordx2 v[{20+2*i}:{21+2*i}], v2, {SRDW}, {ss[i]} offen sc1' for i in range(4)]
        if self.cfg.dly['f2']: loads.append(f"s_sleep {self.cfg.dly['f2']}")
        loads += [f'buffer_load_dwordx4 v[{4+4*i}:{7+4*i}], v1, {SRDW}, {so[i]} offen sc1' for i in range(4)]
        lo = [52, 53, 54, 55]
        def stats(wait=True):
            self.emit(self.bitperm(2, 0, {0: 5, 4: 4, 5: 3, 1: 2}, 3)); self.emit(self.bitperm(1, 0, {0: 5, 5: 4, 1: 3, 4: 2}, 3))
            a(f"""
            s_cmp_eq_u32 {sW}, 2
            s_cselect_b64 vcc, -1, 0
            s_lshl_b32 {u0}, {sW}, 6
            s_add_u32 {u0}, {u0}, {L_US}
            v_cndmask_b32 v2, v2, v1, vcc
            v_add_u32 v2, {u0}, v2
            v_mov_b64 v[52:53], 0
            v_mov_b64 v[54:55], 0
            s_waitcnt vmcnt(4)
            v_max3_f32 v3, v20, v22, v24
            v_max_f32 v3, v3, v26
            v_max_f32_dpp v3, v3, v3 row_ror:4 {DP}
            v_max_f32_dpp v3, v3, v3 row_ror:8 {DP}
            """)
            self.emit(self.allrows('v_max_f32', 3, 1))
            for i in range(4): a(f'v_sub_f32 v{20+2*i}, v{20+2*i}, v3')
            for i in range(4): a(f'v_exp_f32 v{20+2*i}, v{20+2*i}')
            for i in range(4): a(f'v_and_b32 v{20+2*i}, 0xffff0000, v{20+2*i}')
            a('v_mul_f32 v3, v20, v21')
            for i in range(1, 4): a(f'v_fmac_f32 v3, v{20+2*i}, v{21+2*i}')
            a(f"""
            v_lshrrev_b32 v21, 16, v20
            v_lshrrev_b32 v23, 16, v22
            v_add_f32_dpp v3, v3, v3 row_ror:4 {DP}
            v_lshrrev_b32 v25, 16, v24
            v_lshrrev_b32 v27, 16, v26
            v_add_f32_dpp v3, v3, v3 row_ror:8 {DP}
            """)
            self.emit(self.allrows('v_add_f32', 3, 1) + ['v_rcp_f32 v3, v3', f'v_mul_f32 v3, {sUH}, v3'])
        def compute():
            self.stamp('f got')
            for i in range(4):
                for c in range(4): a(f'v_dot2c_f32_bf16 v{lo[c]}, v{4+4*i+c}, v{21+2*i}')
            sw = ['v_permlane16_swap_b32 v52, v53', 'v_permlane16_swap_b32 v54, v55', 'v_add_f32 v52, v52, v53', 'v_add_f32 v54, v54, v55',
                  'v_permlane32_swap_b32 v52, v54', 'v_add_f32 v52, v52, v54', f'v_add_f32_dpp v52, v52, v52 row_ror:4 {DP}']
            for c in range(4): a(f'v_dot2_f32_bf16 v{4+c}, v{4+c}, v20, 0')
            a(sw.pop(0))
            for i in range(1, 4):
                for c in range(4):
                    a(f'v_dot2_f32_bf16 v{4+c}, v{4+4*i+c}, v{20+2*i}, v{4+c}')
                    if sw and c % 2 == 1: a(sw.pop(0))
            a(f"""
            v_permlane16_swap_b32 v4, v5
            v_add_f32_dpp v52, v52, v52 row_ror:8 {DP}
            v_permlane16_swap_b32 v6, v7
            v_add_f32 v4, v4, v5
            v_add_f32 v6, v6, v7
            v_mul_f32 v52, v52, v3
            v_permlane32_swap_b32 v4, v6
            v_add_f32 v4, v4, v6
            v_add_f32_dpp v4, v4, v4 row_ror:4 {DP}
            v_add_f32_dpp v4, v4, v4 row_ror:8 {DP}
            v_mul_f32 v4, v4, v3
            v_cvt_pk_bf16_f32 v5, v52, v4
            ds_write_b32 v2, v5
            """)
            self.uv_wread(8, 60)
        self.spec_poll(loads, range(4, 28), 3, self.cfg.dly['f'], compute, (52, 4), mid=stats, redo=stats, undo=addrs)

    def stage_uv(self):
        a = self.a
        a(f"""
        v_and_b32 v2, 48, v0
        v_and_b32 v3, 1, v0
        v_lshlrev_b32 v1, 1, v2
        v_add_u32 v2, {L_US + 128}, v2
        v_lshl_add_u32 v1, v3, 4, v1
        s_waitcnt lgkmcnt(6)
        s_barrier
        """)
        if self.cfg.dyn or any(x[0] == 'wuv' for k in ('p3', 'p4', 'f1') for x in self.cfg.seg.get(k, [])):
            with self.it0(): self.uv_pre(True)
        a(f"""
        ds_read_b128 v[24:27], v2
        v_add_u32 v1, {L_US}, v1
        ds_read_b128 v[20:23], v1
        v_mul_u32_u24 v3, 0xaaaa, v3
        v_or_b32 v3, 0x4444, v3
        s_mul_i32 {u0}, {sW}, 48
        """)
        fill = self.pub_voff(60, 1, u0) + [f's_add_u32 {t0}, {sHB}, {B_G}', f's_add_u32 {t4}, {sHB}, {B_G - 8192}']
        for _ in range(6): a(fill.pop(0))
        a('s_waitcnt lgkmcnt(1)')
        Wb = [28, 40, 8]; D = [52, 4, 36]
        for k in range(3):
            a(f'v_mfma_f32_16x16x32_bf16 v[{D[k]}:{D[k]+3}], v[24:27], v[{Wb[k]+8}:{Wb[k]+11}], 0')
            for _ in range(2):
                if fill: a(fill.pop(0))
        a('s_waitcnt lgkmcnt(0)')
        for k in range(3): a(f'v_smfmac_f32_16x16x64_bf16 v[{D[k]}:{D[k]+3}], v[20:23], v[{Wb[k]}:{Wb[k]+7}], v3')
        a('v_lshlrev_b32 v26, 2, v0')
        self.store_intra([f's_mov_b64 exec, {M48}'] + self.merge(2, D) + [f'buffer_store_dword v2, v60, {SRDW}, {t4} offen{{sc}}', 's_mov_b64 exec, -1'])

    def build(self):
        a = self.a; cfg = self.cfg
        if cfg.dyn:
            cfg.seg = {k: v for k, v in cfg.seg.items() if k in ('v0', 'v1')}; cfg.early = 2
        a(f"""
        s_cmp_ge_u32 s2, 256
        s_cbranch_scc1 L_end
        s_load_dwordx16 s[64:79], s[0:1], 0
        s_load_dwordx8 s[80:87], s[0:1], 64
        s_load_dwordx4 s[88:91], s[0:1], 96
        v_lshrrev_b32 v1, 6, v0
        v_mov_b32 v51, v0
        v_and_b32 v0, 63, v0
        v_readfirstlane_b32 {sW}, v1
        s_and_b32 {t0}, s2, 7
        s_lshl_b32 {t0}, {t0}, 5
        s_lshr_b32 {t1}, s2, 3
        s_add_u32 {sCU}, {t0}, {t1}
        s_lshr_b32 {sH}, {sCU}, 3
        s_and_b32 {sS}, {sCU}, 7
        s_mul_i32 {sKV}, {sCU}, 196608
        s_mul_i32 {t0}, {sW}, 49152
        s_add_u32 {sKV}, {sKV}, {t0}
        s_mov_b32 {sSTI}, 0
        """)
        if cfg.stamps: a('v_mov_b32 v63, 0')
        self.kv_addr()
        a('s_waitcnt lgkmcnt(0)')
        self.stamp('start')
        self.dma192('wq', 0, 8, 1, 2, 'g3', None)
        self.srd('k', 12)
        self.emit(self.x_gaddr())
        a(f'v_and_b32 v3, {u1}, v0\nv_cmp_eq_u32 {MXV}, v3, v0')
        self.emit(self.x_laddr())
        self.srd('x')
        a(f's_mul_i32 {t0}, {sS}, 160\nbuffer_load_ushort v20, v60, {SRDT}, {t0} offen'); self.vissue('x')
        for U in range(2): self.kv_issue(U)
        self.srd('v', 16); self.srd('ws', 20, WS_BYTES)
        a(f"""
        s_add_u32 s96, s90, {W_EP}
        s_addc_u32 s97, s91, 0
        s_load_dword {sEP}, s[96:97], 0
        s_getpc_b64 s[98:99]
        L_pc:
        s_lshr_b32 {t0}, s2, 3
        s_lshl_b32 {t0}, {t0}, 2
        s_add_u32 {t0}, {t0}, {sW}
        s_lshl_b32 {t0}, {t0}, 8
        s_min_u32 {t0}, {t0}, L_last-L_pc-132
        s_add_u32 s98, s98, {t0}
        s_addc_u32 s99, s99, 0
        {'s_load_dword s74, s[98:99], 0' if cfg.warm_code else ''}
        {'s_load_dword s75, s[98:99], 128' if cfg.warm_code else ''}
        s_lshr_b32 {sKB}, {sCU}, 2
        s_and_b32 {sCB}, {sCU}, 3
        s_mov_b32 {sIT}, 0
        s_mov_b32 {sFAST}, 0
        s_mov_b32 s36, -1
        s_mov_b32 s37, 0xffff
        s_mov_b32 s38, 0xffff
        s_mov_b32 s39, 0
        s_mov_b64 {ML0}, 1
        s_mov_b32 s42, -1
        s_mov_b32 s43, 0x0fffffff
        s_mov_b32 s50, -1
        s_mov_b32 s51, 0
        s_mov_b32 {sC}, {f2u(SCALE)}
        s_mov_b32 {sLIM}, {cfg.lim}
        s_mov_b32 s60, -1
        s_mov_b32 s93, 0
        s_mov_b32 s92, 0x55555555
        s_cmp_lt_u32 {sW}, 2
        s_cselect_b32 s61, 0, -1
        s_cselect_b32 s92, s92, 0x5555
        s_cmp_eq_u32 {sW}, 2
        s_cselect_b32 {sUH}, 0.5, 1.0
        s_cmp_eq_u32 {sW}, 3
        s_cselect_b32 {sW3O}, {OOB}, 0
        s_lshl_b32 {sHB}, {sH}, 16
        s_lshl_b32 {t0}, {sW}, 11
        s_add_u32 {sHB}, {sHB}, {t0}
        s_add_u32 {sHB}, {sHB}, {W_H + 8192}
        s_mul_i32 {sYG}, {sS}, 12288
        s_add_u32 {sYG}, {sYG}, {W_Y - 98304}
        s_lshl_b32 {sYP}, {sH}, 7
        s_add_u32 {sYP}, {sYP}, {sYG}
        s_lshr_b32 {t0}, {sW}, 1
        s_lshl_b32 {t0}, {t0}, 12
        s_add_u32 {sYP}, {sYP}, {t0}
        s_and_b32 {t0}, {sW}, 1
        s_lshl_b32 {t0}, {t0}, 6
        s_add_u32 {sYP}, {sYP}, {t0}
        s_lshl_b32 {t0}, {sW}, 12
        s_add_u32 {sYG}, {sYG}, {t0}
        s_lshr_b32 {t0}, {sS}, 1
        s_lshl_b32 {t0}, {t0}, 1
        s_lshr_b32 {t1}, {sH}, 4
        s_add_u32 {t0}, {t0}, {t1}
        s_lshl_b32 {t0}, {t0}, 1
        s_and_b32 {t1}, {sS}, 1
        s_add_u32 {t0}, {t0}, {t1}
        s_mul_i32 {t0}, {t0}, 3
        s_min_u32 {t1}, {sW}, 2
        s_add_u32 {t0}, {t0}, {t1}
        s_lshl_b32 {sEPB}, {t0}, 10
        s_and_b32 {t0}, {sH}, 15
        s_lshl_b32 {t0}, {t0}, 6
        s_add_u32 {sEPB}, {sEPB}, {t0}
        s_sub_u32 {t0}, {sW}, {t1}
        s_lshl_b32 {t0}, {t0}, 5
        s_add_u32 {sEPB}, {sEPB}, {t0}
        s_add_u32 {sEPB}, {sEPB}, {W_E}
        s_and_b32 {t1}, {sW}, 1
        s_lshr_b32 {t2}, {sW}, 1
        s_lshl_b32 {t0}, {sCB}, 1
        s_add_u32 {t0}, {t0}, {t1}
        s_mul_i32 {sEG}, {t0}, 6144
        s_add_u32 {sEG}, {sEG}, {W_E}
        s_lshl_b32 {sPO}, {sCU}, 13
        s_lshl_b32 {t0}, {sW}, 11
        s_add_u32 {sPO}, {sPO}, {t0}
        s_add_u32 {sPO}, {sPO}, {W_P}
        s_lshl_b32 {t0}, {t1}, 6
        s_lshl_b32 {t3}, {sCB}, 1
        s_add_u32 {t0}, {t0}, {t3}
        s_add_u32 {t0}, {t0}, {t2}
        s_lshl_b32 {t0}, {t0}, 6
        s_add_u32 {t0}, {t0}, {sKB}
        s_mul_i32 {sFP}, {t0}, 384
        s_add_u32 {sFP}, {sFP}, {W_F}
        s_lshr_b32 {t0}, {sH}, 1
        s_lshl_b32 {t0}, {t0}, 3
        s_add_u32 {t0}, {t0}, {sS}
        s_mul_i32 {sFG}, {t0}, 24576
        s_and_b32 {t0}, {sH}, 1
        s_lshl_b32 {t0}, {t0}, 6
        s_add_u32 {sFG}, {sFG}, {t0}
        s_lshl_b32 {t0}, {sW}, 7
        s_add_u32 {sFG}, {sFG}, {t0}
        s_add_u32 {sFG}, {sFG}, {W_F}
        s_lshl_b32 {sFSP}, {sCU}, 8
        s_lshl_b32 {t0}, {t1}, 7
        s_add_u32 {sFSP}, {sFSP}, {t0}
        s_mul_i32 {t0}, {t2}, {OOB}
        s_add_u32 {sFSP}, {sFSP}, {t0}
        s_add_u32 {sFSP}, {sFSP}, {W_FS}
        s_lshr_b32 {t0}, {sS}, 1
        s_lshl_b32 {sFSG}, {t0}, 8
        s_lshl_b32 {t0}, {sH}, 3
        s_add_u32 {sFSG}, {sFSG}, {t0}
        s_add_u32 {sFSG}, {sFSG}, {W_FS}
        v_lshlrev_b32 v1, 2, v0
        v_min_u32 v1, 156, v1
        v_add_u32 v1, {L_ONES}, v1
        v_mov_b32 v2, 0x3f803f80
        v_mov_b32 v3, 0
        ds_write_b32 v1, v2
        ds_write_b32 v1, v3 offset:160
        v_mov_b32 v1, {L_FLAG}
        ds_write_b32 v1, v3
        """)
        self.q_pre('wq')
        self.emit(self.tr192_addr(42, 3))
        self.vwait('x')
        a(f'ds_write_b16 v55, v20\ns_waitcnt lgkmcnt(0)\ns_barrier\ns_add_u32 {sEP}, {sEP}, 1')
        for k in range(4):
            a(f's_lshl_b32 {u0}, {sW}, 1\ns_lshl_b32 {u1}, {sW}, 2\ns_sub_u32 {u1}, {u1}, 4\ns_cmp_lt_u32 {sW}, 2\ns_cselect_b32 {u0}, {u0}, {u1}\ns_add_u32 {u0}, {u0}, {k}')
            self.tile_addr(43, 42, u0, L_WO)
            b = int(self.WQB_[k][2:5])
            for u in range(4): a(f'ds_read_b64_tr_b16 a[{b+2*u}:{b+2*u+1}], v43 offset:{2*u*3072}')
            a(f'ds_read_b64_tr_b16 {self.WQT_[k]}, v43 offset:{8*3072}')
        self.emit(self.x_stats()[:3])
        a('s_waitcnt lgkmcnt(0)')

        a.label('L_top')
        self.stamp('top')
        self.stage_q('wq')
        self.stamp('q pub')
        with self.it0():
            a(f"""
            v_lshl_add_u32 v2, v0, 3, {sS}
            s_lshl_b32 {u0}, {sH}, 3
            v_and_b32 v3, 7, v0
            v_add_u32 v3, {u0}, v3
            v_cmp_gt_u32 vcc, 32, v0
            s_mov_b32 {t6}, {W_FL}
            v_cndmask_b32 v2, v3, v2, vcc
            v_lshlrev_b32 v2, 7, v2
            """)
            self.row192_addr(self.SR, self.SR + 1, 1, sRING)
            st = {'flag': False}
            def cbA(U):
                if not st['flag'] and 'st' not in self.vm['3']:
                    st['flag'] = True
                    with self.skip(f's_cmp_lg_u32 {sW}, 3'):
                        a(f"""
                        v_mov_b32 v1, {sEP}
                        s_lshl_b32 {u0}, {sCU}, 7
                        v_mov_b32 v3, {u0}
                        s_mov_b64 exec, {ML0}
                        buffer_store_dword v1, v3, {SRDW}, {t6} offen sc1
                        s_mov_b64 exec, -1
                        """)
                        self.vissue('fl', '3')
                    print('flag after unit', U)
                if U == cfg.c1:
                    assert st['flag']
                    with self.skip(f's_cmp_eq_u32 {sW}, 3'):
                        a(f'buffer_load_dword v6, v2, {SRDW}, {t6} offen sc1'); self.vissue('cnt', 'g')
            self.kv_pump(cfg.c2, cb=cbA, lim=cfg.rB)
            lp, ld = a.newlabel('Lcnt'), a.newlabel('Lcntok')
            a(f's_cmp_eq_u32 {sW}, 3\ns_cbranch_scc1 {ld}')
            self.vwait('cnt', 'g')
            a(f's_mov_b32 {sCNT}, 0'); a.label(lp)
            a(f"""
            v_cmp_ne_u32 vcc, {sEP}, v6
            s_cbranch_vccz {ld}
            s_sleep 8
            buffer_load_dword v6, v2, {SRDW}, {t6} offen sc1
            s_add_u32 {sCNT}, {sCNT}, 1
            s_waitcnt vmcnt(0)
            s_cmp_lt_u32 {sCNT}, {sLIM}
            s_cbranch_scc1 {lp}
            s_mov_b32 {sLIM}, 0
            """)
            a.label(ld)
        def w3a():
            with self.skip(f's_cmp_lg_u32 {sIT}, 0'):
                self.rd, self.iss = self.kvsave
                self.kv_pump(cfg.c3, '3', lim=cfg.rB); self.kv_force(cfg.rB, '3')
                if 'cs' not in cfg.skip and cfg.early < 1:
                    self.clear_boxes([B_QB, B_G, B_CB], 4)
                    self.clear_cross_small(4, [98304]); self.clear_EFS(4)
            self.att_pre0(); self.zero_S()
        self.split3(lambda: self.gather_a(vCSA, True, self.att_pre), w3a)
        self.stamp("a' done")
        self.att_qk()
        self.stamp('qk done')
        with self.it0():
            a(f'v_readfirstlane_b32 {sFAST}, v14')
            assert cfg.rB >= 8 and not cfg.shadow0
            self.SR = 12; self.SV = 54
            self.v_raddr(2); self.voff192(54, 2, 384)
            self.kv_pump(cfg.c4); self.kv_force(11)
            a('s_waitcnt lgkmcnt(0)')
        def hook():
            def h0():
                self.SR = 4; self.SV = 8
                self.v_raddr(9); self.voff192(8, 9, 384)
                self.kv_pump(15)
                if cfg.dyn:
                    a(f's_mov_b32 {self.sIDX}, 0')
                with self.skip(f's_cmp_lg_u32 {sW}, 3'):
                    a(f's_mov_b32 {t3}, {t0}'); self.touch([B_O], 5, False); a(f's_mov_b32 {t0}, {t3}')
                self.seg('v0', 10, 11); self.kv_flush(); self.seg('v1', 10, 11); self.kv_force(15)
                a('s_waitcnt lgkmcnt(0)')
                assert 'clr' not in self.vm['3'] and 'dr' not in self.vm['3'] and 'dr' not in self.vm['g']
            with self.it0(): h0()
            self.stamp('v ready')
        self.att_pv(hook)
        self.stamp('b pub')
        if cfg.seg.get('b1'):
            with self.it0(): self.seg('b1', 12, 13)
        if cfg.lt:
            a('s_waitcnt vmcnt(0)\ns_barrier'); self.stamp('all'); a(f's_mov_b32 {sSTI}, {{NST}}\ns_branch L_exit')
        def gb():
            self.gather_b(lambda: self.o_pre(L_WO, True)); self.raise_flag(6, 7); self.stamp('b done')
            assert 'wo' not in self.vm['g']
            self.o_g(True)
        def w3b():
            with self.skip(f's_cmp_lg_u32 {sIT}, 0'):
                if cfg.dyn:
                    self.touch([B_QB, B_CB], 8, True)
                    self.stream(need='zero', upto='wob', flag=self.nflag); self.vdrain('3')
                else:
                    self.seg('b2', 1, 2, '3', cap=False); self.vwait('wo', '3')
            self.o_pre(L_WO, True)
            with self.it1(): a('s_waitcnt vmcnt(2)')
            self.o_w3(True)
            with self.skip(f's_cmp_lg_u32 {sIT}, 0'):
                if not cfg.shadow0 and cfg.early < 2 and not any(x[0] == 'clr' for v in cfg.seg.values() for x in v):
                    self.clr_regs(8); self.clear_P(8); self.clear_F(8)
                if cfg.early < 1:
                    self.clear_boxes([IT_H + B_QA, IT_H + B_O, IT_H + B_QB, IT_H + B_G], 8, 'clrF')
                    self.clear_cross_small(8, [2 * 98304, 3 * 98304], 'clrF'); self.clear_EFS(8, 1, 'clrF')
                if cfg.big0:
                    self.vcap(36, '3'); self.clear_P(8, 1, 'clrF'); self.clear_F(8, 1)
            with self.it1(): self.touch([B_QB, B_G], 8, True)
        self.split3(gb, w3b)
        self.vissue('st', 'g')
        self.stamp('c pub')
        if cfg.seg.get('c1'):
            with self.it0(): self.seg('c1', 14, 15)
        self.q_pre('wqb')
        with self.it1(): self.q_reads()
        def w3c():
            def f0():
                if cfg.dyn: return self.stream(need='wqb', upto='wob', flag=self.nflag)
                self.seg('c2', 6, 7, '3', cap=False); self.vwait('clr', '3'); self.vwait('wqb', '3')
                if self.uk_staged(): self.vwait('wuk', '3')
                self.touch([B_QB, B_CB], 8, True)
            with self.it0(): f0()
        def gc():
            self.gather_c('c2'); self.raise_flag(8, 9)
        self.split3(gc, w3c)
        assert 'wqb' not in self.vm['g'] and 'clr' not in self.vm['g'] and not (self.uk_staged() and 'wuk' in self.vm['g'])
        a('s_waitcnt lgkmcnt(0)\ns_barrier')
        self.stamp('c done')
        self.stage_q('wqb')
        self.stamp('qb pub')
        if cfg.seg.get('a1') or self.uk_staged():
            with self.it0():
                if self.uk_staged(): self.uk_copy(bool(cfg.seg.get('a1')))
                self.seg('a1', 6, 7)
        def w3a2():
            self.abs_pre()
            if cfg.dyn:
                with self.it0(): self.stream(need='wuk', upto='wob', flag=self.nflag)
            else: a('s_waitcnt vmcnt(0)')
            self.vdrain('3')
        def ga2():
            self.gather_a(vCSB, False, self.abs_pre); self.raise_flag(6, 7)
        self.split3(ga2, w3a2)
        assert not self.vm['g']
        if cfg.seg.get('a3'):
            with self.it0(): self.seg('a3', 6, 7, cap=False)
        self.stamp("a'b done")
        self.stage_abs()
        self.stamp('e pub')
        if cfg.seg.get('e1'):
            with self.it0(): self.seg('e1', 6, 7, cap=False)
        self.stage_sc()
        self.stamp('p pub')
        self.stage_ctx()
        self.stamp('f pub')
        if cfg.seg.get('f1'):
            with self.it0(): self.seg('f1', 16, 17, cap=False)
        self.uv_pre()
        def w3f():
            with self.skip(f's_cmp_lg_u32 {sIT}, 0'):
                self.touch([B_G, IT_H + B_QA, IT_H + B_O], 16, False)
                if cfg.dyn: self.stream(need='wuv')
                a('s_waitcnt vmcnt(0)')
            a('s_waitcnt lgkmcnt(0)')
            self.uv_wread(8, 60)
        self.split3(self.gather_f, w3f)
        self.stage_uv()
        self.stamp('g pub')
        def gg():
            self.gather_g(lambda: self.o_pre(L_WOB, False)); self.stamp('g done'); self.o_g(False)
        def w3g():
            self.o_pre(L_WOB, False); self.o_w3(False)
        self.split3(gg, w3g)
        self.stamp('c2 pub')
        with self.skip(f's_cmp_eq_u32 {sIT}, 0'):
            a(f's_add_u32 {u0}, {sW3O}, {sH}\ns_cmp_lg_u32 {u0}, 0\ns_cbranch_scc1 L_exit')
        a(f"""
        s_add_u32 {sHB}, {sHB}, {IT_H}
        s_add_u32 {sEPB}, {sEPB}, 65536
        s_add_u32 {sEG}, {sEG}, 65536
        s_add_u32 {sPO}, {sPO}, {2*MiB}
        s_add_u32 {sFP}, {sFP}, {3*MiB}
        s_add_u32 {sFG}, {sFG}, {3*MiB}
        s_add_u32 {sFSP}, {sFSP}, 65536
        s_add_u32 {sFSG}, {sFSG}, 65536
        """)
        self.q_pre('wq')
        self.srd('out')
        self.split3(lambda: self.gather_c(None), lambda: None)
        a(f"""
        s_cmp_lg_u32 {sIT}, 0
        s_cbranch_scc1 L_out
        s_mov_b32 {sIT}, 1
        s_mov_b32 {sSTI}, {{NST}}
        s_waitcnt lgkmcnt(0)
        s_barrier
        s_branch L_top
        """)
        a.label('L_out')
        a(f"""
        s_mul_i32 {t0}, {sS}, 160
        buffer_store_short v20, v60, {SRDT}, {t0} offen
        s_add_u32 {t0}, {sCU}, {sW}
        s_cmp_lg_u32 {t0}, 0
        s_cbranch_scc1 L_exit
        v_mov_b32 v1, {sEP}
        v_mov_b32 v2, {W_EP}
        s_mov_b64 exec, {ML0}
        buffer_store_dword v1, v2, {SRDW}, 0 offen
        s_mov_b64 exec, -1
        """)
        a.label('L_exit')
        if cfg.stamps:
            self.stamp('end')
            a(f"""
            s_cmp_lg_u32 {sW}, 0
            s_cbranch_scc1 L_end
            s_lshl_b32 {t0}, s2, 8
            s_add_u32 {t0}, {t0}, 0x8000000
            v_lshl_add_u32 v1, v0, 2, {t0}
            global_store_dword v1, v63, s[90:91]
            """)
        a('s_branch L_end')
        for blk in self.side: a.items += blk
        if cfg.dyn: self.stream_sub()
        a.label('L_last'); a.label('L_end')
        txt = a.finalize().replace('{NST}', str(self.nstamp - 2))
        if 'st' in cfg.skip:
            txt = '\n'.join(('    s_nop 0' if l.strip().startswith('buffer_store') else l) for l in txt.split('\n'))
        def fix(l):
            if l.strip().startswith('buffer_load') and ' nt' in l:
                kv = SRDK in l or SRDV in l
                if (kv and not cfg.ntkv) or (not kv and not cfg.ntw): return l.replace(' nt', '')
            return l
        txt = '\n'.join(fix(l) for l in txt.split('\n'))
        if 'nt' in cfg.skip:
            txt = '\n'.join((l + ' nt' if l.strip().startswith('buffer_store') and l.endswith('sc1') else l) for l in txt.split('\n'))
        if 'ld' in cfg.skip:
            txt = '\n'.join(('    s_nop 0' if l.strip().startswith('buffer_load') and ' sc1' in l else l) for l in txt.split('\n'))
            txt = txt.replace('s_cbranch_vccnz', 's_cbranch_execz').replace('s_cbranch_vccz', 's_cbranch_execnz')
        return wrap(txt, 256, 256, LDS_BYTES)

if __name__ == '__main__':
    import argparse, json
    ap = argparse.ArgumentParser()
    ap.add_argument('-o', default='cdna_kernels/' + NAME + '.s')
    ap.add_argument('--stamps', action='store_true')
    ap.add_argument('--slow', action='store_true')
    ap.add_argument('--set', action='append', default=[])
    args = ap.parse_args()
    cfg = Cfg(); cfg.stamps = args.stamps; cfg.force_slow = args.slow
    for kv in args.set:
        k, v = kv.split('=', 1)
        if '.' in k:
            d, kk = k.split('.'); dd = dict(getattr(cfg, d)); dd[kk] = eval(v); setattr(cfg, d, dd)
        else: setattr(cfg, k, eval(v))
    g = Gen(cfg); txt = g.build()
    open(args.o, 'w').write(txt)
    if cfg.stamps: json.dump(g.names, open(args.o + '.names.json', 'w'))
    print('wrote', args.o, len(txt), 'bytes')
```

```python
import re

NAME = 'interleave_layers__gqa_block_cached__compressed_kv_cla__decode'

_REG = re.compile(r'^(-|abs\()?([vas])(\d+)\)?$')
_RNG = re.compile(r'^(-)?([vas])\[(\d+):(\d+)\]$')

def regs_of(op):
    op = op.strip()
    m = _REG.match(op)
    if m:
        return {(m.group(2), int(m.group(3)))}
    m = _RNG.match(op)
    if m:
        return {(m.group(2), i) for i in range(int(m.group(3)), int(m.group(4)) + 1)}
    if op in ('vcc', 'vcc_lo', 'vcc_hi'):
        return {('s', 'vcc')}
    if op in ('exec', 'exec_lo', 'exec_hi'):
        return {('s', 'exec')}
    if op == 'm0':
        return {('s', 'm0')}
    return set()

TRANS = ('v_exp_f32', 'v_log_f32', 'v_rcp_f32', 'v_rsq_f32', 'v_sqrt_f32', 'v_sin_f32', 'v_cos_f32')

class Ins:
    __slots__ = ('text', 'mn', 'ops', 'kind', 'dst', 'src', 'dpp', 'srcC', 'states', 'wide_store', 'lds_dma')
    def __init__(self, text):
        self.text = text
        t = text.split(';')[0].strip()
        parts = t.split(None, 1)
        self.mn = parts[0]
        rest = parts[1] if len(parts) > 1 else ''
        ops = []; cur = ''; depth = 0
        for ch in rest:
            if ch == '[': depth += 1
            if ch == ']': depth -= 1
            if ch == ',' and depth == 0:
                ops.append(cur.strip()); cur = ''
            else:
                cur += ch
        if cur.strip(): ops.append(cur.strip())
        mods = ''
        if ops:
            last = ops[-1].split(None, 1)
            ops[-1] = last[0]
            mods = last[1] if len(last) > 1 else ''
        self.ops = ops
        mn = self.mn
        self.dpp = mn.endswith('_dpp') or 'quad_perm' in mods or 'row_' in mods
        self.dst = set(); self.src = set(); self.srcC = set()
        self.states = 1
        self.wide_store = False; self.lds_dma = False
        R = [regs_of(o) for o in ops]
        if mn == 's_nop':
            self.kind = 'nop'; self.states = int(ops[0], 0) + 1
        elif mn.startswith('v_smfmac'):
            self.kind = 'mfma'; self.dst = R[0]; self.src = R[1] | R[2] | R[3]; self.srcC = R[0]
        elif mn.startswith('v_mfma'):
            self.kind = 'mfma'; self.dst = R[0]; self.src = R[1] | R[2]; self.srcC = R[3] if len(R) > 3 else set()
        elif mn.startswith('v_cmp'):
            self.kind = 'valu'; self.dst = R[0]; self.src = set().union(*R[1:])
        elif mn.startswith('v_readlane') or mn.startswith('v_readfirstlane'):
            self.kind = 'rdlane'; self.dst = R[0]; self.src = set().union(*R[1:])
        elif mn.startswith('v_permlane') or mn.startswith('v_swap'):
            self.kind = 'perml' if mn.startswith('v_permlane') else 'valu'
            self.dst = R[0] | R[1]; self.src = R[0] | R[1]
        elif mn.startswith('v_'):
            self.kind = 'trans' if mn.replace('_e32', '').replace('_e64', '') in TRANS else 'valu'
            self.dst = R[0]; self.src = set().union(*R[1:]) if len(R) > 1 else set()
            if mn.startswith(('v_fmac', 'v_dot2c', 'v_writelane')):
                self.src |= R[0]
            if mn.startswith('v_cndmask') and len(ops) == 3:
                self.src |= {('s', 'vcc')}
        elif mn.startswith('ds_read') or mn.startswith('ds_bpermute') or mn.startswith('ds_swizzle'):
            self.kind = 'mem'; self.dst = R[0]; self.src = set().union(*R[1:])
        elif mn.startswith('ds_'):
            self.kind = 'mem'; self.src = set().union(*R)
        elif mn.startswith(('buffer_load', 'global_load')):
            self.kind = 'vmem'
            if ' lds' in (' ' + mods) or 'load_lds' in mn:
                self.lds_dma = True; self.src = set().union(*R)
            else:
                self.dst = R[0]; self.src = set().union(*R[1:])
        elif mn.startswith(('buffer_store', 'global_store', 'buffer_atomic', 'global_atomic')):
            self.kind = 'vmem'; self.src = set().union(*R)
            if 'x4' in mn or 'x3' in mn:
                self.wide_store = True
                self.srcC = R[0] if mn.startswith('buffer') else R[1]
        elif mn.startswith('s_'):
            self.kind = 'salu'
            if mn.startswith(('s_setpc', 's_cmp', 's_cbranch', 's_branch', 's_waitcnt', 's_barrier', 's_sleep', 's_setprio', 's_endpgm', 's_bitcmp')):
                self.src = set().union(*R) if R else set()
            else:
                self.dst = R[0] if R else set(); self.src = set().union(*R[1:]) if len(R) > 1 else set()
                if 'saveexec' in mn: self.dst |= {('s', 'exec')}
        else:
            raise ValueError('unknown instr ' + text)

def isv(regs): return {r for r in regs if r[0] in 'va'}
def iss(regs): return {r for r in regs if r[0] == 's'}

def need(p, c):
    n = 0
    pv = p.kind in ('valu', 'trans', 'perml', 'rdlane')
    cv = c.kind in ('valu', 'trans', 'perml', 'rdlane')
    if pv:
        vd = isv(p.dst); sd = iss(p.dst)
        if c.kind == 'mfma' and vd & (c.src | c.srcC): n = max(n, 2)
        if cv and c.dpp and vd & c.src: n = max(n, 2)
        if c.kind == 'perml' and vd & c.src: n = max(n, 2)
        if c.kind == 'rdlane' and vd & c.src: n = max(n, 1)
        if p.kind == 'trans' and cv and vd & c.src: n = max(n, 1)
        if p.kind == 'trans' and c.kind in ('mem', 'vmem') and vd & c.src: n = max(n, 1)
        if sd:
            if cv and sd & c.src:
                n = max(n, 4 if c.mn.startswith(('v_readlane', 'v_writelane')) else 2)
            if c.kind == 'vmem' and sd & c.src: n = max(n, 5)
            if c.kind == 'salu' and sd & c.src: n = max(n, 1)
    if p.mn.startswith('v_dot'):
        if c.mn == p.mn:
            if p.dst & (c.src - c.dst): n = max(n, 3)
        elif c.kind not in ('salu', 'nop') and p.dst & (c.src | c.dst | c.srcC): n = max(n, 3)
    if p.kind == 'mfma':
        if c.kind == 'mfma':
            if p.dst & c.src: n = max(n, 8)
            if p.dst & c.srcC:
                if not (p.dst == c.srcC and p.mn == c.mn): n = max(n, 6)
            if p.dst & c.dst and not (p.dst == c.srcC and p.mn == c.mn): n = max(n, 8)
        elif c.kind != 'salu' and c.kind != 'nop':
            if p.dst & (c.src | c.dst): n = max(n, 8)
        if cv and p.srcC & c.dst: n = max(n, 3)
    if p.kind == 'salu' and ('s', 'm0') in p.dst and c.lds_dma: n = max(n, 1)
    if p.kind == 'vmem' and p.wide_store and p.srcC & c.dst: n = max(n, 2)
    return n

class Asm:
    def __init__(self):
        self.items = []
        self.nl = 0
    def __call__(self, s):
        for l in s.strip('\n').split('\n'):
            l = l.strip()
            if not l: continue
            if l.startswith(';'):
                self.items.append(('comment', l)); continue
            if l.endswith(':'):
                self.items.append(('label', l[:-1])); continue
            self.items.append(Ins(l))
    def label(self, name): self.items.append(('label', name))
    def newlabel(self, p='L'):
        self.nl += 1
        return f'{p}_{self.nl}'
    def raw(self, text): self.items.append(('raw', text))
    def finalize(self):
        out = []
        hist = []
        WIN = 9
        def pad(n):
            while n > 0:
                k = min(n, 16)
                i = Ins(f's_nop {k-1}')
                out.append(i); advance(i); n -= k
        def advance(ins):
            nonlocal hist
            hist = [(p, d + ins.states) for (p, d) in hist if d + ins.states < WIN]
            if ins.kind != 'nop': hist.append((ins, 0))
        def worst(p):
            if p.kind == 'mfma': return 8
            if p.mn.startswith('v_dot'): return 3
            if p.kind in ('valu', 'trans', 'perml', 'rdlane'):
                return 5 if (iss(p.dst) - {('s', 'vcc')}) else 2
            if p.kind == 'vmem' and p.wide_store: return 2
            if p.kind == 'salu' and ('s', 'm0') in p.dst: return 1
            return 0
        labpos = {it[1]: i for i, it in enumerate(self.items) if isinstance(it, tuple) and it[0] == 'label'}
        def target_need(label):
            n = 0; dist = 1
            for t in self.items[labpos[label] + 1:]:
                if isinstance(t, tuple): continue
                if dist >= WIN: break
                if t.mn.startswith(('s_cbranch', 's_branch')):
                    n = max([n] + [worst(p) - d - dist - 1 for (p, d) in hist])
                    if t.mn.startswith('s_branch'): break
                n = max([n] + [need(p, t) - d - dist for (p, d) in hist])
                dist += t.states
            return n
        for it in self.items:
            if isinstance(it, tuple):
                out.append(it); continue
            n = max([need(p, it) - d for (p, d) in hist] + [0])
            if it.mn.startswith(('s_cbranch', 's_branch')):
                n = max(n, target_need(it.ops[0]))
            pad(n)
            out.append(it); advance(it)
            if it.mn in ('s_branch', 's_setpc_b64'): hist = []
        txt = []
        for it in out:
            if isinstance(it, tuple):
                txt.append(f'{it[1]}:' if it[0] == 'label' else ('    ' + it[1]))
            else:
                txt.append('    ' + it.text)
        return '\n'.join(txt) + '\n'

HEADER = open('cdna_kernels/' + NAME + '.s.ref').read().split('; Override launch')[0] if __import__('os').path.exists('cdna_kernels/' + NAME + '.s.ref') else ''

DOC = """;
;  * GEMV steps run on v_smfmac (vector split over even/odd rows of the sparse operand).
;    The very first hand-off is tagged with an epoch read from d_ws. Groups whose members report the same
"""

def wrap(body, grid, block, lds, nvgpr=512, accum=256, nsgpr=102):
    return f"""{HEADER}; @launch grid=({grid},1,1) block=({block},1,1) lds={lds}
{DOC}.amdgcn_target "amdgcn-amd-amdhsa--gfx950"
.text
.globl {NAME}_kernel
.p2align 8
.type {NAME}_kernel,@function
{NAME}_kernel:
{body}    s_endpgm
.section .rodata,"a"
.p2align 6
.amdhsa_kernel {NAME}_kernel
  .amdhsa_next_free_vgpr {nvgpr}
  .amdhsa_next_free_sgpr {nsgpr}
  .amdhsa_accum_offset {accum}
  .amdhsa_group_segment_fixed_size 0
  .amdhsa_kernarg_size 112
  .amdhsa_user_sgpr_count 2
  .amdhsa_user_sgpr_kernarg_segment_ptr 1
  .amdhsa_system_sgpr_workgroup_id_x 1
.end_amdhsa_kernel
"""
```

```python
import sys, math, struct
sys.path.insert(0, 'dev')
from gasm import *

def f2u(x): return struct.unpack('<I', struct.pack('<f', x))[0]

class Cfg:
    stamps = False
    force_slow = False
    dly = dict(a=4, b=5, g=5, p=7, c=8, c2=11, e=10, f=17, f2=1)
    warm_code = False
    cap = 8
    cap2 = 8
    lim = 0x100000
    noclr1 = False
    fine = ()
    touch = True
    big0 = False
    ntkv = True
    ntw = True
    ride = 16
    cap3x = 1
    depth = 4
    early = 1
    lt = False
    skip = ()
    shadow0 = False
    plain = ()
    gate = None
    dyn = False
    cap3 = 18
    bh = dict(e=6, p=6)
    pre3 = dict(e=6)
    early3 = 12
    nspec = 6
    only = ()
    c1 = 8; c2 = 10; c3 = 12; rB = 9; c4 = 13
    seg = dict(v0=[('wo', 0, 3)], v1=[('wo', 3, 8)], b1=[('wqb', 0, 8)], b2=[('wuk', 0, 6)], c1=[('wuk', 6, 9), ('ckv', 0, 6), ('wob', 0, 2)],
               c2=[('wob', 2, 8)], e1=[('wuv', 0, 9)])

sFAST = 's3'
sCU, sH, sS, sKB, sCB, sW, sIT, sKV = 's4', 's5', 's6', 's7', 's8', 's9', 's10', 's11'
SRDK, SRDV, SRDW, SRDT = 's[12:15]', 's[16:19]', 's[20:23]', 's[24:27]'
t0, t1, t2, t3, t4, t5, t6, t7 = 's28', 's29', 's30', 's31', 's32', 's33', 's34', 's35'
M48, M16, ML0, M60, M32, MXV, MQ, MABS = 's[36:37]', 's[38:39]', 's[40:41]', 's[42:43]', 's[50:51]', 's[58:59]', 's[60:61]', 's[92:93]'
sC, sYP, sYG, sLIM, sCNT, sSTI = 's44', 's45', 's46', 's47', 's48', 's49'
sHB, sACC, u0, u1, u2, sRING, sEP = 's52', 's53', 's54', 's55', 's56', 's57', 's62'
sEPB, sEG, sPO, sFP, sFG, sFSP, sFSG = 's63', 's94', 's95', 's98', 's99', 's100', 's101'
sYINC = 98304
sUH, sW3O = 's0', 's1'
P = {n: 64 + 2 * i for i, n in enumerate(['x', 'k', 'v', 'wq', 'wo', 'bx', 'ckv', 'wqb', 'wuk', 'wuv', 'wob', 'out', 'dbg', 'ws'])}
SZ = dict(x=1280, k=50331648, v=50331648, wq=7864320, wo=7864320, ckv=6291456, wqb=7864320, wuk=9437184, wuv=9437184, wob=7864320, out=1280)

L_WO, L_WQB, L_WOB, L_WUV, L_CKV, L_SCR = 0, 30720, 61440, 92160, 129024, 153600
L_SX = L_SCR; L_OW = L_SCR; L_PB = L_SCR + 4096; L_ML = L_SCR + 5120
L_XS = L_SCR + 8192; L_ONES = L_XS + 192; L_ZERO = L_ONES + 160
L_QS = L_ZERO + 160; L_US = L_QS + 384; L_SCAL = L_US + 192; L_JUNK = L_SCAL + 32; L_FLAG = L_SCAL + 16
LDS_BYTES = 163840

KiB, MiB = 1 << 10, 1 << 20
HSTR = 65536; B_QA, B_O, B_QB, B_G, B_CA, B_CB = 0, 8192, 16384, 24576, 32768, 40960
W_H = 0; IT_H = 2 * MiB
W_Y = 4 * MiB
W_E = W_Y + 512 * KiB
W_FS = W_E + 128 * KiB
W_FL = W_FS + 128 * KiB
W_EP = W_FL + 64 * KiB
W_P = 5 * MiB
W_F = 9 * MiB
WS_BYTES = 16 * MiB
OOB = 64 * MiB
SCALE = 192 ** -0.5 * math.log2(math.e)
DP = 'row_mask:0xf bank_mask:0xf'
vCSA, vCSB = 61, 62
SK = 44
MAP_TR_SA = {5: 6, 3: 5, 1: 4, 2: 3, 4: 2, 0: 1}
MAP_NAT_SA = {5: 6, 4: 5, 1: 4, 3: 3, 2: 2, 0: 1}

class Gen:
    def __init__(self, cfg):
        self.cfg = cfg
        self.a = Asm()
        self.vm = {'g': [], '3': []}
        self.nstamp = 0; self.names = []; self.side = []; self.npoll = 0; self.nflag = 0
        self.SR = 46; self.SV = 45; self.rd = 0; self.iss = 2

    def vissue(self, tag, who='g3'):
        for w in who: self.vm[w].append(tag)
    def vwait(self, tag, who='g3'):
        n = 63; found = False
        for w in who:
            idx = [i for i, t in enumerate(self.vm[w]) if t == tag]
            if idx: found = True; n = min(n, len(self.vm[w]) - 1 - idx[-1])
        if not found: return
        self.a(f's_waitcnt vmcnt({n})')
        for w in who: self.vm[w] = self.vm[w][max(0, len(self.vm[w]) - n):] if n else []
    def vdrain(self, who='g'):
        for w in who: self.vm[w] = []
    SLOW = ('st', 'clr', 'clrF', 'fl', 'cnt', 'pl')
    def capn(self, n, w):
        q = self.vm[w]
        if w == '3': n += self.cfg.cap3x
        for i in range(max(0, len(q) - self.cfg.ride), len(q)):
            if q[i] in self.SLOW:
                while i > 0 and q[i - 1] in self.SLOW: i -= 1
                return max(n, len(q) - i)
        return n
    def vcap(self, n, who='g3'):
        def one(w, m):
            if len(self.vm[w]) > m:
                self.a(f's_waitcnt vmcnt({m})'); self.vm[w] = self.vm[w][len(self.vm[w]) - m:]
        ns = {w: self.capn(n, w) for w in who}
        if len(who) == 1: return one(who, ns[who])
        hi, lo = max(ns.values()), min(ns.values())
        wl = 'g' if ns['g'] == lo else '3'
        if hi != lo and len(self.vm[wl]) > lo:
            with self.skip(f's_cmp_{"eq" if wl == "g" else "lg"}_u32 {sW}, 3'): one(wl, lo)
        if max(len(self.vm[w]) for w in who) > hi:
            self.a(f's_waitcnt vmcnt({hi})')
            for w in who: self.vm[w] = self.vm[w][max(0, len(self.vm[w]) - hi):]
    def vwait_split(self, tag):
        if tag in self.vm['g'] or tag in self.vm['3']:
            self.split3(lambda: self.vwait(tag, 'g'), lambda: self.vwait(tag, '3'))

    def stamp(self, name=''):
        gt = self.cfg.gate
        if gt and name == 'start': self.a('s_memrealtime s[96:97]\ns_waitcnt lgkmcnt(0)\ns_mov_b32 s2, s96')
        if gt and name == gt[0]:
            l = self.a.newlabel('Lgate')
            self.a(f'{l}:\ns_memrealtime s[96:97]\ns_waitcnt lgkmcnt(0)\ns_sub_u32 s96, s96, s2\ns_cmp_lt_u32 s96, {gt[1]}\ns_cbranch_scc1 {l}')
        if not self.cfg.stamps or (self.cfg.only and name not in self.cfg.only): return
        self.a(f's_memrealtime s[96:97]\ns_add_u32 m0, {sSTI}, {self.nstamp}\ns_waitcnt lgkmcnt(0)\nv_writelane_b32 v63, s96, m0')
        self.names.append(name); self.nstamp += 1

    def srd(self, name, dst=24, nbytes=None):
        p = P[name]
        self.a(f's_mov_b32 s{dst}, s{p}\ns_mov_b32 s{dst+1}, s{p+1}\ns_mov_b32 s{dst+2}, {nbytes if nbytes is not None else SZ[name]}\ns_mov_b32 s{dst+3}, 0x00020000')

    def aside(self, label, ret=None):
        g = self
        class C:
            def __enter__(s):
                s.save = g.a.items; g.a.items = []; g.a.label(label)
            def __exit__(s, *e):
                if ret: g.a(f's_branch {ret}')
                g.side.append(g.a.items); g.a.items = s.save
        return C()
    def ool(self, take_if):
        lx, lr = self.a.newlabel('Lx'), self.a.newlabel('Lr')
        self.a(f'{take_if}\ns_cbranch_scc1 {lx}'); self.a.label(lr)
        return self.aside(lx, lr)
    def it0(self): return self.ool(f's_cmp_eq_u32 {sIT}, 0')
    def w3only(self): return self.ool(f's_cmp_eq_u32 {sW}, 3')
    def skip(self, skip_if):
        g = self
        class C:
            def __enter__(s): s.l = g.a.newlabel('Ls'); g.a(f'{skip_if}\ns_cbranch_scc1 {s.l}')
            def __exit__(s, *e): g.a.label(s.l)
        return C()
    def it1(self): return self.skip(f's_cmp_eq_u32 {sIT}, 0')
    def either(self, take_if, main, alt):
        lx, lr = self.a.newlabel('Lx'), self.a.newlabel('Lr')
        self.a(f'{take_if}\ns_cbranch_scc1 {lx}')
        main()
        self.a.label(lr)
        with self.aside(lx, lr): alt()
    def split3(self, g, w3): self.either(f's_cmp_eq_u32 {sW}, 3', g, w3)
    def emit(self, lines):
        for l in lines: self.a(l)

    def bitperm(self, dst, src, mp, tmp, add=None):
        out = []; groups = {}
        for sb, db in mp.items(): groups.setdefault(db - sb, []).append(sb)
        first = True
        for sh, bits in sorted(groups.items()):
            mask = sum(1 << b for b in bits)
            out.append(f'v_and_b32 v{dst if first else tmp}, {mask}, v{src}')
            if first:
                if sh > 0: out.append(f'v_lshlrev_b32 v{dst}, {sh}, v{dst}')
                elif sh < 0: out.append(f'v_lshrrev_b32 v{dst}, {-sh}, v{dst}')
            elif sh >= 0: out.append(f'v_lshl_or_b32 v{dst}, v{tmp}, {sh}, v{dst}')
            else: out += [f'v_lshrrev_b32 v{tmp}, {-sh}, v{tmp}', f'v_or_b32 v{dst}, v{tmp}, v{dst}']
            first = False
        if add is not None: out.append(f'v_add_u32 v{dst}, {add}, v{dst}')
        return out

    def store_intra(self, lines, who='g3', tag='st', precmp=False):
        self.either('' if precmp else f's_cmp_eq_u32 {sFAST}, 0',
                    lambda: self.emit([l.format(sc='') for l in lines]), lambda: self.emit([l.format(sc=' sc1') for l in lines]))
        for l in lines:
            if l.startswith('buffer'): self.vissue(tag, who)

    def exact_poll(self, loads, regs, tmp):
        a = self.a
        lp, ld = a.newlabel('Lpoll'), a.newlabel('Lgot')
        a(f's_mov_b32 {sCNT}, 0'); a.label(lp)
        self.emit(loads); a('s_waitcnt vmcnt(0)')
        r = list(regs)
        a(f'v_max3_u32 v{tmp}, v{r[0]}, v{r[1]}, v{r[2]}'); r = r[3:]
        while r:
            if len(r) >= 2: a(f'v_max3_u32 v{tmp}, v{tmp}, v{r[0]}, v{r[1]}'); r = r[2:]
            else: a(f'v_max_u32 v{tmp}, v{tmp}, v{r[0]}'); r = r[1:]
        a(f"""
        v_cmp_eq_u32 vcc, -1, v{tmp}
        s_cbranch_vccz {ld}
        s_add_u32 {sCNT}, {sCNT}, 1
        s_cmp_lt_u32 {sCNT}, {sLIM}
        s_cbranch_scc1 {lp}
        s_mov_b32 {sLIM}, 0
        """)
        a.label(ld)

    def spec_poll(self, loads, regs, tmp, delay, compute, chk, mid=None, first0=None, redo=None, undo=None, who='g', redo_early=True, early=None):
        a = self.a
        lc, lok, lcold = a.newlabel('Lc'), a.newlabel('Lok'), a.newlabel('Lcold')
        pid = self.npoll; self.npoll += 1
        if delay: a(f's_sleep {delay}')
        fl = '' if pid in self.cfg.plain else ' sc1'
        self.emit([l.replace(' sc1', fl) for l in loads])
        loads = [l for l in loads if l.startswith('buffer')]
        for _ in loads: self.vissue('pl', who)
        a(f's_mov_b32 {sACC}, 0')
        if mid: mid()
        if first0:
            lx = a.newlabel('Lx')
            a(f's_cmp_eq_u32 {sIT}, 0\ns_cbranch_scc1 {lx}')
            with self.aside(lx, lc): first0(lc)
        else: self.vdrain(who)
        if pid in self.cfg.fine: self.stamp(f'mid{pid}')
        if early:
            lc2 = a.newlabel('Lc2')
            a(f's_waitcnt vmcnt({len(loads) - early[0]})')
            early[1]()
            a('s_waitcnt vmcnt(0)')
            with self.aside(lc, lc2): early[1]()
            a.label(lc2)
        else:
            a('s_waitcnt vmcnt(0)')
            if pid in self.cfg.fine: self.stamp(f'got{pid}')
            a.label(lc)
        compute()
        a(f'v_cmp_u_f32 vcc, v{chk[0]}, v{chk[1]}\ns_cbranch_vccnz {lcold}')
        a.label(lok)
        lex = a.newlabel('Lex')
        with self.aside(lcold, lc):
            a(f's_cmp_ge_u32 {sACC}, {self.cfg.nspec}\ns_cbranch_scc1 {lex}\ns_waitcnt lgkmcnt(0)')
            if undo: undo()
            self.emit(loads)
            a(f's_add_u32 {sACC}, {sACC}, 1')
            if self.cfg.stamps: a(f's_mul_i32 {sCNT}, {sACC}, {sIT}\nv_writelane_b32 v63, {sCNT}, {50+pid}')
            if redo_early and redo: redo()
            a('s_waitcnt vmcnt(0)')
            if redo and not redo_early: redo()
        with self.aside(lex, lc):
            a(f's_cmp_gt_u32 {sACC}, {self.cfg.nspec}\ns_cbranch_scc1 {lok}\ns_waitcnt lgkmcnt(0)')
            if undo: undo()
            self.exact_poll(loads, regs, tmp)
            if redo: redo()
            a(f's_add_u32 {sACC}, {sACC}, 1')

    def allrows(self, op, r, t):
        return [f'v_mov_b32 v{t}, v{r}', f'v_permlane16_swap_b32 v{r}, v{t}', f'{op} v{r}, v{r}, v{t}',
                f'v_mov_b32 v{t}, v{r}', f'v_permlane32_swap_b32 v{r}, v{t}', f'{op} v{r}, v{r}, v{t}']
    def idx(self, dst):
        return [f'v_and_b32 v{dst}, 1, v0', f'v_mul_u32_u24 v{dst}, 0xaaaa, v{dst}', f'v_or_b32 v{dst}, 0x4444, v{dst}']
    def merge(self, dst, accs, lo=0):
        return [f'v_add_f32_dpp v{dst}, v{r+lo}, v{r+lo+1} quad_perm:[0,1,2,3] row_mask:{1<<g:#x} bank_mask:0xf' for g, r in enumerate(accs)]
    def sa_addr(self, dst, tmp, base):
        o = [f'v_and_b32 v{tmp}, 1, v0', f'v_lshlrev_b32 v{tmp}, 4, v{tmp}', f'v_lshrrev_b32 v{dst}, 4, v0', f'v_lshl_add_u32 v{dst}, v{dst}, 5, v{tmp}']
        if base is not None: o.append(f'v_add_u32 v{dst}, {base}, v{dst}')
        return o
    def sum8(self, r):
        return [f'v_pk_add_f32 v[{r}:{r+1}], v[{r}:{r+1}], v[{r+2}:{r+3}]', f'v_pk_add_f32 v[{r+4}:{r+5}], v[{r+4}:{r+5}], v[{r+6}:{r+7}]',
                f'v_pk_add_f32 v[{r}:{r+1}], v[{r}:{r+1}], v[{r+4}:{r+5}]', f'v_add_f32 v{r}, v{r}, v{r+1}']
    def pub_voff(self, dst, tmp, scol):
        return [f'v_add_u32 v{dst}, {scol}, v0', f'v_lshrrev_b32 v{tmp}, 6, v{dst}', f'v_mul_u32_u24 v{tmp}, 448, v{tmp}',
                f's_lshl_b32 {u1}, {sS}, 8', f's_lshl_b32 {u2}, {sW}, 11', f's_sub_u32 {u1}, {u1}, {u2}', f's_add_u32 {u1}, {u1}, 8192',
                f'v_add_lshl_u32 v{dst}, v{dst}, v{tmp}, 2', f'v_add_u32 v{dst}, {u1}, v{dst}']

    G192 = dict(wq=(L_WO, 12288, 30), wqb=(L_WQB, 12288, 30), wuv=(L_WUV, 12288, 36), wuk=(L_WUV, 12288, 36), ckv=(L_CKV, 1536, 24))
    def base192(self, name, dst):
        if name in ('wq', 'wqb'): return f's_mul_i32 {dst}, {sS}, {80*12288}\ns_mul_i32 {u1}, {sH}, 384\ns_add_u32 {dst}, {dst}, {u1}'
        if name in ('wuv', 'wuk'): return f's_mul_i32 {dst}, {sS}, {96*12288}\ns_mul_i32 {u1}, {sH}, 384\ns_add_u32 {dst}, {dst}, {u1}'
        return f's_mul_i32 {dst}, {sKB}, {64*1536}\ns_mul_i32 {u1}, {sCB}, 384\ns_add_u32 {dst}, {dst}, {u1}'
    def voff192(self, dst, tmp, rstride):
        self.a(f"""
        v_lshrrev_b32 v{dst}, 3, v0
        v_and_b32 v{tmp}, 6, v{dst}
        v_xor_b32 v{tmp}, v{tmp}, v0
        v_and_b32 v{tmp}, 7, v{tmp}
        v_mul_u32_u24 v{dst}, {rstride}, v{dst}
        v_lshl_add_u32 v{dst}, v{tmp}, 4, v{dst}
        """)
    def dma192(self, name, i0, i1, va, vb, who, cap):
        a = self.a
        lds, rs, nblk = self.G192[name]
        self.srd(name); a(self.base192(name, u0)); self.voff192(va, vb, rs)
        if nblk % 12 == 0:
            q = nblk // 4
            a(f's_mul_i32 {u1}, {sW}, {q//3*8*rs}\ns_add_u32 {u0}, {u0}, {u1}\ns_mul_i32 {u1}, {sW}, {q*1024}')
            for i in range(i0, i1):
                if cap: self.vcap(cap, who)
                a(f's_add_u32 m0, {u1}, {lds + i*1024}\ns_add_u32 {u2}, {u0}, {(i//3)*8*rs + (i%3)*128}\nbuffer_load_dwordx4 v{va}, {SRDT}, {u2} offen nt lds')
                self.vissue(name, who)
            return
        for i in range(i0, i1):
            a(f's_add_u32 {u1}, {sW}, {4*i}' if 4 * i + 3 < nblk else f's_and_b32 {u1}, {sW}, 1\ns_add_u32 {u1}, {u1}, {4*i}')
            a(f"""
            s_lshl_b32 {u2}, {u1}, 10
            s_add_u32 m0, {u2}, {lds}
            s_mul_i32 {u2}, {u1}, 43
            s_lshr_b32 {u2}, {u2}, 7
            s_mul_i32 {u2}, {u2}, {8*rs - 384}
            s_lshl_b32 {u1}, {u1}, 7
            s_add_u32 {u2}, {u2}, {u1}
            s_add_u32 {u2}, {u2}, {u0}
            """)
            if cap: self.vcap(cap, who)
            a(f'buffer_load_dwordx4 v{va}, {SRDT}, {u2} offen nt lds'); self.vissue(name, who)
    def dmawo(self, name, i0, i1, va, vb, who, cap):
        a = self.a
        self.srd(name)
        a(f"""
        v_mul_u32_u24 v{va}, 205, v0
        v_lshrrev_b32 v{va}, 11, v{va}
        v_mul_u32_u24 v{vb}, 1120, v{va}
        v_lshl_add_u32 v{va}, v0, 4, v{vb}
        s_mul_i32 {u0}, {sH}, {192*1280}
        s_mul_i32 {u1}, {sS}, 160
        s_add_u32 {u0}, {u0}, {u1}
        s_mul_i32 {u1}, {sW}, {48*1280}
        s_add_u32 {u0}, {u0}, {u1}
        s_mul_i32 {u1}, {sW}, {48*160}
        s_mov_b64 exec, {M60}
        """)
        for i in range(i0, i1):
            if cap: self.vcap(cap, who)
            a(f's_add_u32 m0, {u1}, {(L_WO if name == "wo" else L_WOB) + i*960}\ns_add_u32 {u2}, {u0}, {i*6*1280}\nbuffer_load_dwordx4 v{va}, {SRDT}, {u2} offen nt lds')
            self.vissue(name, who)
        a('s_mov_b64 exec, -1')
    def uk_direct(self, va, vb, who, cap):
        a = self.a
        self.srd('wuk')
        a(f"""
        v_and_b32 v{va}, 15, v0
        v_lshrrev_b32 v{vb}, 4, v0
        v_mul_u32_u24 v{va}, 12288, v{va}
        v_lshl_add_u32 v{va}, v{vb}, 4, v{va}
        s_lshl_b32 {u1}, {sW}, 1
        s_min_u32 {u1}, {u1}, 5
        s_mul_i32 {u0}, {sS}, 6
        s_add_u32 {u0}, {u0}, {u1}
        s_mul_i32 {u0}, {u0}, {16*12288}
        s_mul_i32 {u1}, {sH}, 384
        s_add_u32 {u0}, {u0}, {u1}
        """)
        assert cap
        if 'g' in who:
            with self.skip(f's_cmp_ge_u32 {sW}, 2'):
                a(f's_add_u32 {u1}, {u0}, {16*12288}')
                for u in range(6):
                    a(f's_waitcnt vmcnt({cap})\nbuffer_load_dwordx4 a[{216+4*u}:{219+4*u}], v{va}, {SRDT}, {u1} offen offset:{64*u} nt')
        for u in range(6):
            a(f's_waitcnt vmcnt({cap})')
            for w in who: self.vm[w] = self.vm[w][max(0, len(self.vm[w]) - cap):]
            a(f'buffer_load_dwordx4 a[{192+4*u}:{195+4*u}], v{va}, {SRDT}, {u0} offen offset:{64*u} nt'); self.vissue('wuk', who)
    def seg(self, key, va, vb, who='g3', cap=True):
        cp = self.cfg.cap2 if cap else None
        for (name, i0, i1) in self.cfg.seg.get(key, []):
            if name == 'wuk' and i1 == 0: self.uk_direct(va, vb, who, cp)
            elif name == 'clr': self.clear_quarter(va, who)
            elif name in ('wo', 'wob'): self.dmawo(name, i0, i1, va, vb, who, cp)
            else: self.dma192(name, i0, i1, va, vb, who, cp)
    def uk_staged(self): return any(x[0] == 'wuk' and x[2] for v in self.cfg.seg.values() for x in v)
    def uk_copy(self, bar):
        a = self.a
        a(f's_lshl_b32 {u0}, {sW}, 1\ns_min_u32 {u0}, {u0}, 5\ns_mul_i32 {u0}, {u0}, {2*3072}\ns_add_u32 {u0}, {u0}, {L_WUV}')
        self.row192_addr(6, 7, 8, u0)
        for u in range(6): a(f'ds_read_b128 a[{192+4*u}:{195+4*u}], v{6 + (u & 1)} offset:{(u//2)*1024}')
        with self.skip(f's_cmp_ge_u32 {sW}, 2'):
            for u in range(6): a(f'ds_read_b128 a[{216+4*u}:{219+4*u}], v{6 + (u & 1)} offset:{2*3072 + (u//2)*1024}')
        if bar: a('s_waitcnt lgkmcnt(0)\ns_barrier')
    def clear_quarter(self, r, who):
        a = self.a
        self.clr_regs(16)
        a(f"""
        s_and_b32 {u1}, {sH}, 1
        s_mul_i32 {u0}, {u1}, {12288-64}
        s_mul_i32 {u1}, {sW}, {3072-128}
        s_add_u32 {u0}, {u0}, {u1}
        s_add_u32 {u0}, {sFG}, {u0}
        """)
        for i in range(2): a(f'buffer_store_dwordx4 v[16:19], v20, {SRDW}, {sPO} offen offset:{1024*i} sc1'); self.vissue('clr', who)
        for i in range(3): a(f'buffer_store_dwordx4 v[16:19], v20, {SRDW}, {u0} offen offset:{1024*i} sc1'); self.vissue('clr', who)
    def behind(self, key, va, vb):
        if not self.cfg.seg.get(key): return None
        def f(lc):
            self.seg(key, va, vb, 'g', cap=False); self.vwait('pl', 'g')
        return f

    SEQ = [('wqb', 30), ('wuk', 36), ('ckv', 24), ('wob', 32), ('wuv', 36)]
    sIDX, sNEED, sMAX, sFLG = 's12', 's13', 's14', 's15'
    def seq_end(self, name):
        n = 0
        for k, c in self.SEQ:
            n += c
            if k == name: return n
    def stream_sub(self):
        a = self.a; cap = self.cfg.cap3
        sIDX, sNEED, sMAX, sFLG = self.sIDX, self.sNEED, self.sMAX, self.sFLG
        a.label('L_stream')
        n0 = 0
        for name, cnt in self.SEQ:
            lskip, lloop, lc = a.newlabel('Lsn'), a.newlabel('Lsl'), a.newlabel('Lsc')
            a(f's_cmp_ge_u32 {sIDX}, {n0+cnt}\ns_cbranch_scc1 {lskip}')
            self.srd(name)
            wo = name in ('wo', 'wob')
            if wo:
                G, gs, ls = 4, 6 * 1280, 960
                a(f"""
                v_mul_u32_u24 v61, 205, v0
                v_lshrrev_b32 v61, 11, v61
                v_mul_u32_u24 v61, 70, v61
                v_add_lshl_u32 v61, v61, v0, 4
                s_mul_i32 {u0}, {sH}, {192*1280}
                s_mul_i32 {u1}, {sS}, 160
                s_add_u32 {u0}, {u0}, {u1}
                s_sub_u32 {u2}, {sIDX}, {n0}
                s_mul_i32 {u1}, {u2}, 960
                s_add_u32 {u1}, {u1}, {L_WOB if name == 'wob' else L_WO}
                s_mul_i32 {u2}, {u2}, {6*1280}
                s_add_u32 {u0}, {u0}, {u2}
                s_mov_b64 exec, {M60}
                """)
            else:
                G, gs, ls = 3, 128, 1024
                lds, rs, _ = self.G192[name]
                a(self.base192(name, u0)); self.voff192(61, 62, rs)
                a(f"""
                s_sub_u32 {u2}, {sIDX}, {n0}
                s_lshl_b32 {u1}, {u2}, 10
                s_add_u32 {u1}, {u1}, {lds}
                s_mul_i32 {u2}, {u2}, {8*rs//3}
                s_add_u32 {u0}, {u0}, {u2}
                """)
            a.label(lloop)
            a(f"""
            s_cmp_ge_u32 {sIDX}, {sMAX}
            s_cbranch_scc1 L_stream_full
            v_mov_b32 v62, {L_FLAG}
            s_mov_b32 m0, {u1}
            s_waitcnt vmcnt({cap-G})
            ds_read_b32 v62, v62
            buffer_load_dwordx4 v61, {SRDT}, {u0} offen nt lds
            """)
            for k in range(1, G):
                a(f's_add_u32 m0, {u1}, {k*ls}\ns_add_u32 {u2}, {u0}, {k*gs}\nbuffer_load_dwordx4 v61, {SRDT}, {u2} offen nt lds')
            a(f"""
            s_add_u32 {sIDX}, {sIDX}, {G}
            s_add_u32 {u1}, {u1}, {G*ls}
            s_add_u32 {u0}, {u0}, {G*gs if wo else 8*rs}
            s_waitcnt lgkmcnt(0)
            s_cmp_lt_u32 {sIDX}, {sNEED}
            s_cbranch_scc1 {lc}
            v_readfirstlane_b32 {u2}, v62
            s_cmp_ge_u32 {u2}, {sFLG}
            s_cbranch_scc1 L_stream_ret
            {lc}:
            s_cmp_lt_u32 {sIDX}, {n0+cnt}
            s_cbranch_scc1 {lloop}
            s_mov_b64 exec, -1
            """)
            a.label(lskip)
            n0 += cnt
        a.label('L_stream_full')
        a(f's_cmp_ge_u32 {sIDX}, {sNEED}\ns_cbranch_scc1 L_stream_ret\ns_waitcnt vmcnt(0)')
        a.label('L_stream_ret')
        a('s_mov_b64 exec, -1\ns_nop 3\ns_setpc_b64 s[64:65]')
    def stream(self, need=None, upto='wuv', flag=None, extra=None):
        a = self.a; cap = self.cfg.cap3
        a(f's_mov_b32 {self.sNEED}, {cap if need == "zero" else self.seq_end(need) + cap if need else 0}')
        if extra is not None: a(f's_add_u32 {self.sMAX}, {self.sIDX}, {extra}\ns_min_u32 {self.sMAX}, {self.sMAX}, {self.seq_end(upto)}')
        else: a(f's_mov_b32 {self.sMAX}, {self.seq_end(upto)}')
        a(f's_mov_b32 {self.sFLG}, {flag if flag is not None else 0x7fffffff if extra is not None else 0}')
        l = a.newlabel('Lcall')
        a(f's_getpc_b64 s[74:75]\n{l}:\ns_add_u32 s74, s74, L_stream-{l}\ns_addc_u32 s75, s75, 0\ns_nop 4\ns_swappc_b64 s[64:65], s[74:75]')
    def raise_flag(self, va, vb):
        if not self.cfg.dyn: return
        self.nflag += 1
        with self.it0(): self.a(f'v_mov_b32 v{va}, {L_FLAG}\nv_mov_b32 v{vb}, {self.nflag}\nds_write_b32 v{va}, v{vb}')

    def kv_addr(self):
        self.voff192(self.SV, 1, 384)
        self.emit(self.bitperm(1, 0, {3: 4, 4: 2, 5: 1}, 2))
        self.a(f"""
        v_mul_u32_u24 v1, 384, v1
        v_and_b32 v2, 0x70, v{self.SV}
        v_add_u32 v{SK}, v1, v2
        s_mul_i32 {sRING}, {sW}, {6144*(self.cfg.depth+1)}
        s_add_u32 {sRING}, {sRING}, {L_SCR - 4*6144*(self.cfg.depth+1)}
        """)
    def v_raddr(self, tmp):
        self.emit(self.tr192_addr(self.SR, tmp))
        self.a(f'v_add_u32 v{self.SR}, {sRING}, v{self.SR}')
        for t in range(1, 4): self.a(f'v_xor_b32 v{self.SR+t}, {32*t}, v{self.SR}')
    def kv_issue(self, U, who='g3'):
        for b in range(6):
            beta, sig = divmod(b, 3)
            off = ((32 * (U >> 1) + 8 * beta + (U & 1)) if U < 8 else (16 * (U - 8) + 8 * beta)) * 384 + sig * 128
            if U >= 2: self.vcap(self.cfg.cap, who)
            self.a(f's_add_u32 m0, {sRING}, {(U%(self.cfg.depth+1))*6144 + b*1024}\ns_add_u32 {t7}, {sKV}, {off}\n'
                   f'buffer_load_dwordx4 v{SK if U < 8 else self.SV}, {SRDK if U < 8 else SRDV}, {t7} offen nt lds')
            self.vissue(f'U{U}', who)
    def kv_read(self, s_):
        a = self.a
        if s_ == 8: self.v_raddr(1)
        sl = (s_ % (self.cfg.depth + 1)) * 6144
        a('s_waitcnt lgkmcnt(0)')
        if s_ < 8:
            for u in range(6): a(f'ds_read_b128 a[{24*s_+4*u}:{24*s_+4*u+3}], v{self.SR + (u & 1)} offset:{sl + (u//2)*1024}')
        else:
            q = s_ - 8
            for t in range(12):
                r = 64 + 96 * (q >> 2) + 8 * t + 2 * (q & 3)
                a(f'ds_read_b64_tr_b16 v[{r}:{r+1}], v{self.SR + (t & 3)} offset:{sl + (t>>2)*1024}')
    def kv_force(self, upto, who='g3'):
        while self.rd <= upto:
            tag = f'U{self.rd}'
            if who == 'g3' and self.vm['g'] != self.vm['3']: self.vwait_split(tag)
            else: self.vwait(tag, who)
            self.kv_read(self.rd); self.rd += 1
    def kv_flush(self, who='g3', lim=15):
        while self.rd < self.iss and self.rd <= lim and not any(f'U{self.rd}' in self.vm[w] for w in who):
            self.kv_read(self.rd); self.rd += 1
    def kv_pump(self, upto, who='g3', cb=None, lim=15):
        while self.iss <= upto:
            U = self.iss
            self.kv_force(U - self.cfg.depth - 1, who)
            if self.rd - 1 == U - self.cfg.depth - 1: self.a('s_waitcnt lgkmcnt(0)')
            self.kv_issue(U, who); self.iss += 1
            self.kv_flush(who, lim)
            if cb: cb(U)

    def tr192_addr(self, dst, tmp, pairmode=False):
        o = [f'v_bfe_u32 v{dst}, v0, 2, 3', f'v_and_b32 v{tmp}, 6, v{dst}', f'v_lshlrev_b32 v{dst}, 7, v{dst}',
             f'v_lshl_add_u32 v{dst}, v{tmp}, 4, v{dst}', f'v_and_b32 v{tmp}, 3, v0']
        o += [f'v_lshl_add_u32 v{dst}, v{tmp}, 3, v{dst}'] if not pairmode else [f'v_lshlrev_b32 v{tmp}, 4, v{tmp}', f'v_xor_b32 v{dst}, v{dst}, v{tmp}']
        return o + [f'v_lshrrev_b32 v{tmp}, 5, v0', f'v_mul_u32_u24 v{tmp}, 3072, v{tmp}', f'v_add_u32 v{dst}, v{dst}, v{tmp}']
    def tile_addr(self, dst, base, stile, lds_base):
        self.a(f"""
        s_and_b32 {u1}, {stile}, 3
        s_lshl_b32 {u1}, {u1}, 5
        s_lshr_b32 {u2}, {stile}, 2
        s_lshl_b32 {u2}, {u2}, 10
        s_add_u32 {u2}, {u2}, {lds_base}
        v_xor_b32 v{dst}, {u1}, v{base}
        v_add_u32 v{dst}, {u2}, v{dst}
        """)
    def row192_addr(self, dst, dst2, tmp, sbase):
        self.a(f"""
        v_and_b32 v{dst}, 7, v0
        v_and_b32 v{dst2}, 6, v0
        v_lshrrev_b32 v{tmp}, 4, v0
        v_xor_b32 v{dst2}, v{dst2}, v{tmp}
        v_lshlrev_b32 v{dst}, 7, v{dst}
        v_lshl_add_u32 v{dst}, v{dst2}, 4, v{dst}
        v_bfe_u32 v{dst2}, v0, 3, 1
        v_mul_u32_u24 v{dst2}, 3072, v{dst2}
        v_add3_u32 v{dst}, v{dst}, v{dst2}, {sbase}
        v_xor_b32 v{dst2}, 64, v{dst}
        """)

    WQB_ = ['a[240:247]', 'a[248:255]', 'a[216:223]', 'a[224:231]']
    WQT_ = ['v[56:57]', 'v[58:59]', 'a[232:233]', 'a[234:235]']

    def clr_regs(self, r):
        self.a(f'v_mov_b32 v{r}, -1\nv_mov_b32 v{r+1}, -1\nv_mov_b32 v{r+2}, -1\nv_mov_b32 v{r+3}, -1\nv_lshlrev_b32 v{r+4}, 4, v0')
    def box_voff(self, dst, tmp):
        self.a(f"""
        v_lshrrev_b32 v{tmp}, 4, v0
        v_mul_u32_u24 v{tmp}, 1792, v{tmp}
        v_lshl_add_u32 v{dst}, v0, 4, v{tmp}
        s_lshl_b32 {u1}, {sS}, 8
        s_mul_i32 {u2}, {sS}, 224
        v_add_u32 v{dst}, {u1}, v{dst}
        v_subrev_u32 v{tmp}, {u2}, v{dst}
        v_cmp_gt_u32 vcc, 48, v0
        s_sub_u32 {u0}, {sHB}, 6144
        v_cndmask_b32 v{dst}, v{tmp}, v{dst}, vcc
        """)
    def clear_boxes(self, offs, r, tag='clr'):
        a = self.a
        self.clr_regs(r); self.box_voff(r + 5, r + 6)
        ts = [t0, t1, t2, t3]
        for o, t in zip(offs, ts): a(f's_add_u32 {t}, {u0}, {o}')
        a('s_mov_b32 exec_hi, 0x3ffff')
        for o, t in zip(offs, ts):
            a(f'buffer_store_dwordx4 v[{r}:{r+3}], v{r+5}, {SRDW}, {t} offen sc1'); self.vissue(tag, '3')
        a('s_mov_b64 exec, -1')
    def touch(self, offs, r, withP):
        a = self.a
        with self.skip(f's_cmp_eq_u32 {sFAST}, 0'):
            self.box_voff(r + 5, r + 6)
            a('s_mov_b32 exec_hi, 0x3ffff')
            for o in offs:
                a(f's_add_u32 {t0}, {u0}, {o}\nbuffer_load_dword v63, v{r+5}, {SRDW}, {t0} offen sc1')
            a('s_mov_b64 exec, -1')
            if withP:
                a(f's_sub_u32 {t0}, {sPO}, 6144\nv_lshlrev_b32 v{r+5}, 7, v0\nbuffer_load_dword v63, v{r+5}, {SRDW}, {t0} offen sc1')

    def clear_cross_small(self, r, yoffs, tag='clr'):
        a = self.a
        a(f'v_lshrrev_b32 v{r+6}, 3, v0\nv_mul_u32_u24 v{r+6}, 3968, v{r+6}\nv_add_u32 v{r+6}, v{r+6}, v{r+4}\ns_mov_b64 exec, 0xffffff')
        for o in yoffs:
            a(f's_add_u32 {t0}, {sYP}, {(o - 4160) & 0xffffffff}\nbuffer_store_dwordx4 v[{r}:{r+3}], v{r+6}, {SRDW}, {t0} offen sc1'); self.vissue(tag, '3')
    def clear_EFS(self, r, it=0, tag='clr'):
        a = self.a
        a(f"""
        s_add_u32 {t0}, {sEPB}, {(65536*it - 2048 - 32) & 0xffffffff}
        s_mov_b64 exec, 0xfff
        v_lshrrev_b32 v{r+6}, 2, v0
        v_mul_u32_u24 v{r+6}, 960, v{r+6}
        v_add_u32 v{r+6}, v{r+6}, v{r+4}
        buffer_store_dwordx4 v[{r}:{r+3}], v{r+6}, {SRDW}, {t0} offen sc1
        s_lshl_b32 {t0}, {sCU}, 8
        s_add_u32 {t0}, {t0}, {W_FS + 65536*it}
        s_mov_b64 exec, {M16}
        buffer_store_dwordx4 v[{r}:{r+3}], v{r+4}, {SRDW}, {t0} offen sc1
        s_mov_b64 exec, -1
        """)
        self.vissue(tag, '3'); self.vissue(tag, '3')
    def clear_P(self, r, it=0, tag='clr'):
        self.a(f's_add_u32 {t1}, {sPO}, {(2*MiB*it - 6144) & 0xffffffff}\ns_add_u32 {t2}, {t1}, 4096')
        for i in range(8):
            self.a(f'buffer_store_dwordx4 v[{r}:{r+3}], v{r+4}, {SRDW}, {[t1,t2][i>>2]} offen offset:{(i&3)*1024} sc1'); self.vissue(tag, '3')
    def clear_F(self, r, it=0):
        a = self.a
        a(f's_and_b32 {t1}, {sH}, 1\ns_mul_i32 {t1}, {t1}, {12288-64}\ns_add_u32 {t0}, {sFG}, {t1}\ns_add_u32 {t0}, {t0}, {(3*MiB*it - 384) & 0xffffffff}')
        for i in range(12):
            a(f'buffer_store_dwordx4 v[{r}:{r+3}], v{r+4}, {SRDW}, {t0} offen offset:{(i&3)*1024} sc1'); self.vissue('clrF', '3')
            if i & 3 == 3: a(f's_add_u32 {t0}, {t0}, 4096')

    def q_pre(self, which):
        a = self.a
        self.emit(self.sa_addr(1, 3, None))
        a(f"""
        v_and_b32 v3, 2, v0
        v_mul_u32_u24 v3, {(L_ONES - L_XS) // 2}, v3
        v_add_u32 v3, {L_XS}, v3
        v_add_u32 v1, v1, v3
        v_lshrrev_b32 v2, 4, v0
        v_lshl_add_u32 v2, v2, 3, v3
        v_add_u32 v2, 128, v2
        v_and_b32 v3, 1, v0
        v_cmp_eq_u32 vcc, 1, v3
        v_mov_b32 v3, {L_ZERO}
        v_cndmask_b32 v2, v2, v3, vcc
        """)
        self.emit(self.idx(4))
        if which == 'wq':
            a(f's_lshl_b32 {u0}, {sW}, 5\ns_lshl_b32 {u1}, {sW}, 6\ns_sub_u32 {u1}, {u1}, 64\ns_cmp_lt_u32 {sW}, 2\ns_cselect_b32 {u0}, {u0}, {u1}')
        else: a(f's_mul_i32 {u0}, {sW}, 48')
        self.emit(self.pub_voff(5, 3, u0))
        box = B_QA if which == 'wq' else B_QB
        a(f"""
        s_add_u32 {t4}, {sHB}, {(box - 8192) & 0xffffffff}
        s_mul_i32 {t5}, {sW}, {(4 - 2048) & 0xffffffff}
        s_lshl_b32 {u1}, {sS}, 5
        s_add_u32 {t5}, {t5}, {u1}
        s_add_u32 {t5}, {t5}, {sHB}
        s_add_u32 {t5}, {t5}, {box + 6144}
        s_add_u32 {t5}, {t5}, {sW3O}
        """)
    def q_reads(self, va=6, vb=7):
        a = self.a
        self.emit(self.tr192_addr(vb, va))
        for k in range(3):
            a(f's_mul_i32 {u0}, {sW}, 3\ns_add_u32 {u0}, {u0}, {k}')
            self.tile_addr(va, vb, u0, L_WQB)
            for u in range(5): a(f'ds_read_b64_tr_b16 v[{24+10*k+2*u}:{25+10*k+2*u}], v{va} offset:{2*u*3072}')
    def x_gaddr(self):
        return [f's_cmp_lt_u32 {sW}, 2', f's_cselect_b32 {u1}, 63, 59', f's_min_u32 {u0}, {sW}, 2', f's_lshl_b32 {u0}, {u0}, 3',
                f'v_and_b32 v54, {u1}, v0', 'v_and_b32 v60, 7, v54', 'v_lshlrev_b32 v54, 4, v54', f'v_add_u32 v60, {u0}, v60']
    def x_laddr(self):
        return ['v_lshrrev_b32 v55, 4, v0', 'v_lshl_add_u32 v60, v60, 2, v55'] + self.bitperm(55, 60, MAP_TR_SA, 3) + \
               ['v_cmp_gt_u32 vcc, 64, v60', 'v_lshlrev_b32 v60, 1, v60', 'v_cndmask_b32 v55, v60, v55, vcc', f'v_add_u32 v55, {L_XS}, v55']
    def x_stats(self):
        return ['v_lshlrev_b32 v3, 16, v20', f'v_cndmask_b32 v3, 0, v3, {MXV}',
                'v_mul_f32_dpp v3, v3, v3 quad_perm:[0,1,2,3] row_mask:0xf bank_mask:0x3',
                f'v_add_f32_dpp v3, v3, v3 quad_perm:[1,0,3,2] {DP}', f'v_add_f32_dpp v3, v3, v3 quad_perm:[2,3,0,1] {DP}',
                f'v_add_f32_dpp v3, v3, v3 row_half_mirror {DP}'] + self.allrows('v_add_f32', 3, 22)
    def g8_gaddr(self, r):
        return [f'v_lshlrev_b32 v{r}, 2, v0', f'v_and_b32 v{r+1}, 7, v0', f's_lshl_b32 {u0}, {sW}, 11', f's_sub_u32 {u0}, 6144, {u0}',
                f'v_lshl_add_u32 v{r+1}, v{r+1}, 5, {u0}']
    def g8_laddr(self, dst, tmp, mp):
        return [f's_lshl_b32 {u0}, {sW}, 7', f's_add_u32 {u0}, {u0}, {L_QS}'] + self.bitperm(dst, 0, mp, tmp, add=u0)

    def stage_q(self, which):
        a = self.a
        a('ds_read_b64 v[10:11], v2\nds_read_b128 v[6:9], v1')
        if which == 'wqb':
            with self.it0():
                self.q_reads(12, 13); a('s_waitcnt lgkmcnt(0)')
        xs = [x.replace('v22', 'v2') for x in self.x_stats()[3:]]
        g8 = self.g8_gaddr(54)
        self.emit([xs[0], g8[0], g8[1], xs[1], g8[2], g8[3], xs[2], g8[4], xs[3]])
        if which == 'wq': nt = 4; WB = self.WQB_; WT = self.WQT_; D = [24, 28, 32, 36]; mask = MQ
        else:
            nt = 3; WB = [f'v[{24+10*k}:{31+10*k}]' for k in range(3)]; WT = [f'v[{32+10*k}:{33+10*k}]' for k in range(3)]
            D = [12, 16, 20]; mask = M48
        fill = [xs[4], xs[5], xs[6], 'v_and_b32 v1, 8, v0', xs[7], xs[8], 'v_lshlrev_b32 v1, 1, v1', 'v_sub_u32 v1, 16, v1', f's_add_u32 {t0}, {t4}, 8192',
                f's_add_u32 {sYP}, {sYP}, {sYINC}', f's_add_u32 {sYG}, {sYG}, {sYINC}']
        a('s_waitcnt lgkmcnt(1)')
        for k in range(nt):
            a(f'v_mfma_f32_16x16x16_bf16 v[{D[k]}:{D[k]+3}], v[10:11], {WT[k]}, 0')
            for _ in range(2):
                if fill: a(fill.pop(0))
        a('s_waitcnt lgkmcnt(0)')
        for k in range(nt):
            a(f'v_smfmac_f32_16x16x64_bf16 v[{D[k]}:{D[k]+3}], v[6:9], {WB[k]}, v4')
            for _ in range(2):
                if fill: a(fill.pop(0))
        lines = ['s_mov_b64 exec, 0x101', f'buffer_store_dword v3, v1, {SRDW}, {t5} offen{{sc}}', f's_mov_b64 exec, {mask}'] + \
                self.merge(2, D) + [f'buffer_store_dword v2, v5, {SRDW}, {t4} offen{{sc}}', 's_mov_b64 exec, -1']
        def colsum():
            cb = (B_CA - B_QA) if which == 'wq' else (B_CB - B_QB)
            a(f's_add_u32 {t1}, {t4}, {cb}')
            self.emit(self.merge(2, D, 2))
            self.store_intra([f's_mov_b64 exec, {mask}', f'buffer_store_dword v2, v5, {SRDW}, {t1} offen{{sc}}', 's_mov_b64 exec, -1'])
        if which == 'wq':
            sv = {k: list(v) for k, v in self.vm.items()}
            def hot():
                self.store_intra(lines); self.vm = sv
            self.either(f's_cmp_eq_u32 {sIT}, 0', hot, lambda: self.first_publish(D))
        else:
            self.store_intra(lines)
            with self.it0(): colsum()

    def first_publish(self, D):
        a = self.a
        self.emit(self.merge(2, D)); self.emit(self.merge(6, D, 2))
        a(f"""
        s_lshl_b32 {u0}, {sW}, 7
        s_lshl_b32 {u1}, {sW}, 8
        s_sub_u32 {u1}, {u1}, 256
        s_cmp_lt_u32 {sW}, 2
        s_cselect_b32 {u0}, {u0}, {u1}
        s_add_u32 {u0}, {u0}, {L_SX}
        v_lshl_add_u32 v5, v0, 2, {u0}
        s_lshl_b32 {u0}, {sW}, 2
        s_add_u32 {u0}, {u0}, {L_SX + 768}
        v_add_u32 v1, {u0}, v1
        s_getreg_b32 {u1}, hwreg(HW_REG_XCC_ID, 0, 4)
        s_cmp_eq_u32 {sW}, 3
        s_cselect_b64 vcc, -1, 0
        v_mov_b32 v7, {u1}
        v_cndmask_b32 v3, v3, v7, vcc
        s_mov_b64 exec, {MQ}
        ds_write_b32 v5, v2
        ds_write_b32 v5, v6 offset:1024
        s_mov_b64 exec, 0x101
        ds_write_b32 v1, v3
        s_mov_b64 exec, -1
        s_waitcnt lgkmcnt(0)
        s_barrier
        """)
        with self.skip(f's_cmp_lg_u32 {sW}, 3'):
            self.clr_regs(4); self.box_voff(9, 10)
            a(f"""
            v_add_u32 v2, {L_SX}, v8
            ds_read_b128 v[12:15], v2
            ds_read_b128 v[16:19], v2 offset:1024
            s_add_u32 {t1}, {u0}, {B_O}
            s_add_u32 {t2}, {u0}, {B_CA}
            s_mov_b32 exec_hi, 0x3ffff
            buffer_store_dwordx4 v[4:7], v9, {SRDW}, {t1} offen sc1
            s_waitcnt lgkmcnt(0)
            buffer_store_dwordx4 v[12:15], v9, {SRDW}, {u0} offen sc1
            s_mov_b64 exec, {M48}
            buffer_store_dwordx4 v[16:19], v9, {SRDW}, {t2} offen sc1
            s_mov_b64 exec, -1
            """)
            for _ in range(3): self.vissue('st', '3')
            self.clear_cross_small(4, [0], 'st'); a('s_mov_b64 exec, -1')
            if self.cfg.early >= 1:
                sk = self.cfg.skip
                if 'cB' not in sk: self.clear_boxes([B_QB, B_G, B_CB], 4)
                if 'cY' not in sk: self.clear_cross_small(4, [98304, 2 * 98304, 3 * 98304]); a('s_mov_b64 exec, -1')
                if 'cE' not in sk: self.clear_EFS(4); self.clear_EFS(4, 1)
                if 'cB' not in sk: self.clear_boxes([IT_H + B_QA, IT_H + B_O, IT_H + B_QB, IT_H + B_G], 4)
            if self.cfg.early >= 2:
                self.clear_P(4); self.clear_F(4)

    def gather_a(self, cs, first, pre):
        a = self.a
        loads = [f'buffer_load_dwordx3 v[12:14], v55, {SRDW}, {t0} offen sc1', f'buffer_load_dwordx3 v[16:18], v55, {SRDW}, {t0} offen offset:16 sc1']
        loads += [f'buffer_load_dword v{4+p}, v54, {SRDW}, {t0} offen offset:{256*p} sc1' for p in range(8)]
        cl = [f'buffer_load_dword v{20+p}, v54, {SRDW}, {t1} offen offset:{256*p} sc1' for p in range(8)]
        cb = (B_CA - B_QA) if first else (B_CB - B_QB)
        def cs_done():
            self.emit(self.sum8(20)); a(f'v_mul_f32 v{cs}, {f2u(1/640.)}, v20')
        def mid():
            self.emit(self.g8_laddr(2, 3, MAP_NAT_SA)); pre()
        def first0(lc):
            a(f's_add_u32 {t1}, {t0}, {cb}')
            self.emit(cl)
            for _ in cl: self.vissue('pl', 'g')
            if first:
                a(f'buffer_load_dword v28, v55, {SRDW}, {t0} offen offset:12 sc1'); self.vissue('pl', 'g')
                self.kvsave = (self.rd, self.iss)
                self.kv_pump(self.cfg.c3, 'g', lim=self.cfg.rB); self.kv_force(self.cfg.rB, 'g')
            self.vwait('pl', 'g')
            cs_done()
            if first:
                a(f"""
                s_getreg_b32 {u0}, hwreg(HW_REG_XCC_ID, 0, 4)
                v_cmp_ne_u32 vcc, {u0}, v28
                v_mov_b32 v29, {L_SCAL}
                s_cmp_eq_u64 vcc, 0
                s_cselect_b32 {u0}, {0 if self.cfg.force_slow else 1}, 0
                v_mov_b32 v28, {u0}
                ds_write_b32 v29, v28 offset:8
                """)
                self.zero_S()
        def undo():
            if not first:
                with self.skip(f's_cmp_lg_u32 {sIT}, 0'):
                    self.exact_poll(cl, range(20, 28), 15); cs_done()
        def early():
            a(f"""
            v_add_f32 v12, v12, v13
            v_add_f32 v12, v12, v14
            v_add_f32 v16, v16, v17
            v_add_f32 v16, v16, v18
            v_add_f32_dpp v12, v12, v12 quad_perm:[1,0,3,2] {DP}
            v_add_f32_dpp v12, v12, v12 quad_perm:[2,3,0,1] {DP}
            v_add_f32_dpp v12, v12, v12 row_half_mirror {DP}
            """)
        def compute():
            self.emit(self.sum8(4))
            a(f"""
            v_fma_f32 v4, -v12, v{cs}, v4
            v_cvt_pk_bf16_f32 v5, v4, v4
            ds_write_b16 v2, v5
            """)
        self.spec_poll(loads, list(range(4, 15)) + [16, 17, 18], 15, self.cfg.dly['a'], compute, (4, 16), mid=mid, first0=first0, undo=undo, early=(2, early))

    def rstd_ops(self):
        return [f'v_add_f32_dpp v16, v16, v16 quad_perm:[1,0,3,2] {DP}', f'v_mul_f32 v12, {f2u(1/640.)}, v12', f'v_mov_b32 v13, {L_SCAL}',
                f'v_add_f32_dpp v16, v16, v16 quad_perm:[2,3,0,1] {DP}', 'v_mul_f32 v12, v12, v12', f's_min_u32 {u0}, {sW}, 1',
                f'v_add_f32_dpp v16, v16, v16 row_half_mirror {DP}', f's_lshl_b32 {u0}, {u0}, 5', f'v_mul_f32 v16, {f2u(1/640.)}, v16',
                'v_sub_f32 v16, v16, v12', 'v_max_f32 v16, 0, v16', f'v_add_f32 v16, {f2u(1e-5)}, v16', 'v_rsq_f32 v16, v16',
                f'v_add_u32 v13, {u0}, v13', f'v_mul_f32 v16, {sC}, v16', 'ds_write_b32 v13, v16']

    S_ = [20 + 4 * n for n in range(8)]
    def zero_S(self):
        for r in self.S_: self.a(f'v_mov_b64 v[{r}:{r+1}], 0')
    def att_pre0(self):
        self.emit(self.sa_addr(52, 53, L_QS)); self.emit(self.idx(53))
        self.a(f"""
        v_lshlrev_b32 v60, 4, v0
        s_xor_b32 {u0}, {sIT}, 1
        s_mul_i32 {u0}, {u0}, {0 if self.cfg.shadow0 else OOB}
        s_add_u32 {t5}, {sPO}, {u0}
        s_and_b32 {u1}, {sH}, 1
        s_mul_i32 {u1}, {u1}, {12288-64}
        s_add_u32 {u0}, {u0}, {u1}
        s_mul_i32 {u1}, {sW}, {3072-128}
        s_add_u32 {u0}, {u0}, {u1}
        s_add_u32 {t4}, {sFG}, {u0}
        """)
    def att_pre(self):
        self.att_pre0()
        with self.it1(): self.zero_S()

    def shadow_clear(self, so, off):
        return '' if self.cfg.big0 else f'buffer_store_dwordx4 v[16:19], v60, {SRDW}, {so} offen offset:{off} sc1'

    def att_qk(self):
        a = self.a; S = self.S_
        a('s_waitcnt lgkmcnt(0)\ns_barrier\nds_read_b128 v[4:7], v52\nds_read_b128 v[8:11], v52 offset:128')
        ops = self.rstd_ops()
        for _ in range(8): a(ops.pop(0))
        Q = [4, 8, 4]
        extra = {(1, 0): ['s_barrier', f'v_mov_b32 v13, {L_SCAL}', 'ds_read_b96 v[12:14], v13'],
                 (1, 2): [f's_lshl_b32 {u0}, {sW}, 8', f's_add_u32 {u0}, {u0}, {L_PB}'],
                 (1, 3): [f'v_lshl_add_u32 v54, v0, 2, {u0}', f's_sub_u32 {u0}, {u0}, {L_QS}'],
                 (1, 4): [f'v_add_u32 v52, {u0}, v52', 'v_and_b32 v15, 2, v0'],
                 (1, 5): ['v_cmp_eq_u32 vcc, 0, v15', f'v_mov_b32 v15, {L_ZERO}'],
                 (1, 7): ['v_cndmask_b32 v55, v52, v15, vcc', 'v_cndmask_b32 v52, v15, v52, vcc']}
        mg = [x for pr in zip(self.merge(1, S[0::2]), self.merge(2, S[1::2])) for x in pr]
        cs_ = self.shadow_clear
        extra[(0, 6)] = ['v_mov_b64 v[18:19], -1']
        extra[(0, 7)] = ['v_mov_b64 v[16:17], -1']
        extra[(1, 1)] = [cs_(t5, 0)]
        extra[(1, 6)] = [cs_(t5, 1024)]
        extra[(2, 2)] = [cs_(t4, 0)]
        if not self.cfg.big0:
            for _ in range(4): self.vissue('dr')
        for tau in range(3):
            a('s_waitcnt lgkmcnt(1)')
            for n in range(8):
                i = 24 * n + 8 * tau
                a(f'v_smfmac_f32_16x16x64_bf16 v[{S[n]}:{S[n]+3}], v[{Q[tau]}:{Q[tau]+3}], a[{i}:{i+7}], v53')
                if tau == 0:
                    for _ in range(2):
                        if ops: a(ops.pop(0))
                self.emit(extra.get((tau, n), []))
                if tau == 2 and n >= 4: a('s_nop 0'); a(mg.pop(0))
                elif tau == 2: a('s_nop 1')
            if tau == 0: a('ds_read_b128 v[4:7], v52 offset:256')
        z = [f'v_mov_b64 v[{r}:{r+1}], 0' for r in range(20, 44, 2)]
        a(z.pop(0)); a(mg.pop(0)); a(z.pop(0)); a(mg.pop(0)); a(z.pop(0)); a(z.pop(0)); a(mg.pop(0)); a(z.pop(0)); a(z.pop(0)); a(mg.pop(0))
        a(f"""
        v_max_f32 v3, v1, v2
        s_waitcnt lgkmcnt(0)
        {z.pop(0)}
        v_max_f32_dpp v3, v3, v3 quad_perm:[1,0,3,2] {DP}
        {z.pop(0)}
        {z.pop(0)}
        v_max_f32_dpp v3, v3, v3 quad_perm:[2,3,0,1] {DP}
        {z.pop(0)}
        {z.pop(0)}
        v_max_f32_dpp v3, v3, v3 row_half_mirror {DP}
        {z.pop(0)}
        v_mul_f32 v1, v1, v12
        v_max_f32_dpp v3, v3, v3 row_mirror {DP}
        v_mov_b32 v15, v3
        v_mul_f32 v2, v2, v12
        v_permlane16_swap_b32 v3, v15
        v_max_f32 v3, v3, v15
        v_mov_b32 v15, v3
        v_permlane32_swap_b32 v3, v15
        v_max_f32 v3, v3, v15
        v_fma_f32 v1, -v3, v12, v1
        v_fma_f32 v2, -v3, v12, v2
        v_exp_f32 v1, v1
        v_exp_f32 v2, v2
        v_mul_f32 v3, v3, v12
        v_cvt_pk_bf16_f32 v15, v1, v2
        ds_write_b32 v54, v15
        ds_read_b128 v[4:7], v52
        ds_read_b128 v[8:11], v55
        ds_read_b128 v[44:47], v52 offset:128
        ds_read_b128 v[48:51], v55 offset:128
        v_add_f32 v1, v1, v2
        {cs_(t4, 1024)}
        """)
        assert not z and not mg

    def att_pv(self, hook):
        a = self.a
        PL = [4, 44]; PH = [8, 48]
        side = [f's_lshl_b32 {u0}, {sW}, 2', f's_add_u32 {u0}, {u0}, {L_ML}',
                f'v_add_f32_dpp v1, v1, v1 quad_perm:[1,0,3,2] {DP}', f'v_mov_b32 v2, {u0}', f'v_mov_b32 v52, {L_ML}',
                f'v_add_f32_dpp v1, v1, v1 quad_perm:[2,3,0,1] {DP}', 'ds_write_b32 v2, v3', f's_mul_i32 {u0}, {sW}, 768',
                f'v_add_f32_dpp v1, v1, v1 row_half_mirror {DP}', f's_add_u32 {u0}, {u0}, {L_OW}', f'v_lshl_add_u32 v54, v0, 2, {u0}',
                f'v_add_f32_dpp v1, v1, v1 row_mirror {DP}']
        self.emit(side)
        a('s_waitcnt lgkmcnt(3)')
        def mm(c, kap):
            b = 64 + 96 * kap + 8 * c; d = 20 + 4 * (c >> 1); pr = (PL if c % 2 == 0 else PH)[kap]
            a(f'v_smfmac_f32_16x16x64_bf16 v[{d}:{d+3}], v[{pr}:{pr+3}], v[{b}:{b+7}], v53')
        def mrg(dst, mu):
            k = 20 + 8 * mu
            return [f'v_add_f32_dpp v{dst}, v{r}, v{r+1} quad_perm:[0,1,2,3] row_mask:{1<<g:#x} bank_mask:0xf' for g, r in enumerate([k, k + 2, k + 4, k + 6])]
        w0 = self.allrows('v_add_f32', 1, 15) + ['ds_write_b32 v2, v1 offset:16', None, self.shadow_clear(t4, 2048), None, None, None, None,
              's_waitcnt lgkmcnt(0)', 's_barrier', 'ds_read_b128 v[12:15], v52', 'ds_read_b128 v[16:19], v52 offset:16',
              f's_add_u32 {t0}, {sHB}, {B_O}', f's_lshl_b32 {u0}, {sS}, 8', f's_add_u32 {t1}, {t0}, {u0}', f's_add_u32 {t1}, {t1}, {sW3O}',
              f's_lshl_b32 {u0}, {sS}, 5', f's_add_u32 {t2}, {t0}, {u0}', 's_waitcnt lgkmcnt(0)']
        for c in range(12):
            mm(c, 0)
            for _ in range(2):
                if w0:
                    x = w0.pop(0)
                    if x: a(x)
        assert not w0
        if not self.cfg.big0: self.vissue('dr')
        hook()
        w1 = ['v_max3_f32 v2, v12, v13, v14', 'v_max_f32 v2, v2, v15', 'v_sub_f32 v3, v3, v2', 'v_sub_f32 v12, v12, v2',
              'v_exp_f32 v1, v3', None, 'v_sub_f32 v13, v13, v2', 'v_sub_f32 v14, v14, v2', 'v_sub_f32 v15, v15, v2', f's_xor_b32 {u0}, {sW3O}, {OOB}',
              'v_exp_f32 v12, v12', None, 'v_exp_f32 v13, v13', None] + mrg(4, 0) + ['v_exp_f32 v14, v14', None, 'v_mul_f32 v4, v4, v1', 'ds_write_b32 v54, v4']
        for c in range(12):
            mm(c, 1)
            for _ in range(2):
                if w1:
                    x = w1.pop(0)
                    if x: a(x)
        assert not w1
        self.emit(mrg(5, 1))
        a(f"""
        v_mul_f32 v5, v5, v1
        ds_write_b32 v54, v5 offset:256
        v_exp_f32 v15, v15
        """)
        self.emit(mrg(6, 2))
        a(f"""
        v_mul_f32 v6, v6, v1
        ds_write_b32 v54, v6 offset:512
        v_mul_f32 v3, v12, v16
        v_fmac_f32 v3, v13, v17
        s_add_u32 {t2}, {t2}, {u0}
        s_lshl_b32 {u0}, {sW}, 8
        s_add_u32 {u0}, {u0}, {L_OW}
        v_lshl_add_u32 v5, v0, 2, {u0}
        v_fmac_f32 v3, v14, v18
        v_fmac_f32 v3, v15, v19
        s_waitcnt lgkmcnt(0)
        s_barrier
        ds_read2st64_b32 v[8:9], v5 offset0:0 offset1:3
        ds_read2st64_b32 v[10:11], v5 offset0:6 offset1:9
        """)
        self.emit(self.g8_gaddr(26))
        self.store_intra([f's_mov_b64 exec, {ML0}', f'buffer_store_dwordx2 v[2:3], v26, {SRDW}, {t2} offen{{sc}}', 's_mov_b64 exec, -1',
                          's_waitcnt lgkmcnt(0)', 'v_pk_add_f32 v[8:9], v[8:9], v[10:11]', 'v_add_f32 v8, v8, v9',
                          f'buffer_store_dword v8, v26, {SRDW}, {t1} offen{{sc}}'])

    def o_reads(self):
        for u in range(12): self.a(f'ds_read_b64_tr_b16 v[{30+2*u}:{31+2*u}], v28 offset:{16*u*160}')
    def o_pre(self, lds_base, late):
        a = self.a
        a(f"""
        v_lshrrev_b32 v28, 2, v0
        v_mul_u32_u24 v28, 160, v28
        v_and_b32 v29, 3, v0
        v_lshl_add_u32 v28, v29, 3, v28
        s_lshl_b32 {u0}, {sW}, 5
        s_add_u32 {u0}, {u0}, {lds_base}
        v_add_u32 v28, {u0}, v28
        """)
        self.o_reads()
        self.emit(self.sa_addr(55, 29, L_QS)); self.emit(self.idx(29))
        a('v_mov_b64 v[22:23], 0')
    def o_g(self, late):
        a = self.a
        a('s_waitcnt lgkmcnt(0)\ns_barrier')
        a('ds_read_b128 v[4:7], v55\nds_read_b128 v[8:11], v55 offset:128\nds_read_b128 v[12:15], v55 offset:256')
        if late:
            with self.it0():
                self.o_reads(); a('s_waitcnt lgkmcnt(0)')
        self.emit(self.x_gaddr())
        for tau in range(3):
            a(f's_waitcnt lgkmcnt({2-tau})')
            a(f'v_smfmac_f32_16x16x64_bf16 v[22:25], v[{4+4*tau}:{7+4*tau}], v[{30+8*tau}:{37+8*tau}], v29')
        a(f"""
        s_mov_b64 exec, {M16}
        v_add_f32 v22, v22, v23
        buffer_store_dword v22, v26, {SRDW}, {sYP} offen sc1
        s_mov_b64 exec, -1
        """)
    def o_w3(self, late):
        a = self.a
        a('v_mov_b32 v1, v29\nv_mov_b32 v54, v28\nv_mov_b64 v[2:3], 0\nv_mov_b64 v[60:61], 0')
        def r4():
            for u in range(8): a(f'ds_read_b64_tr_b16 v[{14+2*u}:{15+2*u}], v54 offset:{16*u*160+32}')
        if not late: r4()
        else:
            with self.it1(): r4()
        a('s_waitcnt lgkmcnt(0)\ns_barrier')
        a("""
        ds_read_b128 v[6:9], v55
        ds_read_b128 v[10:13], v55 offset:128
        ds_read_b128 a[236:239], v55 offset:256
        """)
        if late:
            with self.it0():
                self.o_reads(); r4(); a('s_waitcnt lgkmcnt(0)')
        a("""
        s_waitcnt lgkmcnt(2)
        v_smfmac_f32_16x16x64_bf16 v[60:63], v[6:9], v[30:37], v1
        """)
        for u in range(8, 12): a(f'ds_read_b64_tr_b16 v[{30+2*(u-8)}:{31+2*(u-8)}], v54 offset:{16*u*160+32}')
        a(f"""
        v_smfmac_f32_16x16x64_bf16 v[2:5], v[6:9], v[14:21], v1
        s_waitcnt lgkmcnt(5)
        v_smfmac_f32_16x16x64_bf16 v[60:63], v[10:13], v[38:45], v1
        v_lshrrev_b32 v6, 4, v0
        v_mul_u32_u24 v6, 3968, v6
        v_smfmac_f32_16x16x64_bf16 v[2:5], v[10:13], v[22:29], v1
        v_lshl_add_u32 v6, v0, 2, v6
        s_waitcnt lgkmcnt(4)
        v_smfmac_f32_16x16x64_bf16 v[60:63], a[236:239], v[46:53], v1
        s_waitcnt lgkmcnt(0)
        v_smfmac_f32_16x16x64_bf16 v[2:5], a[236:239], v[30:37], v1
        s_mov_b64 exec, {M32}
        """)
        self.emit(self.merge(7, [60, 2]))
        a(f'buffer_store_dword v7, v6, {SRDW}, {sYP} offen sc1\ns_mov_b64 exec, -1')

    def gather_b(self, pre):
        a = self.a
        loads = [f'buffer_load_dwordx2 v[12:13], v27, {SRDW}, {t0} offen sc1']
        loads += [f'buffer_load_dword v{4+p}, v26, {SRDW}, {t0} offen offset:{256*p} sc1' for p in range(8)]
        def mid():
            self.emit(self.g8_laddr(2, 3, MAP_TR_SA)); pre()
        def early():
            a(f"""
            v_max_f32_dpp v14, v12, v12 quad_perm:[1,0,3,2] {DP}
            v_max_f32_dpp v14, v14, v14 quad_perm:[2,3,0,1] {DP}
            v_max_f32_dpp v14, v14, v14 row_half_mirror {DP}
            v_sub_f32 v12, v12, v14
            v_exp_f32 v12, v12
            v_mul_f32 v13, v13, v12
            """)
        def compute():
            a(f"""
            v_mul_f32_dpp v4, v12, v4 row_newbcast:0 {DP}
            v_mul_f32_dpp v5, v12, v5 row_newbcast:1 {DP}
            v_add_f32_dpp v13, v13, v13 quad_perm:[1,0,3,2] {DP}
            v_fmac_f32_dpp v4, v12, v6 row_newbcast:2 {DP}
            v_fmac_f32_dpp v5, v12, v7 row_newbcast:3 {DP}
            v_add_f32_dpp v13, v13, v13 quad_perm:[2,3,0,1] {DP}
            v_fmac_f32_dpp v4, v12, v8 row_newbcast:4 {DP}
            v_fmac_f32_dpp v5, v12, v9 row_newbcast:5 {DP}
            v_add_f32_dpp v13, v13, v13 row_half_mirror {DP}
            v_fmac_f32_dpp v4, v12, v10 row_newbcast:6 {DP}
            v_fmac_f32_dpp v5, v12, v11 row_newbcast:7 {DP}
            v_rcp_f32 v13, v13
            v_add_f32 v4, v4, v5
            v_mul_f32 v4, v4, v13
            v_cvt_pk_bf16_f32 v5, v4, v4
            ds_write_b16 v2, v5
            """)
        self.spec_poll(loads, range(4, 14), 15, self.cfg.dly['b'], compute, (4, 4), mid=mid, first0=self.behind('b2', 16, 17), early=(1, early))

    def gather_g(self, pre):
        a = self.a
        loads = [f'buffer_load_dword v{4+p}, v26, {SRDW}, {t0} offen offset:{256*p} sc1' for p in range(8)]
        def mid():
            self.emit(self.g8_laddr(2, 3, MAP_TR_SA)); pre()
        def compute():
            self.emit(self.sum8(4)); a('v_cvt_pk_bf16_f32 v5, v4, v4\nds_write_b16 v2, v5')
        self.spec_poll(loads, range(4, 12), 15, self.cfg.dly['g'], compute, (4, 4), mid=mid)

    def gather_c(self, key):
        a = self.a
        self.emit(self.x_laddr())
        a('ds_read_u16 v22, v55')
        loads = [f'buffer_load_dwordx4 v[{6+4*i}:{9+4*i}], v54, {SRDW}, {sYG} offen offset:{1024*i} sc1' for i in range(4)]
        def mid(): a('s_waitcnt lgkmcnt(0)\nv_lshlrev_b32 v22, 16, v22')
        def compute():
            a(f"""
            v_pk_add_f32 v[6:7], v[6:7], v[10:11]
            v_pk_add_f32 v[14:15], v[14:15], v[18:19]
            v_pk_add_f32 v[8:9], v[8:9], v[12:13]
            v_pk_add_f32 v[6:7], v[6:7], v[14:15]
            v_pk_add_f32 v[16:17], v[16:17], v[20:21]
            v_pk_add_f32 v[8:9], v[8:9], v[16:17]
            v_permlane16_swap_b32 v6, v7
            v_add_f32 v6, v6, v7
            v_permlane16_swap_b32 v8, v9
            v_add_f32 v8, v8, v9
            v_permlane32_swap_b32 v6, v8
            v_add_f32 v6, v6, v8
            v_add_f32_dpp v6, v6, v6 row_ror:8 {DP}
            v_cvt_pk_bf16_f32 v7, v6, v6
            v_lshlrev_b32 v7, 16, v7
            v_add_f32 v7, v7, v22
            v_cvt_pk_bf16_f32 v20, v7, v7
            ds_write_b16 v55, v20
            """)
        bh = self.behind(key, 3, 53) if key else None
        self.spec_poll(loads, range(6, 22), 3, self.cfg.dly['c' if key else 'c2'], compute, (6, 6), mid=mid, first0=bh)
        self.emit(self.x_stats()[:3])

    def abs_pre(self):
        self.emit(self.sa_addr(52, 53, L_QS)); self.emit(self.idx(53))
        self.a('v_lshlrev_b32 v50, 1, v0\nv_mov_b64 v[40:41], 0\nv_mov_b64 v[44:45], 0')
    def stage_abs(self):
        a = self.a
        a('s_waitcnt lgkmcnt(0)\ns_barrier')
        if self.cfg.dyn:
            with self.it0(): self.uk_copy(False)
        a('ds_read_b128 v[28:31], v52\nds_read_b128 v[32:35], v52 offset:128\nds_read_b128 v[36:39], v52 offset:256')
        ops = self.rstd_ops()
        for _ in range(8): a(ops.pop(0))
        for tau in range(3):
            a(f's_waitcnt lgkmcnt({2-tau})')
            a(f'v_smfmac_f32_16x16x64_bf16 v[40:43], v[{28+4*tau}:{31+4*tau}], a[{192+8*tau}:{199+8*tau}], v53')
            a(f'v_smfmac_f32_16x16x64_bf16 v[44:47], v[{28+4*tau}:{31+4*tau}], a[{216+8*tau}:{223+8*tau}], v53')
        for _ in range(6): a(ops.pop(0))
        self.emit(self.merge(48, [40, 44]))
        self.emit(ops)
        a(f"""
        v_mov_b32_dpp v49, v48 quad_perm:[1,1,3,3] {DP}
        s_mov_b64 exec, {MABS}
        v_cvt_pk_bf16_f32 v48, v48, v49
        buffer_store_dword v48, v50, {SRDW}, {sEPB} offen sc1
        s_mov_b64 exec, -1
        """)
        self.vissue('st')

    def dyn_behind(self, key):
        n = self.cfg.bh.get(key) if self.cfg.dyn else 0
        if not n: return None
        def f(lc):
            a = self.a
            with self.skip(f's_cmp_lg_u32 {sW}, 3'):
                a(f's_add_u32 {sCNT}, {self.sIDX}, {n}')
                self.stream(extra=n)
                with self.skip(f's_cmp_lt_u32 {self.sIDX}, {sCNT}'): a(f's_waitcnt vmcnt({n})\ns_branch {lc}')
            a('s_waitcnt vmcnt(0)'); self.vdrain('g3')
        return f

    def stage_sc(self):
        a = self.a
        a(f's_lshr_b32 {u0}, {sW}, 1\ns_mul_i32 {u0}, {u0}, {4*3072}\ns_add_u32 {u0}, {u0}, {L_CKV}')
        self.row192_addr(1, 3, 2, u0)
        def w3it0(): return self.ool(f's_add_u32 {u0}, {sW3O}, {sIT}\ns_cmp_eq_u32 {u0}, {OOB}')
        self.w3it0 = w3it0
        if self.cfg.dyn:
            with w3it0(): self.stream(need='ckv', upto='wob')
        a('s_waitcnt lgkmcnt(0)\ns_barrier')
        if self.cfg.dyn and self.cfg.pre3.get('e'):
            with w3it0(): self.stream(extra=self.cfg.pre3['e'])
        seq = [(n, u) for n in range(2) for u in range(6)]
        def aread(k):
            n, u = seq[k]; r = 28 + 4 * (k % 5)
            a(f'ds_read_b128 v[{r}:{r+3}], v{1 if u % 2 == 0 else 3} offset:{n*2*3072 + (u//2)*1024}')
        def pre():
            for k in range(5): aread(k)
            a('v_lshlrev_b32 v60, 4, v0')
        a(f"""
        v_and_b32 v60, 15, v0
        v_lshlrev_b32 v60, 6, v60
        v_lshl_add_u32 v2, v2, 4, v60
        s_add_u32 {t0}, {sEG}, 4096
        s_xor_b32 {t1}, {sPO}, {1<<13}
        s_xor_b32 {t2}, {sPO}, {2<<13}
        s_xor_b32 {t3}, {sPO}, {3<<13}
        """)
        pre()
        loads = [f'buffer_load_dwordx4 v[{4+4*u}:{7+4*u}], v2, {SRDW}, {sEG if u < 4 else t0} offen offset:{1024*(u&3)} sc1' for u in range(6)]
        def mf(k):
            n, u = seq[k]; r = 28 + 4 * (k % 5); d = 52 if n == 0 else 48
            a(f's_waitcnt lgkmcnt({min(4, 11-k)})')
            a(f'v_mfma_f32_16x16x32_bf16 v[{d}:{d+3}], v[{r}:{r+3}], v[{4+4*u}:{7+4*u}], ' + ('0' if u == 0 else f'v[{d}:{d+3}]'))
            if k + 5 < 12: aread(k + 5)
        def compute():
            self.stamp('e got')
            for k in range(10): mf(k)
        self.spec_poll(loads, range(4, 28), 60, self.cfg.dly['e'], compute, (52, 52), redo=pre, who='g3', first0=self.dyn_behind('e'))
        a(f's_cmp_eq_u32 {sFAST}, 0')
        mf(10); mf(11)
        self.store_intra([f'buffer_store_dwordx4 v[52:55], v60, {SRDW}, {sPO} offen{{sc}}',
                          f'buffer_store_dwordx4 v[48:51], v60, {SRDW}, {sPO} offen offset:1024{{sc}}'], precmp=True)

    def stage_ctx(self):
        a = self.a
        loads = []
        for k, s_ in enumerate([t1, t2, t3]):
            loads.append(f'buffer_load_dwordx4 v[{4+8*k}:{7+8*k}], v60, {SRDW}, {s_} offen sc1')
            loads.append(f'buffer_load_dwordx4 v[{8+8*k}:{11+8*k}], v60, {SRDW}, {s_} offen offset:1024 sc1')
        def cread(tile, r):
            k, hf = divmod(tile, 2)
            ar = 2 if k == 1 else 1; off = 8 * hf + (1024 if k == 2 else 0)
            return [f'ds_read_b64_tr_b16 v[{r}:{r+1}], v{ar} offset:{off}', f'ds_read_b64_tr_b16 v[{r+2}:{r+3}], v{ar} offset:{off + 2*3072}']
        def mid():
            self.emit(self.tr192_addr(1, 3, pairmode=True))
            a(f"""
            s_lshr_b32 {t4}, {sW}, 1
            s_mul_i32 {u0}, {t4}, {4*3072 + 1024}
            s_add_u32 {u0}, {u0}, {L_CKV}
            s_lshl_b32 {u1}, {t4}, 6
            s_lshl_b32 {u2}, {t4}, 10
            v_xor_b32 v1, {u1}, v1
            v_add_u32 v1, {u0}, v1
            v_xor_b32 v2, 64, v1
            v_add_u32 v2, {u2}, v2
            v_mov_b32 v3, {L_SCAL}
            ds_read_b32 v3, v3
            """)
            for tl in range(5): self.emit(cread(tl, 28 + 4 * tl))
            a(f"""
            s_mul_i32 {t5}, {t4}, {(-8*3072) & 0xffffffff}
            s_add_u32 {t5}, {t5}, {4*3072}
            s_lshl_b32 {t6}, {sW}, 11
            s_xor_b32 {t7}, {t6}, 4096
            s_add_u32 {t6}, {t6}, {L_SX}
            s_add_u32 {t7}, {t7}, {L_SX}
            s_waitcnt lgkmcnt(10)
            v_readfirstlane_b32 {t4}, v3
            """)
        def compute():
            self.stamp('p got')
            a("""
            v_pk_add_f32 v[4:5], v[4:5], v[52:53]
            v_pk_add_f32 v[6:7], v[6:7], v[54:55]
            v_pk_add_f32 v[12:13], v[12:13], v[20:21]
            v_pk_add_f32 v[14:15], v[14:15], v[22:23]
            v_pk_add_f32 v[8:9], v[8:9], v[48:49]
            v_pk_add_f32 v[10:11], v[10:11], v[50:51]
            v_pk_add_f32 v[16:17], v[16:17], v[24:25]
            v_pk_add_f32 v[18:19], v[18:19], v[26:27]
            v_pk_add_f32 v[4:5], v[4:5], v[12:13]
            v_pk_add_f32 v[6:7], v[6:7], v[14:15]
            v_pk_add_f32 v[8:9], v[8:9], v[16:17]
            v_pk_add_f32 v[10:11], v[10:11], v[18:19]
            v_max3_f32 v12, v4, v5, v6
            v_max3_f32 v13, v7, v8, v9
            v_max3_f32 v12, v12, v10, v11
            v_max_f32 v12, v12, v13
            v_mov_b32 v13, v12
            v_pk_add_f32 v[14:15], v[4:5], v[6:7]
            v_pk_add_f32 v[16:17], v[8:9], v[10:11]
            v_permlane16_swap_b32 v12, v13
            v_max_f32 v12, v12, v13
            v_mov_b32 v13, v12
            v_pk_add_f32 v[14:15], v[14:15], v[16:17]
            """)
        self.spec_poll(loads, range(4, 28), 3, self.cfg.dly['p'], compute, (14, 15), mid=mid, who='g3', first0=self.dyn_behind('p'))
        a(f"""
        v_permlane32_swap_b32 v12, v13
        v_max_f32 v12, v12, v13
        v_mul_f32_e64 v14, -v12, {t4}
        v_mov_b32 v16, {t4}
        v_floor_f32 v14, v14
        """)
        self.emit(cread(5, 48))
        for k in range(4, 12, 2): a(f'v_pk_fma_f32 v[{k}:{k+1}], v[{k}:{k+1}], v[16:17], v[14:15] op_sel_hi:[1,0,0]')
        a(f'v_add_u32 v1, {t5}, v1\nv_add_u32 v2, {t5}, v2')
        for k in range(4, 12): a(f'v_exp_f32 v{k}, v{k}')
        a(f'v_add_u32 v3, {t6}, v60')
        for k in range(4): a(f'v_cvt_pk_bf16_f32 v{16+k}, v{4+2*k}, v{5+2*k}')
        a(f"""
        ds_write_b128 v3, v[16:19]
        v_pk_add_f32 v[4:5], v[4:5], v[6:7]
        v_pk_add_f32 v[8:9], v[8:9], v[10:11]
        v_pk_add_f32 v[4:5], v[4:5], v[8:9]
        v_add_f32 v15, v4, v5
        ds_write_b64 v3, v[14:15] offset:1024
        v_add_u32 v3, {t7}, v60
        """)
        self.emit(cread(0, 52) + cread(1, 20) + cread(2, 24))
        a(f"""
        s_waitcnt lgkmcnt(6)
        s_barrier
        ds_read_b64 v[12:13], v3 offset:1024
        ds_read_b128 v[8:11], v3
        """)
        self.emit(cread(3, 4))
        a(f"""
        v_bfe_u32 v60, v0, 1, 3
        v_mul_u32_u24 v60, 196608, v60
        v_and_b32 v3, 1, v0
        v_lshl_add_u32 v60, v3, 6, v60
        v_and_b32 v3, 48, v0
        v_add_u32 v60, v60, v3
        s_waitcnt lgkmcnt(3)
        v_min_f32 v2, v14, v12
        v_sub_f32 v14, v14, v2
        v_sub_f32 v12, v12, v2
        v_min_f32 v14, 0x437f0000, v14
        v_min_f32 v12, 0x437f0000, v12
        v_cvt_u32_f32 v3, v14
        v_mul_u32_u24 v3, 0x800080, v3
        v_pk_sub_u16 v16, v16, v3 clamp
        v_pk_sub_u16 v17, v17, v3 clamp
        v_pk_sub_u16 v18, v18, v3 clamp
        v_pk_sub_u16 v19, v19, v3 clamp
        v_cvt_u32_f32 v3, v12
        v_mul_u32_u24 v3, 0x800080, v3
        """)
        M = lambda d, A_, B_, c: f'v_mfma_f32_16x16x32_bf16 v[{d}:{d+3}], v[{A_}:{A_+3}], v[{B_}:{B_+3}], ' + (f'v[{d}:{d+3}]' if c else '0')
        def out(k, x, y, o):
            self.vissue('st')
            return [f'v_cvt_pk_bf16_f32 v{o}, v{x}, v{x+1}', f'v_cvt_pk_bf16_f32 v{o+1}, v{x+2}, v{x+3}',
                    f'v_cvt_pk_bf16_f32 v{o+2}, v{y}, v{y+1}', f'v_cvt_pk_bf16_f32 v{o+3}, v{y+2}, v{y+3}',
                    f'buffer_store_dwordx4 v[{o}:{o+3}], v60, {SRDW}, {sFP} offen offset:{128*k} sc1']
        a(f"""
        {M(28, 28, 16, 0)}
        s_waitcnt lgkmcnt(2)
        v_pk_sub_u16 v8, v8, v3 clamp
        v_pk_sub_u16 v9, v9, v3 clamp
        {M(32, 32, 16, 0)}
        v_pk_sub_u16 v10, v10, v3 clamp
        v_pk_sub_u16 v11, v11, v3 clamp
        {M(36, 36, 16, 0)}
        v_exp_f32_e64 v14, -v14
        {M(28, 52, 8, 1)}
        """)
        self.emit(cread(4, 52))
        a(f"""
        {M(32, 20, 8, 1)}
        """)
        self.emit(cread(5, 20))
        a(f"""
        {M(40, 40, 16, 0)}
        v_exp_f32_e64 v12, -v12
        {M(36, 24, 8, 1)}
        v_mul_f32 v3, v15, v14
        s_waitcnt lgkmcnt(4)
        {M(40, 4, 8, 1)}
        v_fmac_f32 v3, v13, v12
        v_sub_f32 v2, 0, v2
        {M(44, 44, 16, 0)}
        v_mov_b32 v1, v3
        """)
        o0 = out(0, 28, 32, 24)
        a(f"""
        {o0[0]}
        {M(48, 48, 16, 0)}
        {o0[1]}
        v_permlane16_swap_b32 v3, v1
        s_waitcnt lgkmcnt(2)
        {M(44, 52, 8, 1)}
        {o0[2]}
        {o0[3]}
        s_waitcnt lgkmcnt(0)
        {M(48, 20, 8, 1)}
        {o0[4]}
        v_add_f32 v3, v3, v1
        v_mov_b32 v1, v3
        """)
        o1 = out(1, 36, 40, 4)
        a(f"""
        {o1[0]}
        {o1[1]}
        v_permlane32_swap_b32 v3, v1
        {o1[2]}
        {o1[3]}
        {o1[4]}
        v_add_f32 v3, v3, v1
        v_lshlrev_b32 v1, 3, v0
        s_mov_b64 exec, {M16}
        buffer_store_dwordx2 v[2:3], v1, {SRDW}, {sFSP} offen sc1
        s_mov_b64 exec, -1
        """)
        self.vissue('st')
        self.emit(out(2, 44, 48, 8))

    def uv_wread(self, r, areg):
        for u in range(6): self.a(f'ds_read_b64_tr_b16 v[{r+2*u}:{r+2*u+1}], v{areg} offset:{2*u*3072}')
    def uv_pre(self, full=False):
        a = self.a
        self.emit(self.tr192_addr(55, 54))
        for k in range(3):
            a(f's_mul_i32 {u0}, {sW}, 3\ns_add_u32 {u0}, {u0}, {k}')
            self.tile_addr(60, 55, u0, L_WUV)
            if k < 2 or full: self.uv_wread([28, 40, 8][k], 60)

    def gather_f(self):
        a = self.a
        def addrs():
            a("""
            v_lshrrev_b32 v2, 2, v0
            v_mul_u32_u24 v1, 384, v2
            v_lshlrev_b32 v2, 10, v2
            v_and_b32 v3, 3, v0
            v_lshl_add_u32 v1, v3, 4, v1
            """)
        addrs()
        so = [sFG, t0, t1, t2]; ss = [sFSG, t3, t4, t5]
        for i in range(1, 4): a(f's_add_u32 {so[i]}, {sFG}, {6144*i}\ns_add_u32 {ss[i]}, {sFSG}, {16384*i}')
        loads = [f'buffer_load_dwordx2 v[{20+2*i}:{21+2*i}], v2, {SRDW}, {ss[i]} offen sc1' for i in range(4)]
        if self.cfg.dly['f2']: loads.append(f"s_sleep {self.cfg.dly['f2']}")
        loads += [f'buffer_load_dwordx4 v[{4+4*i}:{7+4*i}], v1, {SRDW}, {so[i]} offen sc1' for i in range(4)]
        lo = [52, 53, 54, 55]
        def stats(wait=True):
            self.emit(self.bitperm(2, 0, {0: 5, 4: 4, 5: 3, 1: 2}, 3)); self.emit(self.bitperm(1, 0, {0: 5, 5: 4, 1: 3, 4: 2}, 3))
            a(f"""
            s_cmp_eq_u32 {sW}, 2
            s_cselect_b64 vcc, -1, 0
            s_lshl_b32 {u0}, {sW}, 6
            s_add_u32 {u0}, {u0}, {L_US}
            v_cndmask_b32 v2, v2, v1, vcc
            v_add_u32 v2, {u0}, v2
            v_mov_b64 v[52:53], 0
            v_mov_b64 v[54:55], 0
            s_waitcnt vmcnt(4)
            v_max3_f32 v3, v20, v22, v24
            v_max_f32 v3, v3, v26
            v_max_f32_dpp v3, v3, v3 row_ror:4 {DP}
            v_max_f32_dpp v3, v3, v3 row_ror:8 {DP}
            """)
            self.emit(self.allrows('v_max_f32', 3, 1))
            for i in range(4): a(f'v_sub_f32 v{20+2*i}, v{20+2*i}, v3')
            for i in range(4): a(f'v_exp_f32 v{20+2*i}, v{20+2*i}')
            for i in range(4): a(f'v_and_b32 v{20+2*i}, 0xffff0000, v{20+2*i}')
            a('v_mul_f32 v3, v20, v21')
            for i in range(1, 4): a(f'v_fmac_f32 v3, v{20+2*i}, v{21+2*i}')
            a(f"""
            v_lshrrev_b32 v21, 16, v20
            v_lshrrev_b32 v23, 16, v22
            v_add_f32_dpp v3, v3, v3 row_ror:4 {DP}
            v_lshrrev_b32 v25, 16, v24
            v_lshrrev_b32 v27, 16, v26
            v_add_f32_dpp v3, v3, v3 row_ror:8 {DP}
            """)
            self.emit(self.allrows('v_add_f32', 3, 1) + ['v_rcp_f32 v3, v3', f'v_mul_f32 v3, {sUH}, v3'])
        def compute():
            self.stamp('f got')
            for i in range(4):
                for c in range(4): a(f'v_dot2c_f32_bf16 v{lo[c]}, v{4+4*i+c}, v{21+2*i}')
            sw = ['v_permlane16_swap_b32 v52, v53', 'v_permlane16_swap_b32 v54, v55', 'v_add_f32 v52, v52, v53', 'v_add_f32 v54, v54, v55',
                  'v_permlane32_swap_b32 v52, v54', 'v_add_f32 v52, v52, v54', f'v_add_f32_dpp v52, v52, v52 row_ror:4 {DP}']
            for c in range(4): a(f'v_dot2_f32_bf16 v{4+c}, v{4+c}, v20, 0')
            a(sw.pop(0))
            for i in range(1, 4):
                for c in range(4):
                    a(f'v_dot2_f32_bf16 v{4+c}, v{4+4*i+c}, v{20+2*i}, v{4+c}')
                    if sw and c % 2 == 1: a(sw.pop(0))
            a(f"""
            v_permlane16_swap_b32 v4, v5
            v_add_f32_dpp v52, v52, v52 row_ror:8 {DP}
            v_permlane16_swap_b32 v6, v7
            v_add_f32 v4, v4, v5
            v_add_f32 v6, v6, v7
            v_mul_f32 v52, v52, v3
            v_permlane32_swap_b32 v4, v6
            v_add_f32 v4, v4, v6
            v_add_f32_dpp v4, v4, v4 row_ror:4 {DP}
            v_add_f32_dpp v4, v4, v4 row_ror:8 {DP}
            v_mul_f32 v4, v4, v3
            v_cvt_pk_bf16_f32 v5, v52, v4
            ds_write_b32 v2, v5
            """)
            self.uv_wread(8, 60)
        self.spec_poll(loads, range(4, 28), 3, self.cfg.dly['f'], compute, (52, 4), mid=stats, redo=stats, undo=addrs)

    def stage_uv(self):
        a = self.a
        a(f"""
        v_and_b32 v2, 48, v0
        v_and_b32 v3, 1, v0
        v_lshlrev_b32 v1, 1, v2
        v_add_u32 v2, {L_US + 128}, v2
        v_lshl_add_u32 v1, v3, 4, v1
        s_waitcnt lgkmcnt(6)
        s_barrier
        """)
        if self.cfg.dyn or any(x[0] == 'wuv' for k in ('p3', 'p4', 'f1') for x in self.cfg.seg.get(k, [])):
            with self.it0(): self.uv_pre(True)
        a(f"""
        ds_read_b128 v[24:27], v2
        v_add_u32 v1, {L_US}, v1
        ds_read_b128 v[20:23], v1
        v_mul_u32_u24 v3, 0xaaaa, v3
        v_or_b32 v3, 0x4444, v3
        s_mul_i32 {u0}, {sW}, 48
        """)
        fill = self.pub_voff(60, 1, u0) + [f's_add_u32 {t0}, {sHB}, {B_G}', f's_add_u32 {t4}, {sHB}, {B_G - 8192}']
        for _ in range(6): a(fill.pop(0))
        a('s_waitcnt lgkmcnt(1)')
        Wb = [28, 40, 8]; D = [52, 4, 36]
        for k in range(3):
            a(f'v_mfma_f32_16x16x32_bf16 v[{D[k]}:{D[k]+3}], v[24:27], v[{Wb[k]+8}:{Wb[k]+11}], 0')
            for _ in range(2):
                if fill: a(fill.pop(0))
        a('s_waitcnt lgkmcnt(0)')
        for k in range(3): a(f'v_smfmac_f32_16x16x64_bf16 v[{D[k]}:{D[k]+3}], v[20:23], v[{Wb[k]}:{Wb[k]+7}], v3')
        a('v_lshlrev_b32 v26, 2, v0')
        self.store_intra([f's_mov_b64 exec, {M48}'] + self.merge(2, D) + [f'buffer_store_dword v2, v60, {SRDW}, {t4} offen{{sc}}', 's_mov_b64 exec, -1'])

    def build(self):
        a = self.a; cfg = self.cfg
        if cfg.dyn:
            cfg.seg = {k: v for k, v in cfg.seg.items() if k in ('v0', 'v1')}; cfg.early = 2
        a(f"""
        s_cmp_ge_u32 s2, 256
        s_cbranch_scc1 L_end
        s_load_dwordx16 s[64:79], s[0:1], 0
        s_load_dwordx8 s[80:87], s[0:1], 64
        s_load_dwordx4 s[88:91], s[0:1], 96
        v_lshrrev_b32 v1, 6, v0
        v_mov_b32 v51, v0
        v_and_b32 v0, 63, v0
        v_readfirstlane_b32 {sW}, v1
        s_and_b32 {t0}, s2, 7
        s_lshl_b32 {t0}, {t0}, 5
        s_lshr_b32 {t1}, s2, 3
        s_add_u32 {sCU}, {t0}, {t1}
        s_lshr_b32 {sH}, {sCU}, 3
        s_and_b32 {sS}, {sCU}, 7
        s_mul_i32 {sKV}, {sCU}, 196608
        s_mul_i32 {t0}, {sW}, 49152
        s_add_u32 {sKV}, {sKV}, {t0}
        s_mov_b32 {sSTI}, 0
        """)
        if cfg.stamps: a('v_mov_b32 v63, 0')
        self.kv_addr()
        a('s_waitcnt lgkmcnt(0)')
        self.stamp('start')
        self.dma192('wq', 0, 8, 1, 2, 'g3', None)
        self.srd('k', 12)
        self.emit(self.x_gaddr())
        a(f'v_and_b32 v3, {u1}, v0\nv_cmp_eq_u32 {MXV}, v3, v0')
        self.emit(self.x_laddr())
        self.srd('x')
        a(f's_mul_i32 {t0}, {sS}, 160\nbuffer_load_ushort v20, v60, {SRDT}, {t0} offen'); self.vissue('x')
        for U in range(2): self.kv_issue(U)
        self.srd('v', 16); self.srd('ws', 20, WS_BYTES)
        a(f"""
        s_add_u32 s96, s90, {W_EP}
        s_addc_u32 s97, s91, 0
        s_load_dword {sEP}, s[96:97], 0
        s_getpc_b64 s[98:99]
        L_pc:
        s_lshr_b32 {t0}, s2, 3
        s_lshl_b32 {t0}, {t0}, 2
        s_add_u32 {t0}, {t0}, {sW}
        s_lshl_b32 {t0}, {t0}, 8
        s_min_u32 {t0}, {t0}, L_last-L_pc-132
        s_add_u32 s98, s98, {t0}
        s_addc_u32 s99, s99, 0
        {'s_load_dword s74, s[98:99], 0' if cfg.warm_code else ''}
        {'s_load_dword s75, s[98:99], 128' if cfg.warm_code else ''}
        s_lshr_b32 {sKB}, {sCU}, 2
        s_and_b32 {sCB}, {sCU}, 3
        s_mov_b32 {sIT}, 0
        s_mov_b32 {sFAST}, 0
        s_mov_b32 s36, -1
        s_mov_b32 s37, 0xffff
        s_mov_b32 s38, 0xffff
        s_mov_b32 s39, 0
        s_mov_b64 {ML0}, 1
        s_mov_b32 s42, -1
        s_mov_b32 s43, 0x0fffffff
        s_mov_b32 s50, -1
        s_mov_b32 s51, 0
        s_mov_b32 {sC}, {f2u(SCALE)}
        s_mov_b32 {sLIM}, {cfg.lim}
        s_mov_b32 s60, -1
        s_mov_b32 s93, 0
        s_mov_b32 s92, 0x55555555
        s_cmp_lt_u32 {sW}, 2
        s_cselect_b32 s61, 0, -1
        s_cselect_b32 s92, s92, 0x5555
        s_cmp_eq_u32 {sW}, 2
        s_cselect_b32 {sUH}, 0.5, 1.0
        s_cmp_eq_u32 {sW}, 3
        s_cselect_b32 {sW3O}, {OOB}, 0
        s_lshl_b32 {sHB}, {sH}, 16
        s_lshl_b32 {t0}, {sW}, 11
        s_add_u32 {sHB}, {sHB}, {t0}
        s_add_u32 {sHB}, {sHB}, {W_H + 8192}
        s_mul_i32 {sYG}, {sS}, 12288
        s_add_u32 {sYG}, {sYG}, {W_Y - 98304}
        s_lshl_b32 {sYP}, {sH}, 7
        s_add_u32 {sYP}, {sYP}, {sYG}
        s_lshr_b32 {t0}, {sW}, 1
        s_lshl_b32 {t0}, {t0}, 12
        s_add_u32 {sYP}, {sYP}, {t0}
        s_and_b32 {t0}, {sW}, 1
        s_lshl_b32 {t0}, {t0}, 6
        s_add_u32 {sYP}, {sYP}, {t0}
        s_lshl_b32 {t0}, {sW}, 12
        s_add_u32 {sYG}, {sYG}, {t0}
        s_lshr_b32 {t0}, {sS}, 1
        s_lshl_b32 {t0}, {t0}, 1
        s_lshr_b32 {t1}, {sH}, 4
        s_add_u32 {t0}, {t0}, {t1}
        s_lshl_b32 {t0}, {t0}, 1
        s_and_b32 {t1}, {sS}, 1
        s_add_u32 {t0}, {t0}, {t1}
        s_mul_i32 {t0}, {t0}, 3
        s_min_u32 {t1}, {sW}, 2
        s_add_u32 {t0}, {t0}, {t1}
        s_lshl_b32 {sEPB}, {t0}, 10
        s_and_b32 {t0}, {sH}, 15
        s_lshl_b32 {t0}, {t0}, 6
        s_add_u32 {sEPB}, {sEPB}, {t0}
        s_sub_u32 {t0}, {sW}, {t1}
        s_lshl_b32 {t0}, {t0}, 5
        s_add_u32 {sEPB}, {sEPB}, {t0}
        s_add_u32 {sEPB}, {sEPB}, {W_E}
        s_and_b32 {t1}, {sW}, 1
        s_lshr_b32 {t2}, {sW}, 1
        s_lshl_b32 {t0}, {sCB}, 1
        s_add_u32 {t0}, {t0}, {t1}
        s_mul_i32 {sEG}, {t0}, 6144
        s_add_u32 {sEG}, {sEG}, {W_E}
        s_lshl_b32 {sPO}, {sCU}, 13
        s_lshl_b32 {t0}, {sW}, 11
        s_add_u32 {sPO}, {sPO}, {t0}
        s_add_u32 {sPO}, {sPO}, {W_P}
        s_lshl_b32 {t0}, {t1}, 6
        s_lshl_b32 {t3}, {sCB}, 1
        s_add_u32 {t0}, {t0}, {t3}
        s_add_u32 {t0}, {t0}, {t2}
        s_lshl_b32 {t0}, {t0}, 6
        s_add_u32 {t0}, {t0}, {sKB}
        s_mul_i32 {sFP}, {t0}, 384
        s_add_u32 {sFP}, {sFP}, {W_F}
        s_lshr_b32 {t0}, {sH}, 1
        s_lshl_b32 {t0}, {t0}, 3
        s_add_u32 {t0}, {t0}, {sS}
        s_mul_i32 {sFG}, {t0}, 24576
        s_and_b32 {t0}, {sH}, 1
        s_lshl_b32 {t0}, {t0}, 6
        s_add_u32 {sFG}, {sFG}, {t0}
        s_lshl_b32 {t0}, {sW}, 7
        s_add_u32 {sFG}, {sFG}, {t0}
        s_add_u32 {sFG}, {sFG}, {W_F}
        s_lshl_b32 {sFSP}, {sCU}, 8
        s_lshl_b32 {t0}, {t1}, 7
        s_add_u32 {sFSP}, {sFSP}, {t0}
        s_mul_i32 {t0}, {t2}, {OOB}
        s_add_u32 {sFSP}, {sFSP}, {t0}
        s_add_u32 {sFSP}, {sFSP}, {W_FS}
        s_lshr_b32 {t0}, {sS}, 1
        s_lshl_b32 {sFSG}, {t0}, 8
        s_lshl_b32 {t0}, {sH}, 3
        s_add_u32 {sFSG}, {sFSG}, {t0}
        s_add_u32 {sFSG}, {sFSG}, {W_FS}
        v_lshlrev_b32 v1, 2, v0
        v_min_u32 v1, 156, v1
        v_add_u32 v1, {L_ONES}, v1
        v_mov_b32 v2, 0x3f803f80
        v_mov_b32 v3, 0
        ds_write_b32 v1, v2
        ds_write_b32 v1, v3 offset:160
        v_mov_b32 v1, {L_FLAG}
        ds_write_b32 v1, v3
        """)
        self.q_pre('wq')
        self.emit(self.tr192_addr(42, 3))
        self.vwait('x')
        a(f'ds_write_b16 v55, v20\ns_waitcnt lgkmcnt(0)\ns_barrier\ns_add_u32 {sEP}, {sEP}, 1')
        for k in range(4):
            a(f's_lshl_b32 {u0}, {sW}, 1\ns_lshl_b32 {u1}, {sW}, 2\ns_sub_u32 {u1}, {u1}, 4\ns_cmp_lt_u32 {sW}, 2\ns_cselect_b32 {u0}, {u0}, {u1}\ns_add_u32 {u0}, {u0}, {k}')
            self.tile_addr(43, 42, u0, L_WO)
            b = int(self.WQB_[k][2:5])
            for u in range(4): a(f'ds_read_b64_tr_b16 a[{b+2*u}:{b+2*u+1}], v43 offset:{2*u*3072}')
            a(f'ds_read_b64_tr_b16 {self.WQT_[k]}, v43 offset:{8*3072}')
        self.emit(self.x_stats()[:3])
        a('s_waitcnt lgkmcnt(0)')

        a.label('L_top')
        self.stamp('top')
        self.stage_q('wq')
        self.stamp('q pub')
        with self.it0():
            a(f"""
            v_lshl_add_u32 v2, v0, 3, {sS}
            s_lshl_b32 {u0}, {sH}, 3
            v_and_b32 v3, 7, v0
            v_add_u32 v3, {u0}, v3
            v_cmp_gt_u32 vcc, 32, v0
            s_mov_b32 {t6}, {W_FL}
            v_cndmask_b32 v2, v3, v2, vcc
            v_lshlrev_b32 v2, 7, v2
            """)
            self.row192_addr(self.SR, self.SR + 1, 1, sRING)
            st = {'flag': False}
            def cbA(U):
                if not st['flag'] and 'st' not in self.vm['3']:
                    st['flag'] = True
                    with self.skip(f's_cmp_lg_u32 {sW}, 3'):
                        a(f"""
                        v_mov_b32 v1, {sEP}
                        s_lshl_b32 {u0}, {sCU}, 7
                        v_mov_b32 v3, {u0}
                        s_mov_b64 exec, {ML0}
                        buffer_store_dword v1, v3, {SRDW}, {t6} offen sc1
                        s_mov_b64 exec, -1
                        """)
                        self.vissue('fl', '3')
                    print('flag after unit', U)
                if U == cfg.c1:
                    assert st['flag']
                    with self.skip(f's_cmp_eq_u32 {sW}, 3'):
                        a(f'buffer_load_dword v6, v2, {SRDW}, {t6} offen sc1'); self.vissue('cnt', 'g')
            self.kv_pump(cfg.c2, cb=cbA, lim=cfg.rB)
            lp, ld = a.newlabel('Lcnt'), a.newlabel('Lcntok')
            a(f's_cmp_eq_u32 {sW}, 3\ns_cbranch_scc1 {ld}')
            self.vwait('cnt', 'g')
            a(f's_mov_b32 {sCNT}, 0'); a.label(lp)
            a(f"""
            v_cmp_ne_u32 vcc, {sEP}, v6
            s_cbranch_vccz {ld}
            s_sleep 8
            buffer_load_dword v6, v2, {SRDW}, {t6} offen sc1
            s_add_u32 {sCNT}, {sCNT}, 1
            s_waitcnt vmcnt(0)
            s_cmp_lt_u32 {sCNT}, {sLIM}
            s_cbranch_scc1 {lp}
            s_mov_b32 {sLIM}, 0
            """)
            a.label(ld)
        def w3a():
            with self.skip(f's_cmp_lg_u32 {sIT}, 0'):
                self.rd, self.iss = self.kvsave
                self.kv_pump(cfg.c3, '3', lim=cfg.rB); self.kv_force(cfg.rB, '3')
                if 'cs' not in cfg.skip and cfg.early < 1:
                    self.clear_boxes([B_QB, B_G, B_CB], 4)
                    self.clear_cross_small(4, [98304]); self.clear_EFS(4)
            self.att_pre0(); self.zero_S()
        self.split3(lambda: self.gather_a(vCSA, True, self.att_pre), w3a)
        self.stamp("a' done")
        self.att_qk()
        self.stamp('qk done')
        with self.it0():
            a(f'v_readfirstlane_b32 {sFAST}, v14')
            assert cfg.rB >= 8 and not cfg.shadow0
            self.SR = 12; self.SV = 54
            self.v_raddr(2); self.voff192(54, 2, 384)
            self.kv_pump(cfg.c4); self.kv_force(11)
            a('s_waitcnt lgkmcnt(0)')
        def hook():
            def h0():
                self.SR = 4; self.SV = 8
                self.v_raddr(9); self.voff192(8, 9, 384)
                self.kv_pump(15)
                if cfg.dyn:
                    a(f's_mov_b32 {self.sIDX}, 0')
                with self.skip(f's_cmp_lg_u32 {sW}, 3'):
                    a(f's_mov_b32 {t3}, {t0}'); self.touch([B_O], 5, False); a(f's_mov_b32 {t0}, {t3}')
                self.seg('v0', 10, 11); self.kv_flush(); self.seg('v1', 10, 11); self.kv_force(15)
                a('s_waitcnt lgkmcnt(0)')
                assert 'clr' not in self.vm['3'] and 'dr' not in self.vm['3'] and 'dr' not in self.vm['g']
            with self.it0(): h0()
            self.stamp('v ready')
        self.att_pv(hook)
        self.stamp('b pub')
        if cfg.seg.get('b1'):
            with self.it0(): self.seg('b1', 12, 13)
        if cfg.lt:
            a('s_waitcnt vmcnt(0)\ns_barrier'); self.stamp('all'); a(f's_mov_b32 {sSTI}, {{NST}}\ns_branch L_exit')
        def gb():
            self.gather_b(lambda: self.o_pre(L_WO, True)); self.raise_flag(6, 7); self.stamp('b done')
            assert 'wo' not in self.vm['g']
            self.o_g(True)
        def w3b():
            with self.skip(f's_cmp_lg_u32 {sIT}, 0'):
                if cfg.dyn:
                    self.touch([B_QB, B_CB], 8, True)
                    self.stream(need='zero', upto='wob', flag=self.nflag); self.vdrain('3')
                else:
                    self.seg('b2', 1, 2, '3', cap=False); self.vwait('wo', '3')
            self.o_pre(L_WO, True)
            with self.it1(): a('s_waitcnt vmcnt(2)')
            self.o_w3(True)
            with self.skip(f's_cmp_lg_u32 {sIT}, 0'):
                if not cfg.shadow0 and cfg.early < 2 and not any(x[0] == 'clr' for v in cfg.seg.values() for x in v):
                    self.clr_regs(8); self.clear_P(8); self.clear_F(8)
                if cfg.early < 1:
                    self.clear_boxes([IT_H + B_QA, IT_H + B_O, IT_H + B_QB, IT_H + B_G], 8, 'clrF')
                    self.clear_cross_small(8, [2 * 98304, 3 * 98304], 'clrF'); self.clear_EFS(8, 1, 'clrF')
                if cfg.big0:
                    self.vcap(36, '3'); self.clear_P(8, 1, 'clrF'); self.clear_F(8, 1)
            with self.it1(): self.touch([B_QB, B_G], 8, True)
        self.split3(gb, w3b)
        self.vissue('st', 'g')
        self.stamp('c pub')
        if cfg.seg.get('c1'):
            with self.it0(): self.seg('c1', 14, 15)
        self.q_pre('wqb')
        with self.it1(): self.q_reads()
        def w3c():
            def f0():
                if cfg.dyn: return self.stream(need='wqb', upto='wob', flag=self.nflag)
                self.seg('c2', 6, 7, '3', cap=False); self.vwait('clr', '3'); self.vwait('wqb', '3')
                if self.uk_staged(): self.vwait('wuk', '3')
                self.touch([B_QB, B_CB], 8, True)
            with self.it0(): f0()
        def gc():
            self.gather_c('c2'); self.raise_flag(8, 9)
        self.split3(gc, w3c)
        assert 'wqb' not in self.vm['g'] and 'clr' not in self.vm['g'] and not (self.uk_staged() and 'wuk' in self.vm['g'])
        a('s_waitcnt lgkmcnt(0)\ns_barrier')
        self.stamp('c done')
        self.stage_q('wqb')
        self.stamp('qb pub')
        if cfg.seg.get('a1') or self.uk_staged():
            with self.it0():
                if self.uk_staged(): self.uk_copy(bool(cfg.seg.get('a1')))
                self.seg('a1', 6, 7)
        def w3a2():
            self.abs_pre()
            if cfg.dyn:
                with self.it0(): self.stream(need='wuk', upto='wob', flag=self.nflag)
            else: a('s_waitcnt vmcnt(0)')
            self.vdrain('3')
        def ga2():
            self.gather_a(vCSB, False, self.abs_pre); self.raise_flag(6, 7)
        self.split3(ga2, w3a2)
        assert not self.vm['g']
        if cfg.seg.get('a3'):
            with self.it0(): self.seg('a3', 6, 7, cap=False)
        self.stamp("a'b done")
        self.stage_abs()
        self.stamp('e pub')
        if cfg.seg.get('e1'):
            with self.it0(): self.seg('e1', 6, 7, cap=False)
        self.stage_sc()
        self.stamp('p pub')
        self.stage_ctx()
        self.stamp('f pub')
        if cfg.seg.get('f1'):
            with self.it0(): self.seg('f1', 16, 17, cap=False)
        self.uv_pre()
        def w3f():
            with self.skip(f's_cmp_lg_u32 {sIT}, 0'):
                self.touch([B_G, IT_H + B_QA, IT_H + B_O], 16, False)
                if cfg.dyn: self.stream(need='wuv')
                a('s_waitcnt vmcnt(0)')
            a('s_waitcnt lgkmcnt(0)')
            self.uv_wread(8, 60)
        self.split3(self.gather_f, w3f)
        self.stage_uv()
        self.stamp('g pub')
        def gg():
            self.gather_g(lambda: self.o_pre(L_WOB, False)); self.stamp('g done'); self.o_g(False)
        def w3g():
            self.o_pre(L_WOB, False); self.o_w3(False)
        self.split3(gg, w3g)
        self.stamp('c2 pub')
        with self.skip(f's_cmp_eq_u32 {sIT}, 0'):
            a(f's_add_u32 {u0}, {sW3O}, {sH}\ns_cmp_lg_u32 {u0}, 0\ns_cbranch_scc1 L_exit')
        a(f"""
        s_add_u32 {sHB}, {sHB}, {IT_H}
        s_add_u32 {sEPB}, {sEPB}, 65536
        s_add_u32 {sEG}, {sEG}, 65536
        s_add_u32 {sPO}, {sPO}, {2*MiB}
        s_add_u32 {sFP}, {sFP}, {3*MiB}
        s_add_u32 {sFG}, {sFG}, {3*MiB}
        s_add_u32 {sFSP}, {sFSP}, 65536
        s_add_u32 {sFSG}, {sFSG}, 65536
        """)
        self.q_pre('wq')
        self.srd('out')
        self.split3(lambda: self.gather_c(None), lambda: None)
        a(f"""
        s_cmp_lg_u32 {sIT}, 0
        s_cbranch_scc1 L_out
        s_mov_b32 {sIT}, 1
        s_mov_b32 {sSTI}, {{NST}}
        s_waitcnt lgkmcnt(0)
        s_barrier
        s_branch L_top
        """)
        a.label('L_out')
        a(f"""
        s_mul_i32 {t0}, {sS}, 160
        buffer_store_short v20, v60, {SRDT}, {t0} offen
        s_add_u32 {t0}, {sCU}, {sW}
        s_cmp_lg_u32 {t0}, 0
        s_cbranch_scc1 L_exit
        v_mov_b32 v1, {sEP}
        v_mov_b32 v2, {W_EP}
        s_mov_b64 exec, {ML0}
        buffer_store_dword v1, v2, {SRDW}, 0 offen
        s_mov_b64 exec, -1
        """)
        a.label('L_exit')
        if cfg.stamps:
            self.stamp('end')
            a(f"""
            s_cmp_lg_u32 {sW}, 0
            s_cbranch_scc1 L_end
            s_lshl_b32 {t0}, s2, 8
            s_add_u32 {t0}, {t0}, 0x8000000
            v_lshl_add_u32 v1, v0, 2, {t0}
            global_store_dword v1, v63, s[90:91]
            """)
        a('s_branch L_end')
        for blk in self.side: a.items += blk
        if cfg.dyn: self.stream_sub()
        a.label('L_last'); a.label('L_end')
        txt = a.finalize().replace('{NST}', str(self.nstamp - 2))
        if 'st' in cfg.skip:
            txt = '\n'.join(('    s_nop 0' if l.strip().startswith('buffer_store') else l) for l in txt.split('\n'))
        def fix(l):
            if l.strip().startswith('buffer_load') and ' nt' in l:
                kv = SRDK in l or SRDV in l
                if (kv and not cfg.ntkv) or (not kv and not cfg.ntw): return l.replace(' nt', '')
            return l
        txt = '\n'.join(fix(l) for l in txt.split('\n'))
        if 'nt' in cfg.skip:
            txt = '\n'.join((l + ' nt' if l.strip().startswith('buffer_store') and l.endswith('sc1') else l) for l in txt.split('\n'))
        if 'ld' in cfg.skip:
            txt = '\n'.join(('    s_nop 0' if l.strip().startswith('buffer_load') and ' sc1' in l else l) for l in txt.split('\n'))
            txt = txt.replace('s_cbranch_vccnz', 's_cbranch_execz').replace('s_cbranch_vccz', 's_cbranch_execnz')
        return wrap(txt, 256, 256, LDS_BYTES)

if __name__ == '__main__':
    import argparse, json
    ap = argparse.ArgumentParser()
    ap.add_argument('-o', default='cdna_kernels/' + NAME + '.s')
    ap.add_argument('--stamps', action='store_true')
    ap.add_argument('--slow', action='store_true')
    ap.add_argument('--set', action='append', default=[])
    args = ap.parse_args()
    cfg = Cfg(); cfg.stamps = args.stamps; cfg.force_slow = args.slow
    for kv in args.set:
        k, v = kv.split('=', 1)
        if '.' in k:
            d, kk = k.split('.'); dd = dict(getattr(cfg, d)); dd[kk] = eval(v); setattr(cfg, d, dd)
        else: setattr(cfg, k, eval(v))
    g = Gen(cfg); txt = g.build()
    open(args.o, 'w').write(txt)
    if cfg.stamps: json.dump(g.names, open(args.o + '.names.json', 'w'))
    print('wrote', args.o, len(txt), 'bytes')
```
